```python
import torch

def _softmax(x, axis=-1):
    return torch.softmax(x, dim=axis)

def _gelu(x):
    return torch.nn.functional.gelu(x, approximate='tanh')

def _silu(x):
    return torch.nn.functional.silu(x)

def _sigmoid(x):
    return torch.sigmoid(x)

def _layernorm(x, axis=-1, eps=1e-05):
    m = x.mean(dim=axis, keepdim=True)
    v = x.var(dim=axis, keepdim=True, unbiased=False)
    return (x - m) / torch.sqrt(v + eps)

def _scatter_add(tgt, idx, src, axis=0):
    return tgt.clone().index_add_(axis, idx, src)

def _segment_sum(src, seg, n):
    out = torch.zeros((n,) + src.shape[1:], dtype=src.dtype)
    return out.index_add_(0, seg, src)

def _pad(x, pw):
    flat = tuple((v for pair in reversed(pw) for v in pair))
    return torch.nn.functional.pad(x, flat)
kernel_name = 'adaLN_cond__linear_kernel_hedgehog__mixer_gmlp__prompt'

def setup_inputs():

    _w = lambda a: (lambda t: t.to(torch.bfloat16) if t.is_floating_point() else t)(torch.as_tensor(a))

    def _A_setup():
        B, S, D, H = (1, 2048, 640, 32)
        Dh = D // H
        return {'x': _w((lambda *s: torch.randn(*s, dtype=torch.bfloat16) * 0.05)(B, S, D)), 'wqkv': _w((lambda *s: torch.randn(*s, dtype=torch.bfloat16) * 0.4)(D, 3 * D)), 'w_phi': _w((lambda *s: torch.randn(*s, dtype=torch.bfloat16) * 0.4)(H, Dh, Dh) * Dh ** (-0.5)), 'wo': _w((lambda *s: torch.randn(*s, dtype=torch.bfloat16) * 0.05)(D, D))}
    _A_in = _A_setup()

    def _B_setup():
        B, S, D, F = (1, 2048, 640, 1536)
        Fh = F // 2
        return {'x': _w((lambda *s: torch.randn(*s, dtype=torch.bfloat16) * 0.05)(B, S, D)), 'w_in': _w((lambda *s: torch.randn(*s, dtype=torch.bfloat16) * 0.2)(D, 2 * Fh)), 'w_sp': _w(0.01 * (lambda *s: torch.randn(*s, dtype=torch.bfloat16) * 0.2)(S, S)), 'b_sp': _w(1.0 + 0.01 * (lambda *s: torch.randn(*s, dtype=torch.bfloat16) * 0.05)(S)), 'w_out': _w((lambda *s: torch.randn(*s, dtype=torch.bfloat16) * 0.05)(Fh, D))}
    _B_in = _B_setup()
    return {'A_x': _A_in['x'], 'A_wqkv': _A_in['wqkv'], 'A_w_phi': _A_in['w_phi'], 'A_wo': _A_in['wo'], 'B_x': _B_in['x'], 'B_w_in': _B_in['w_in'], 'B_w_sp': _B_in['w_sp'], 'B_b_sp': _B_in['b_sp'], 'B_w_out': _B_in['w_out'], 'c': _w((lambda *s: torch.randn(*s, dtype=torch.bfloat16) * 0.1)(1, 640) * 8.0), 'w_mod': _w((lambda *s: torch.randn(*s, dtype=torch.bfloat16) * 0.1)(640, 6 * 640) * 640 ** (-0.5) * 8.0)}

def reference(A_x, A_wqkv, A_w_phi, A_wo, B_x, B_w_in, B_w_sp, B_b_sp, B_w_out, c, w_mod):

    def _A_ref(x, wqkv, w_phi, wo):
        B, S, D = x.shape
        H = 32
        Dh = D // H
        qkv = (lambda x, *d: x.permute(*d))((x @ wqkv).reshape(B, S, 3, H, Dh), 2, 0, 3, 1, 4)
        q, k, v = (qkv[0], qkv[1], qkv[2])
        pq = torch.einsum('bhsd,hdf->bhsf', q, w_phi)
        pk = torch.einsum('bhsd,hdf->bhsf', k, w_phi)
        phi_q = torch.concatenate([_softmax(pq, axis=-1), _softmax(-pq, axis=-1)], axis=-1)
        phi_k = torch.concatenate([_softmax(pk, axis=-1), _softmax(-pk, axis=-1)], axis=-1)
        kv = torch.einsum('bhsf,bhsd->bhfd', phi_k, v)
        z = torch.einsum('bhsf->bhf', phi_k)
        num = torch.einsum('bhqf,bhfd->bhqd', phi_q, kv)
        den = torch.einsum('bhqf,bhf->bhq', phi_q, z)[..., None] + 1e-06
        o = num / den
        return (lambda x, *d: x.permute(*d))(o, 0, 2, 1, 3).reshape(B, S, D) @ wo

    def _B_ref(x, w_in, w_sp, b_sp, w_out):
        B, S, D = x.shape
        F = w_in.shape[-1]
        Fh = F // 2
        z = _gelu(torch.einsum('bsd,df->bsf', x, w_in))
        z1 = z[..., :Fh].clone()
        z2 = _layernorm(z[..., Fh:], axis=-1)
        g = torch.einsum('ts,bsf->btf', w_sp, z2) + b_sp[None, :, None]
        return torch.einsum('bsf,fd->bsd', z1 * g, w_out)
    x = A_x
    mod = (_silu(c) @ w_mod).reshape(c.shape[0], 6, 1, -1)
    sa, ca, ga, sb, cb, gb = (mod[:, 0].clone(), mod[:, 1].clone(), mod[:, 2].clone(), mod[:, 3].clone(), mod[:, 4].clone(), mod[:, 5].clone())
    h = _layernorm(x, axis=-1) * (1 + ca) + sa
    x = x + ga * _A_ref(h, A_wqkv, A_w_phi, A_wo)
    h = _layernorm(x, axis=-1) * (1 + cb) + sb
    x = x + gb * _B_ref(h, B_w_in, B_w_sp, B_b_sp, B_w_out)
    return x
```

```python
import re

TRANS = ('v_exp_f32', 'v_log_f32', 'v_rcp_f32', 'v_rsq_f32', 'v_sqrt_f32', 'v_sin_f32', 'v_cos_f32',
         'v_rcp_iflag_f32')
NO_DST_S = ('s_cmp', 's_cbranch', 's_waitcnt', 's_barrier', 's_nop', 's_setprio', 's_sleep', 's_endpgm',
            's_branch', 's_bitcmp', 's_setpc', 's_sendmsg')


def regs_of(tok):
    tok = tok.strip()
    tok = tok.lstrip('-')
    if tok.startswith('abs(') and tok.endswith(')'):
        tok = tok[4:-1]
    tok = tok.strip('|')
    m = re.fullmatch(r'([vas])(\d+)', tok)
    if m:
        return [(m.group(1), int(m.group(2)))]
    m = re.fullmatch(r'([vas])\[(\d+):(\d+)\]', tok)
    if m:
        return [(m.group(1), i) for i in range(int(m.group(2)), int(m.group(3)) + 1)]
    if tok in ('vcc', 'vcc_lo', 'vcc_hi'):
        return [('x', 'vcc')]
    if tok in ('exec', 'exec_lo', 'exec_hi'):
        return [('x', 'exec')]
    if tok == 'm0':
        return [('x', 'm0')]
    return []


class Ins:
    def __init__(self, text):
        self.text = text
        t = text.split(';')[0].strip()
        parts = t.split(None, 1)
        self.mn = parts[0]
        rest = parts[1] if len(parts) > 1 else ''
        ops, depth, cur = [], 0, ''
        for ch in rest:
            if ch in '[(':
                depth += 1
            if ch in '])':
                depth -= 1
            if ch == ',' and depth == 0:
                ops.append(cur.strip())
                cur = ''
            else:
                cur += ch
        if cur.strip():
            ops.append(cur.strip())
        self.mods = ''
        if ops:
            last = ops[-1].split(None, 1)
            ops[-1] = last[0]
            self.mods = last[1] if len(last) > 1 else ''
        self.ops = ops
        mn = self.mn
        self.valu = mn.startswith('v_') and not mn.startswith('v_mfma')
        self.mfma = mn.startswith('v_mfma')
        self.vmem = mn.startswith(('buffer_', 'global_', 'flat_'))
        self.ds = mn.startswith('ds_')
        self.smem = mn.startswith(('s_load', 's_memtime', 's_memrealtime', 's_buffer_load', 's_atomic'))
        self.salu = mn.startswith('s_') and not self.smem
        self.trans = any(mn.startswith(x) for x in TRANS)
        self.dpp = '_dpp' in mn or 'row_' in self.mods or 'quad_perm' in self.mods
        self.sdwa = '_sdwa' in mn
        self.dot = mn.startswith('v_dot')
        self.permlane = mn.startswith('v_permlane')
        self.readlane = mn.startswith(('v_readlane', 'v_readfirstlane'))
        self.passes = 0
        self.nstates = 1
        R = [regs_of(o) for o in ops]
        flat = lambda L: [r for x in L for r in x]
        self.w, self.r = [], []
        self.srcc = []
        self.srcab = []
        self.store_data = []
        if mn == 's_nop':
            self.nstates = int(ops[0], 0) + 1
        elif self.mfma:
            self.passes = 8 if '32x32x16' in mn else 4 if '16x16x32' in mn else None
            assert self.passes, mn
            self.w = R[0]
            self.srcab = R[1] + R[2]
            self.srcc = R[3]
            self.r = self.srcab + self.srcc
        elif self.valu:
            if self.permlane:
                self.w = R[0] + R[1]
                self.r = R[0] + R[1]
            elif mn == 'v_nop':
                pass
            else:
                self.w = list(R[0])
                self.r = flat(R[1:])
                if mn.startswith(('v_fmac', 'v_dot2c', 'v_mac', 'v_writelane', 'v_pk_fmac')) or self.dpp or self.sdwa:
                    self.r += R[0]
                if mn.startswith('v_cndmask') and len(ops) == 3:
                    self.r.append(('x', 'vcc'))
                if mn.startswith('v_cmpx'):
                    self.w.append(('x', 'exec'))
                assert not mn.startswith(('v_add_co', 'v_addc', 'v_sub_co', 'v_div_scale', 'v_mad_u64')), mn
        elif self.vmem:
            lds = re.search(r'\blds\b', self.mods) is not None
            if mn.startswith(('buffer_inv', 'buffer_wbl2')):
                pass
            elif 'load' in mn and not lds:
                self.w = R[0]
                self.r = flat(R[1:])
            elif 'load' in mn and lds:
                self.r = flat(R) + [('x', 'm0')]
            else:
                self.r = flat(R)
                if 'x3' in mn or 'x4' in mn:
                    self.store_data = R[0] if mn.startswith('buffer_') else R[1]
        elif self.ds:
            if mn.startswith(('ds_read', 'ds_bpermute', 'ds_permute', 'ds_swizzle')):
                self.w = R[0]
                self.r = flat(R[1:])
            else:
                self.r = flat(R)
        elif self.smem:
            self.w = R[0] if R else []
            self.r = flat(R[1:])
        elif self.salu:
            if mn.startswith(NO_DST_S):
                self.r = flat(R)
            else:
                self.w = list(R[0])
                self.r = flat(R[1:])
                if 'saveexec' in mn:
                    self.w.append(('x', 'exec'))
                    self.r.append(('x', 'exec'))
        self.ws = set(self.w)
        self.rs = set(self.r)


def need(p, c):
    n = 0
    pw = p.ws
    if p.mfma:
        big = p.passes == 8
        if c.mfma:
            if pw & set(c.srcab):
                n = max(n, 12 if big else 8)
            if pw & set(c.srcc):
                same = (c.srcc == p.w and c.passes == p.passes)
                if not same:
                    n = max(n, 10 if big else 6)
            if (pw & c.ws) and not (c.srcc == p.w and c.passes == p.passes):
                n = max(n, 10 if big else 6)
        elif c.valu:
            if pw & (c.rs | c.ws):
                n = max(n, 12 if big else 8)
            if set(p.srcc) & c.ws:
                n = max(n, 7 if big else 3)
        elif c.vmem or c.ds:
            if pw & (c.rs | c.ws):
                n = max(n, 12 if big else 8)
        return n
    if p.valu:
        vw = {r for r in pw if r[0] in 'va'}
        sw = {r for r in pw if r[0] == 's' or r == ('x', 'vcc')}
        if c.mfma and (vw & c.rs):
            n = max(n, 2)
        if c.mfma and ('x', 'exec') in pw:
            n = max(n, 4)
        if c.valu:
            if p.trans and (vw & c.rs) and not c.trans:
                n = max(n, 1)
            if p.trans and (vw & c.rs) and c.trans:
                n = max(n, 1)
            if c.dpp and (vw & c.rs):
                n = max(n, 2)
            if c.permlane and (vw & c.rs):
                n = max(n, 2)
            if c.readlane and (vw & c.rs):
                n = max(n, 1)
            if (p.sdwa or 'op_sel' in p.mods) and (vw & (c.rs | c.ws)):
                n = max(n, 1)
            if p.dot and (vw & (c.rs | c.ws)):
                same_acc = c.mn == p.mn and not (vw & set(sum([regs_of(o) for o in c.ops[1:3]], [])))
                if not same_acc:
                    n = max(n, 3)
            if sw & c.rs:
                n = max(n, 4 if (c.readlane or c.mn.startswith('v_writelane')) else 2)
            if ('x', 'exec') in pw:
                n = max(n, 5 if c.dpp else 4 if (c.readlane or c.permlane) else 2)
        if c.mfma and p.dot and (vw & c.rs):
            n = max(n, 3)
        if (c.vmem or c.ds) and p.dot and (vw & c.rs):
            n = max(n, 3)
        if (c.vmem or c.ds) and p.trans and (vw & c.rs):
            n = max(n, 1)
        if c.vmem and (sw & c.rs):
            n = max(n, 5)
        if c.salu and (sw & c.rs):
            n = max(n, 1)
        return n
    if p.salu:
        if ('x', 'm0') in pw and ('x', 'm0') in c.rs and (c.vmem or c.ds):
            n = max(n, 1)
        return n
    if p.vmem and p.store_data:
        if set(p.store_data) & c.ws:
            n = max(n, 2 if (c.valu or c.mfma) else 1)
    return n


class Prog:
    def __init__(self):
        self.items = []
        self.vm_ops = []
        self.vm_done = -1
        self.ds_ops = []
        self.ds_done = -1
        self.smem_pending = False
        self.cond = False
        self.uid = 0

    def I(self, text):
        for line in text.strip().split('\n'):
            line = line.strip()
            if not line:
                continue
            ins = Ins(line)
            assert not (ins.vmem or ins.ds or ins.smem), 'use vm/ds/sm: ' + line
            self.items.append(('i', ins))

    def T(self, text):
        self.items.append(('t', text))

    def C(self, text):
        self.items.append(('t', '    ; ' + text))

    def L(self, name):
        self.items.append(('l', name))

    def newlabel(self, base):
        self.uid += 1
        return f'L_{base}_{self.uid}'

    def vm(self, text, count=True):
        ins = Ins(text.strip())
        assert ins.vmem, text
        self.items.append(('i', ins))
        if not count:
            return None
        self.vm_ops.append(self.cond)
        return len(self.vm_ops) - 1

    def ds(self, text, count=True):
        ins = Ins(text.strip())
        assert ins.ds, text
        self.items.append(('i', ins))
        if not count:
            return None
        self.ds_ops.append(self.cond)
        return len(self.ds_ops) - 1

    def sm(self, text):
        ins = Ins(text.strip())
        assert ins.smem, text
        self.items.append(('i', ins))
        self.smem_pending = True

    def _n(self, ops, t):
        return sum(1 for c in ops[t + 1:] if not c)

    def wait(self, vm=None, ds=None, force=False):
        parts = []
        if vm is not None and (vm > self.vm_done or force):
            n = self._n(self.vm_ops, vm)
            if n < 63:
                parts.append(f'vmcnt({n})')
            if not self.cond:
                self.vm_done = max(self.vm_done, vm)
        if ds is not None and (ds > self.ds_done or force):
            n = self._n(self.ds_ops, ds)
            if self.smem_pending:
                n = 0
            parts.append(f'lgkmcnt({min(n, 15)})')
            if not self.cond:
                self.ds_done = max(self.ds_done, ds if n > 0 else len(self.ds_ops) - 1)
                if n == 0:
                    self.smem_pending = False
        if parts:
            self.I('s_waitcnt ' + ' '.join(parts))

    def wait_vm_all(self):
        self.I('s_waitcnt vmcnt(0)')
        if not self.cond:
            self.vm_done = len(self.vm_ops) - 1

    def wait_lgkm_all(self):
        self.I('s_waitcnt lgkmcnt(0)')
        if not self.cond:
            self.ds_done = len(self.ds_ops) - 1
            self.smem_pending = False

    def last_vm(self):
        return len(self.vm_ops) - 1

    def last_ds(self):
        return len(self.ds_ops) - 1

    def render(self):
        out = []
        hist = []
        nnop = 0
        for kind, x in self.items:
            if kind == 't':
                out.append(x)
                continue
            if kind == 'l':
                out.append(x + ':')
                continue
            req = 0
            dist = 0
            for p in reversed(hist):
                if dist >= 20:
                    break
                n = need(p, x)
                if n > dist:
                    req = max(req, n - dist)
                dist += p.nstates
            while req > 0:
                k = min(req, 16)
                nop = Ins(f's_nop {k - 1}')
                hist.append(nop)
                out.append('    ' + nop.text)
                nnop += 1
                req -= k
            hist.append(x)
            if len(hist) > 40:
                hist = hist[-30:]
            out.append('    ' + x.text)
        self.nnop = nnop
        return '\n'.join(out) + '\n'


def vr(base, n=1, k='v'):
    return f'{k}{base}' if n == 1 else f'{k}[{base}:{base + n - 1}]'


def ar(base, n=1):
    return vr(base, n, 'a')


def sr(base, n=1):
    return vr(base, n, 's')
```

```python
WS_EPOCH = 0
F_HELLO = 0x1000
F_W1 = 0x1400
F_WO = 0x1C00
F_WIN = 0x2000
F_WOUT = 0x2400
F_KV = 0x2800
F_Z2 = 0x3000
F_M2 = 0x3400
F_WS = 0x3800
F_H = 0x4000
F_O = 0x5000
F_H2 = 0x6000
F_U = 0x7000
MODG = 0x10000
M2 = 0x12000
ST2 = 0x20000
ST3 = 0x60000
STAMPS = 0xA0000
HF = 0x100000
W1M = 0x400000
W1T = 0x600000
WOF = 0x700000
WOUTF = 0x800000
W2F = 0x900000
KVP = 0xB00000
OF = 0xD00000
H2F = 0x1000000
Z2F = 0x1300000
UF = 0x1600000
WSF = 0x1900000
DBGX = 0x2100000
WS_USED = 0x2800000
OOB = 0x40000000

L_STG_W1 = 0x1E000
L_STG_WO = 0x21000
L_PHS = 0x1E000
L_SCR_G1 = 0x26000
L_SCR_LN = 0x26100
L_SCR_G2 = 0x26200
L_WPH = 0x26400
L_KVR = 0x26400
L_ZERO = 0x27400
LDS_BYTES = 0x28000
```

```python
import sys
sys.path.insert(0, 'gen')
from asmlib import *
from layout import *

KNAME = 'adaLN_cond__linear_kernel_hedgehog__mixer_gmlp__prompt_kernel'


class Opt:
    local = True
    stamps = False
    stop = None


S_WS = 4
SA, SB = 8, 12
P_X, P_WQKV, P_WPHI, P_WO, P_WIN, P_WSP, P_BSP = 16, 18, 20, 22, 26, 28, 30
P_WOUT, P_C, P_WMOD, P_OUT, P_DBG, P_WS = 32, 34, 36, 38, 40, 42
sTAG, sROLE, sW, sX, sI, sR, sC, sRB, sJ, sMODE = 44, 46, 47, 48, 49, 50, 51, 52, 53, 54
T0, T1, T2, T3, T4, T5, T6, T7, T8 = 55, 56, 57, 58, 59, 60, 61, 62, 63
PB = 64
sK2, sT9, sSPIN, sT10 = 96, 97, 100, 101
sCA = 24
sM = 98

WS = f's[{S_WS}:{S_WS + 3}]'
vL16, vLANE, vSTAMP = 1, 2, 3

LOG2E = 1.4426950408889634


def f2u(x):
    import struct
    return struct.unpack('<I', struct.pack('<f', x))[0]


class Gen:
    def __init__(self, opt):
        self.o = opt
        self.p = Prog()
        self.ool = []
        self.nstamp = 0
        self.stamp_names = []

    def srd(self, q, ptr, nbytes):
        self.p.I(f's_mov_b32 s{q}, s{ptr}\ns_mov_b32 s{q + 1}, s{ptr + 1}\ns_mov_b32 s{q + 2}, {nbytes}\n'
                 f's_mov_b32 s{q + 3}, s{sK2}')
        return f's[{q}:{q + 3}]'

    def stamp(self, name):
        if not self.o.stamps:
            return
        p = self.p
        p.sm(f's_memrealtime s[{sM}:{sM + 1}]')
        p.wait_lgkm_all()
        p.I(f'v_writelane_b32 v{vSTAMP}, s{sM}, {self.nstamp}')
        self.stamp_names.append(name)
        self.nstamp += 1

    def spin_tail(self, loop, done):
        p = self.p
        p.I(f's_sub_u32 s{sSPIN}, s{sSPIN}, 1\ns_cbranch_scc0 {loop}\ns_mov_b32 s{sSPIN}, 0')
        p.L(done)

    def spoll(self, soff, loads, pairs, singles=()):
        p = self.p
        loop, done = p.newlabel('sp'), p.newlabel('spd')
        p.I(f's_add_u32 s{sM}, s{P_WS}, s{soff}\ns_addc_u32 s{sM + 1}, s{P_WS + 1}, 0')
        p.L(loop)
        for nd, dst, imm in loads:
            p.sm(f's_load_dwordx{nd} s[{dst}:{dst + nd - 1}], s[{sM}:{sM + 1}], {imm} glc')
        p.wait_lgkm_all()
        first = pairs[0]
        p.I(f's_xor_b64 s[{first}:{first + 1}], s[{first}:{first + 1}], s[{sTAG}:{sTAG + 1}]')
        for q in pairs[1:]:
            p.I(f's_xor_b64 s[{q}:{q + 1}], s[{q}:{q + 1}], s[{sTAG}:{sTAG + 1}]\n'
                f's_or_b64 s[{first}:{first + 1}], s[{first}:{first + 1}], s[{q}:{q + 1}]')
        for q in singles:
            p.I(f's_xor_b32 s{q}, s{q}, s{sTAG}\ns_or_b32 s{first}, s{first}, s{q}')
        p.I(f's_cmp_eq_u64 s[{first}:{first + 1}], 0\ns_cbranch_scc1 {done}')
        self.spin_tail(loop, done)

    def spoll_n(self, soff, n):
        loads, got = [], 0
        while got < n:
            nd = 16 if n - got > 8 else 8 if n - got > 4 else 4
            loads.append((nd, PB + got, got * 4))
            got += nd
        self.spoll(soff, loads, [PB + 2 * k for k in range(n // 2)])

    def vpoll(self, vaddr, vtmp, soff):
        p = self.p
        loop, done = p.newlabel('vp'), p.newlabel('vpd')
        p.L(loop)
        p.vm(f'buffer_load_dword v{vtmp}, v{vaddr}, {WS}, s{soff} offen sc1')
        p.wait_vm_all()
        p.I(f'v_cmp_ne_u32 vcc, s{sTAG}, v{vtmp}\ns_cmp_eq_u64 vcc, 0\ns_cbranch_scc1 {done}')
        self.spin_tail(loop, done)

    def lstores(self, texts):
        p = self.p
        if not self.o.local:
            return [p.vm(t + ' sc1') for t in texts][-1]
        lg, lb = p.newlabel('glob'), p.newlabel('back')
        p.I(f's_cmp_eq_u32 s{sMODE}, 0\ns_cbranch_scc1 {lg}')
        tok = [p.vm(t) for t in texts][-1]
        p.L(lb)
        self.ool.append((lg, lb, [t + ' sc1' for t in texts]))
        return tok

    def flag(self, soff, vtmp, local):
        p = self.p
        p.I(f'v_mov_b32 v{vtmp}, s{sTAG}\nv_mov_b32 v{vtmp + 1}, 0\ns_mov_b64 exec, 1')
        t = f'buffer_store_dword v{vtmp}, v{vtmp + 1}, {WS}, s{soff} offen'
        if local:
            self.lstores([t])
        else:
            p.vm(t + ' sc1')
        p.I('s_mov_b64 exec, -1')

    def wave0(self, dst, src):
        self.p.I(f's_cmp_eq_u32 s{sW}, 0\ns_cselect_b32 s{dst}, s{src}, {OOB}')

    def dma(self, soff, lds, n, extra=' sc1'):
        p = self.p
        p.I(f's_mov_b32 m0, s{lds}')
        tok = None
        for k in range(n):
            tok = p.vm(f'buffer_load_dwordx4 v{vL16}, {WS}, s{soff} offen offset:{1024 * k}{extra} lds')
        return tok

    def xreduce_sq(self, s, q, t):
        self.p.I(f'''v_permlane16_swap_b32 v{s}, v{q}
v_add_f32 v{s}, v{s}, v{q}
v_mov_b32 v{q}, v{s}
v_permlane32_swap_b32 v{s}, v{q}
v_add_f32 v{s}, v{s}, v{q}
v_mov_b32 v{t}, v{s}
v_permlane16_swap_b32 v{s}, v{t}''')

    def silu_pack(self, src, lo, hi, t):
        self.p.I(f'''v_lshlrev_b32 v{src}, 16, v{src}
v_mul_f32 v{t}, {hex(f2u(-LOG2E))}, v{src}
v_exp_f32 v{t}, v{t}
v_add_f32 v{t}, 1.0, v{t}
v_rcp_f32 v{t}, v{t}
v_mul_f32 v{t}, v{src}, v{t}
v_cvt_pk_bf16_f32 v{lo}, v{t}, 0
v_lshlrev_b32 v{hi}, 16, v{lo}''')

    def merge8(self, a):
        p = self.p
        for b in (a, a + 4):
            p.I(f'v_permlane32_swap_b32 v{b}, v{b + 2}\nv_permlane32_swap_b32 v{b + 1}, v{b + 3}')
        for b in (a, a + 4):
            p.I(f'v_add_f32 v{b}, v{b}, v{b + 2}\nv_add_f32 v{b + 1}, v{b + 1}, v{b + 3}')
        for b in (a, a + 4):
            p.I(f'v_permlane16_swap_b32 v{b}, v{b + 1}')
        for b in (a, a + 4):
            p.I(f'v_add_f32 v{b}, v{b}, v{b + 1}')

    def dpp_add(self, regs, ctrl):
        for r in regs:
            self.p.I(f'v_add_f32_dpp v{r}, v{r}, v{r} {ctrl} row_mask:0xf bank_mask:0xf')

    def unpack(self, dst, src, n):
        for k in range(n):
            self.p.I(f'v_lshlrev_b32 v{dst + 2 * k}, 16, v{src + k}\nv_and_b32 v{dst + 2 * k + 1}, 0xffff0000, v{src + k}')

    def round_add_round(self, a, sdelta, out):
        p = self.p
        p.I(f'v_cvt_pk_bf16_f32 v{out}, v{a}, v{a + 1}\nv_cvt_pk_bf16_f32 v{out + 1}, v{a + 2}, v{a + 3}')
        self.unpack(a, out, 2)
        for k in range(4):
            p.I(f'v_add_f32 v{a + k}, s{sdelta}, v{a + k}')
        p.I(f'v_cvt_pk_bf16_f32 v{out}, v{a}, v{a + 1}\nv_cvt_pk_bf16_f32 v{out + 1}, v{a + 2}, v{a + 3}')

    def stop_here(self, name):
        if self.o.stop == name:
            self.p.I('s_branch L_fin')
            return True
        return False

    def entry(self):
        p = self.p
        p.I('s_cmp_ge_u32 s2, 256\ns_cbranch_scc1 L_end')
        p.sm(f's_load_dwordx4 s[{P_DBG}:{P_DBG + 3}], s[0:1], 96')
        p.sm(f's_load_dwordx8 s[{P_WOUT}:{P_WOUT + 7}], s[0:1], 64')
        p.sm(f's_load_dwordx16 s[{P_X}:{P_X + 15}], s[0:1], 0')
        p.I(f'''s_and_b32 s{sX}, s2, 7
s_lshr_b32 s{sI}, s2, 3
s_lshl_b32 s3, s{sX}, 5
s_add_u32 s{sROLE}, s3, s{sI}
v_and_b32 v{vLANE}, 63, v0
v_lshrrev_b32 v4, 6, v0
v_lshlrev_b32 v{vL16}, 4, v{vLANE}
v_readfirstlane_b32 s{sW}, v4
s_mov_b32 s{sK2}, 0x20000
s_lshr_b32 s{T0}, s{sI}, 3
s_lshl_b32 s{T0}, s{T0}, 3
s_add_u32 s{T0}, s{T0}, s{sX}
s_and_b32 s{T1}, s{sI}, 7
s_lshl_b32 s{T2}, s{T0}, 3
s_add_u32 s{T2}, s{T2}, s{T1}
s_lshl_b32 s{T3}, s{T2}, 4
s_cmp_lt_u32 s{T0}, 20
s_cselect_b32 s{T3}, s{T3}, {OOB}
s_cselect_b32 s{sT9}, s{T2}, 0x1000000
s_add_u32 s{T4}, s{T3}, {256 * 7680}
s_add_u32 s{T5}, s{T3}, {512 * 7680}
v_mul_u32_u24 v5, 7680, v0
v_lshlrev_b32 v6, 1, v0''')
        p.wait_lgkm_all()
        p.sm(f's_load_dword s{sTAG}, s[{P_WS}:{P_WS + 1}], {WS_EPOCH}')
        a = self.srd(SA, P_WMOD, 640 * 7680)
        for k, so in enumerate((T3, T4, T5)):
            p.vm(f'buffer_load_dwordx4 v[{16 + 4 * k}:{19 + 4 * k}], v5, {a}, s{so} offen')
        b = self.srd(SB, P_C, 1280)
        for k in range(3):
            self.t_g1 = p.vm(f'buffer_load_ushort v{28 + k}, v6, {b}, 0 offen offset:{512 * k}')
        if self.o.stamps:
            p.I(f'v_mov_b32 v{vSTAMP}, 0')
        p.I(f'''s_getpc_b64 s[{sM}:{sM + 1}]
s_lshl_b32 s{T0}, s{sI}, 2
s_add_u32 s{T0}, s{T0}, s{sW}
s_and_b32 s{T0}, s{T0}, 7
s_lshl_b32 s{T0}, s{T0}, 13
v_lshlrev_b32 v7, 7, v{vLANE}
v_add_u32 v7, s{T0}, v7
v_min_u32 v7, (L_end-L_pc0), v7''')
        p.L('L_pc0')
        p.vm(f'global_load_dword v63, v7, s[{sM}:{sM + 1}]')
        p.I(f'''s_lshr_b32 s{sR}, s{sROLE}, 4
s_and_b32 s{sC}, s{sROLE}, 15
s_lshr_b32 s{sRB}, s{sROLE}, 3
s_and_b32 s{sJ}, s{sROLE}, 7
s_mov_b32 s{sSPIN}, 400000''')
        self.srd(S_WS, P_WS, WS_USED)
        xs = self.srd(SB, P_X, 2048 * 1280)
        p.I(f'''v_and_b32 v8, 7, v{vLANE}
v_lshrrev_b32 v9, 3, v0
v_mul_u32_u24 v10, 1280, v8
v_lshl_add_u32 v10, v9, 4, v10
s_mul_i32 s{T0}, s{sROLE}, {8 * 1280}
s_cmp_lt_u32 s{sW}, 2
s_cselect_b32 s{T1}, s{T0}, {OOB}''')
        for k in range(3):
            self.t_x = p.vm(f'buffer_load_dwordx4 v[{48 + 4 * k}:{51 + 4 * k}], v10, {xs}, s{T0 if k < 2 else T1} offen offset:{512 * k}')
        wq = self.srd(SA, P_WQKV, 640 * 3840)
        p.I(f'''v_and_b32 v11, 15, v{vLANE}
v_min_u32 v12, 14, v11
v_mul_u32_u24 v13, 13, v12
v_lshrrev_b32 v13, 6, v13
v_mul_u32_u24 v14, 1200, v13
v_lshl_add_u32 v14, v12, 4, v14
v_add_u32 v14, 1280, v14
v_subrev_u32 v15, 3840, v14
v_cmp_eq_u32 vcc, 2, v13
v_cndmask_b32 v14, v14, v15, vcc
v_lshrrev_b32 v15, 4, v0
v_mul_u32_u24 v15, 3840, v15
v_add_u32 v14, v14, v15
s_mul_i32 s{T0}, s{sR}, 5
s_lshr_b32 s{sT10}, s{T0}, 1
s_mul_i32 s{T0}, s{sT10}, {16 * 3840}
s_mul_i32 s{T1}, s{sC}, 80
s_add_u32 s{T0}, s{T0}, s{T1}
s_lshl_b32 s{T1}, s{sW}, 10
s_add_u32 s{T1}, s{T1}, {L_STG_W1}''')
        for k in range(3):
            p.I(f's_mov_b32 m0, s{T1}')
            p.vm(f'buffer_load_dwordx4 v14, {wq}, s{T0} offen lds')
            if k < 2:
                p.I(f's_add_u32 s{T0}, s{T0}, {16 * 3840}\ns_add_u32 s{T1}, s{T1}, 4096')
        wo = self.srd(SB, P_WO, 640 * 1280)
        p.I(f'''v_min_u32 v12, 9, v11
v_lshlrev_b32 v12, 4, v12
v_lshrrev_b32 v13, 4, v0
v_and_b32 v15, 7, v13
v_lshrrev_b32 v13, 3, v13
s_lshl_b32 s{T0}, s{sRB}, 2
s_mul_i32 s{T2}, s{sJ}, 160
s_cmp_lt_u32 s{sRB}, 20
s_cselect_b32 s{T2}, s{T2}, {OOB}
s_lshl_b32 s{T1}, s{sW}, 10
s_add_u32 s{T1}, s{T1}, {L_STG_WO}''')
        for k in range(2):
            p.I(f'''v_add_u32 v31, s{T0}, v13
v_mul_u32_u24 v32, 205, v31
v_lshrrev_b32 v32, 10, v32
v_mul_u32_u24 v33, 5, v32
v_sub_u32 v33, v31, v33
v_lshl_add_u32 v34, v33, 3, v15
v_add_u32 v35, 4, v34
v_cmp_lt_u32 vcc, 1, v33
v_cndmask_b32 v34, v34, v35, vcc
v_add_u32 v35, 16, v15
v_add_u32 v36, 32, v15
v_cmp_lt_u32 vcc, 3, v15
v_cndmask_b32 v35, v35, v36, vcc
v_cmp_eq_u32 vcc, 4, v33
v_cndmask_b32 v34, v34, v35, vcc
v_mul_u32_u24 v32, 40, v32
v_add_u32 v34, v34, v32
v_mul_u32_u24 v34, 1280, v34
v_add_u32 v34, v34, v12
s_mov_b32 m0, s{T1}''')
            p.vm(f'buffer_load_dwordx4 v34, {wo}, s{T2} offen lds')
            if k == 0:
                p.I(f's_add_u32 s{T0}, s{T0}, 2\ns_add_u32 s{T1}, s{T1}, 4096')
        wp = self.srd(SA, P_WPHI, 32 * 800)
        p.I(f'''v_lshlrev_b32 v31, 4, v0
v_min_u32 v31, 1584, v31
s_mul_i32 s{T0}, s{sC}, 1600
s_lshl_b32 s{T1}, s{sW}, 10
s_cmp_lt_u32 s{sW}, 2
s_cselect_b32 s{T1}, s{T1}, {L_PHS + 0x6000 - L_WPH}
s_add_u32 s{T1}, s{T1}, {L_WPH}
s_mov_b32 m0, s{T1}''')
        self.t_raw = p.vm(f'buffer_load_dwordx4 v31, {wp}, s{T0} offen lds')
        p.wait_lgkm_all()
        p.I(f'''s_mul_i32 s{sTAG}, s{sTAG}, 0x2c1b3c6d
s_add_u32 s{sTAG}, s{sTAG}, 0x297a2d39
s_mov_b32 s{sTAG + 1}, s{sTAG}
s_mov_b32 s{sMODE}, 0''')
        self.stamp('issued')
        if self.o.local:
            p.I(f'''s_getreg_b32 s{T0}, hwreg(HW_REG_XCC_ID, 0, 4)
s_lshl_b32 s{T1}, s{sX}, 7
s_lshl_b32 s{T2}, s{sI}, 2
s_add_u32 s{T1}, s{T1}, s{T2}
s_add_u32 s{T1}, s{T1}, {F_HELLO}
s_add_u32 s{sCA}, s{T0}, s{sTAG}
s_add_u32 s{sCA}, s{sCA}, 1''')
            self.wave0(T1, T1)
            p.I(f'v_mov_b32 v31, s{sCA}\nv_mov_b32 v32, 0\ns_mov_b64 exec, 1')
            p.vm(f'buffer_store_dword v31, v32, {WS}, s{T1} offen sc1')
            p.I('s_mov_b64 exec, -1')
        p.I(f'''v_mov_b32 v32, 0
v_mov_b32 v33, 0
v_lshlrev_b32 v31, 3, v0
v_add_u32 v31, {L_ZERO}, v31''')
        p.ds('ds_write_b64 v31, v[32:33]')

    def gemv1(self):
        p = self.p
        p.wait(vm=self.t_g1)
        for k in range(3):
            self.silu_pack(28 + k, 31 + 2 * k, 32 + 2 * k, 37)
        for n in range(8):
            p.I(f'v_mov_b32 v{40 + n}, 0')
        for k in range(3):
            for d in range(4):
                p.I(f'v_dot2c_f32_bf16 v{40 + 2 * d}, v{16 + 4 * k + d}, v{31 + 2 * k}\n'
                    f'v_dot2c_f32_bf16 v{41 + 2 * d}, v{16 + 4 * k + d}, v{32 + 2 * k}')
        self.merge8(40)
        for c in ('row_ror:8', 'row_ror:4', 'row_ror:2', 'row_ror:1'):
            self.dpp_add((40, 44), c)
        p.I(f'''v_lshrrev_b32 v31, 4, v{vLANE}
v_lshlrev_b32 v31, 2, v31
s_lshl_b32 s{T0}, s{sW}, 5
s_add_u32 s{T0}, s{T0}, {L_SCR_G1}
v_add_u32 v31, s{T0}, v31''')
        p.ds('ds_write_b32 v31, v40')
        p.ds('ds_write_b32 v31, v44 offset:16')
        p.I(f'''v_and_b32 v33, 1, v{vLANE}
v_lshlrev_b32 v33, 4, v33
v_add_u32 v32, {L_SCR_G1}, v33
s_cmp_ge_u32 s{sT9}, 80
s_cselect_b32 s{T1}, 1.0, 0
s_lshl_b32 s{T0}, s{sT9}, 5
s_add_u32 s{T0}, s{T0}, {MODG}''')
        self.wave0(T0, T0)
        p.wait_lgkm_all()
        p.I('s_barrier')
        for w in range(4):
            t = p.ds(f'ds_read_b128 v[{16 + 4 * w}:{19 + 4 * w}], v32 offset:{32 * w}')
        p.wait(ds=t)
        for d in range(4):
            p.I(f'v_add_f32 v{16 + d}, v{16 + d}, v{20 + d}\nv_add_f32 v{24 + d}, v{24 + d}, v{28 + d}')
        for d in range(4):
            p.I(f'v_add_f32 v{16 + d}, v{16 + d}, v{24 + d}')
        self.round_add_round(16, T1, 20)
        p.I(f'v_mov_b32 v22, s{sTAG}\nv_mov_b32 v23, 0\ns_mov_b64 exec, 3')
        p.vm(f'buffer_store_dwordx4 v[20:23], v33, {WS}, s{T0} offen sc1')
        p.I('s_mov_b64 exec, -1')
        self.stamp('mod_pub')

    def trbase16(self, dst, rowbytes, t):
        sh = rowbytes.bit_length() - 1
        self.p.I(f'''v_lshrrev_b32 v{dst}, 4, v{vLANE}
v_bfe_u32 v{t}, v{vLANE}, 2, 2
v_lshl_add_u32 v{dst}, v{dst}, 3, v{t}
v_lshlrev_b32 v{dst}, {sh}, v{dst}
v_and_b32 v{t}, 3, v{vLANE}''')

    def repack5(self, stg, dstbase, perj, nvalid, fr):
        p = self.p
        self.trbase16(31, 256, 32)
        p.I(f'''s_lshl_b32 s{T0}, s{sW}, 3
s_add_u32 s{T0}, s{T0}, {stg}
v_lshl_add_u32 v33, v32, 5, v31
v_add_u32 v33, s{T0}, v33
v_lshl_add_u32 v34, v32, 3, v31
v_add_u32 v34, {stg + 128}, v34
s_mul_i32 s{T0}, s{sJ}, {perj}
s_mul_i32 s{T1}, s{sRB}, 5120
s_add_u32 s{T0}, s{T0}, s{T1}
s_add_u32 s{T0}, s{T0}, {dstbase}
s_cmp_lt_u32 s{sRB}, {nvalid}
s_cselect_b32 s{T0}, s{T0}, {OOB}
s_lshl_b32 s{T1}, s{sW}, 10
s_add_u32 s{T1}, s{T1}, s{T0}
s_add_u32 s{T0}, s{T0}, 4096''')
        self.wave0(T0, T0)
        p.ds(f'ds_read_b64_tr_b16 v[{fr}:{fr + 1}], v33')
        t1 = p.ds(f'ds_read_b64_tr_b16 v[{fr + 2}:{fr + 3}], v33 offset:1024')
        p.ds(f'ds_read_b64_tr_b16 v[{fr + 4}:{fr + 5}], v34')
        t2 = p.ds(f'ds_read_b64_tr_b16 v[{fr + 6}:{fr + 7}], v34 offset:1024')
        p.wait(ds=t1)
        p.vm(f'buffer_store_dwordx4 v[{fr}:{fr + 3}], v{vL16}, {WS}, s{T1} offen sc1')
        p.wait(ds=t2)
        return p.vm(f'buffer_store_dwordx4 v[{fr + 4}:{fr + 7}], v{vL16}, {WS}, s{T0} offen sc1')

    def flag_ks(self, base, nvalid):
        self.p.I(f'''s_lshl_b32 s{T0}, s{sJ}, 7
s_lshl_b32 s{T1}, s{sRB}, 2
s_add_u32 s{T0}, s{T0}, s{T1}
s_add_u32 s{T0}, s{T0}, {base}
s_cmp_lt_u32 s{sRB}, {nvalid}
s_cselect_b32 s{T0}, s{T0}, {OOB}''')
        self.wave0(T0, T0)

    def repack_start(self):
        p = self.p
        p.I(f'''v_bfe_u32 v31, v{vLANE}, 4, 1
v_bfe_u32 v32, v{vLANE}, 1, 1
v_lshl_add_u32 v31, v31, 1, v32
v_lshlrev_b32 v31, 2, v31
v_and_b32 v32, 1, v{vLANE}
v_bfe_u32 v33, v{vLANE}, 2, 2
v_lshrrev_b32 v34, 5, v{vLANE}
v_lshl_add_u32 v35, v34, 3, v33
v_lshlrev_b32 v35, 8, v35
v_mul_u32_u24 v36, 40, v32
v_add_u32 v35, v35, v36''')
        p.I(f'''v_mul_u32_u24 v36, 800, v32
v_mul_u32_u24 v37, 40, v33
v_add_u32 v36, v36, v37
v_lshl_add_u32 v36, v31, 1, v36
v_add_u32 v36, {L_WPH}, v36
v_mov_b32 v39, {L_ZERO}
v_cmp_eq_u32 vcc, v32, v34
v_cndmask_b32 v37, v39, v36, vcc
v_add_u32 v38, 32, v37
v_cmp_eq_u32 vcc, 0, v31
v_cndmask_b32 v38, v39, v38, vcc''')
        for k in range(3):
            p.I(f'''s_mul_i32 s{T0}, s{sR}, 10
s_add_u32 s{T0}, s{T0}, s{sW}
s_add_u32 s{T0}, s{T0}, {4 * k}
s_lshr_b32 s{T1}, s{T0}, 2
s_and_b32 s{T0}, s{T0}, 3
s_lshl_b32 s{T2}, s{T0}, 4
v_add_u32 v40, s{T2}, v31
v_mul_u32_u24 v41, 13, v40
v_lshrrev_b32 v41, 8, v41
v_mul_u32_u24 v41, 40, v41
v_lshl_add_u32 v41, v40, 1, v41
s_sub_u32 s{T2}, s{T1}, s{sT10}
s_lshl_b32 s{T2}, s{T2}, 12
s_add_u32 s{T2}, s{T2}, {L_STG_W1}
v_add3_u32 v{42 + k}, v41, v35, s{T2}
s_mul_i32 s{T2}, s{T1}, 3
s_add_u32 s{T2}, s{T2}, s{T0}
s_lshl_b32 s{T2}, s{T2}, 10
s_mul_i32 s{T3}, s{sC}, 0x1e000
s_add_u32 s{T2}, s{T2}, s{T3}
s_add_u32 s{T2}, s{T2}, {W1M}
s_lshl_b32 s{T1}, s{T1}, 10
s_mul_i32 s{T3}, s{sC}, 0xa000
s_add_u32 s{T1}, s{T1}, s{T3}
s_add_u32 s{T1}, s{T1}, {W1T}
s_cmp_lt_u32 s{T0}, 3
s_cselect_b32 s{T6 + k}, s{T2}, s{T1}''')
        p.I(f's_cmp_lt_u32 s{sW}, 2\ns_cselect_b32 s{T8}, s{T8}, {OOB}')
        p.wait(vm=self.t_raw)
        p.wait_lgkm_all()
        p.I('s_barrier')
        self.stamp('raw_in')
        toks = []
        for k in range(3):
            p.ds(f'ds_read_b64_tr_b16 v[{180 + 4 * k}:{181 + 4 * k}], v{42 + k}')
            toks.append(p.ds(f'ds_read_b64_tr_b16 v[{182 + 4 * k}:{183 + 4 * k}], v{42 + k} offset:1024'))
        for k in range(3):
            p.wait(ds=toks[k])
            p.vm(f'buffer_store_dwordx4 v[{180 + 4 * k}:{183 + 4 * k}], v{vL16}, {WS}, s{T6 + k} offen sc1')
        for mt in range(2):
            for kap in range(3):
                fr = 232 + 12 * mt + 4 * kap
                p.ds(f'ds_read_b64_tr_b16 v[{fr}:{fr + 1}], v{37 + mt} offset:{320 * kap}')
                if kap < 2:
                    p.ds(f'ds_read_b64_tr_b16 v[{fr + 2}:{fr + 3}], v{37 + mt} offset:{320 * kap + 160}')
                else:
                    p.I(f'v_mov_b32 v{fr + 2}, 0\nv_mov_b32 v{fr + 3}, 0')
        self.t_rp = self.repack5(L_STG_WO, WOF, 0x19000, 20, 192)

    def ln_stats(self):
        p = self.p
        p.I('v_mov_b32 v40, 0\nv_mov_b32 v41, 0\nv_mov_b32 v42, 0x3f803f80')
        for k in range(12):
            p.I(f'v_dot2c_f32_bf16 v40, v{48 + k}, v42\nv_dot2c_f32_bf16 v41, v{48 + k}, v{48 + k}')
        self.dpp_add((40, 41), 'row_ror:8')
        p.I(f'''v_permlane16_swap_b32 v40, v41
v_add_f32 v40, v40, v41
v_mov_b32 v41, v40
v_permlane32_swap_b32 v40, v41
v_add_f32 v40, v40, v41
v_bfe_u32 v42, v{vLANE}, 4, 1
v_lshlrev_b32 v42, 5, v42
v_lshl_add_u32 v42, v8, 2, v42
s_lshl_b32 s{T0}, s{sW}, 6
s_add_u32 s{T0}, s{T0}, {L_SCR_LN}
v_add_u32 v42, s{T0}, v42''')
        p.ds('ds_write_b32 v42, v40')
        p.wait(vm=self.t_rp)
        p.wait_lgkm_all()
        p.I('s_barrier')
        p.I(f'''s_lshl_b32 s{T0}, s{sC}, 7
s_lshl_b32 s{T1}, s{sR}, 2
s_add_u32 s{T0}, s{T0}, s{T1}
s_add_u32 s{T0}, s{T0}, {F_W1}''')
        self.wave0(T0, T0)
        self.flag(T0, 44, False)
        self.flag_ks(F_WO, 20)
        self.flag(T0, 44, False)
        self.stamp('w1_pub')
        p.I(f'v_lshlrev_b32 v42, 2, v8\nv_add_u32 v42, {L_SCR_LN}, v42')
        for w in range(4):
            t = p.ds(f'ds_read2_b32 v[{16 + 2 * w}:{17 + 2 * w}], v42 offset0:{16 * w} offset1:{16 * w + 8}')
        self.unpack(96, 48, 12)
        p.wait(ds=t)
        p.I(f'''v_add_f32 v16, v16, v18
v_add_f32 v17, v17, v19
v_add_f32 v20, v20, v22
v_add_f32 v21, v21, v23
v_add_f32 v16, v16, v20
v_add_f32 v17, v17, v21
v_mul_f32 v16, {hex(f2u(1 / 640))}, v16
v_mul_f32 v18, v16, v16
v_fma_f32 v17, v17, s{T2}, -v18'''.replace(f'v_fma_f32 v17, v17, s{T2}, -v18',
                                          f's_mov_b32 s{T2}, {hex(f2u(1 / 640))}\nv_fma_f32 v17, v17, s{T2}, -v18'))
        p.I(f'''v_max_f32 v17, 0, v17
v_add_f32 v17, {hex(f2u(1e-5))}, v17
v_rsq_f32 v17, v17
v_mul_f32 v16, v16, v17''')
        for e in range(24):
            p.I(f'v_fma_f32 v{96 + e}, v{96 + e}, v17, -v16')
        for e in range(24):
            if e % 2 == 0:
                p.I(f'v_cvt_pk_bf16_f32 v{64 + e}, v{96 + e}, 0')
            else:
                p.I(f'v_cvt_pk_bf16_f32 v{64 + e}, 0, v{96 + e}')

    def pretouch(self, texts):
        if self.o.local:
            for t in texts:
                self.p.vm(t)

    def mode_check(self):
        if not self.o.local:
            return
        p = self.p
        loop, done = p.newlabel('hl'), p.newlabel('hld')
        p.I(f'''v_and_b32 v40, 31, v{vLANE}
v_lshlrev_b32 v40, 2, v40
s_lshl_b32 s{T0}, s{sX}, 7
s_add_u32 s{T0}, s{T0}, {F_HELLO}
s_add_u32 s{T1}, s{sTAG}, 1''')
        p.L(loop)
        p.vm(f'buffer_load_dword v41, v40, {WS}, s{T0} offen sc1')
        p.wait_vm_all()
        p.I(f'''v_subrev_u32 v42, s{T1}, v41
v_cmp_lt_u32 vcc, 15, v42
s_cmp_eq_u64 vcc, 0
s_cbranch_scc1 {done}''')
        self.spin_tail(loop, done)
        p.I(f'''v_cmp_ne_u32 vcc, s{sCA}, v41
s_cmp_eq_u64 vcc, 0
s_cselect_b32 s{sMODE}, 1, 0''')

    def make_h(self):
        p = self.p
        p.I(f'''v_lshlrev_b32 v12, 9, v9
v_lshl_add_u32 v12, v8, 4, v12
s_lshr_b32 s{T3}, s{sROLE}, 2
s_mul_i32 s{T3}, s{T3}, 40960
s_and_b32 s{T4}, s{sROLE}, 3
s_lshl_b32 s{T4}, s{T4}, 7
s_add_u32 s{T3}, s{T3}, s{T4}
s_add_u32 s{T3}, s{T3}, {HF}
s_add_u32 s{T4}, s{T3}, 16384
s_add_u32 s{T5}, s{T3}, 32768
s_cmp_lt_u32 s{sW}, 2
s_cselect_b32 s{T5}, s{T5}, {OOB}''')
        if self.o.local:
            for so in (T3, T4, T5):
                p.vm(f'buffer_load_dword v63, v12, {WS}, s{so} offen sc1')
            p.I(f'''v_lshrrev_b32 v40, 4, v{vLANE}
v_lshlrev_b32 v40, 12, v40
v_mov_b32 v41, s{sRB}
v_lshl_add_u32 v41, v41, 7, v40
v_mov_b32 v42, s{sR}
v_lshlrev_b32 v43, 7, v42
v_lshl_add_u32 v42, v42, 8, v40
v_and_b32 v40, 1, v{vLANE}
v_lshl_add_u32 v42, v40, 7, v42
v_cmp_gt_u32 vcc, 32, v{vLANE}
v_cndmask_b32 v41, v41, v42, vcc
v_cmp_gt_u32 vcc, 16, v{vLANE}
v_cndmask_b32 v41, v41, v43, vcc
s_mov_b32 s{T0}, {F_H}''')
            p.vm(f'buffer_load_dword v63, v41, {WS}, s{T0} offen sc1')
        self.mode_check()
        self.stamp('ln_done')
        p.I(f'''v_lshlrev_b32 v13, 5, v9
s_mov_b32 s{T0}, {MODG}
s_mov_b32 s{T1}, {MODG + 2560}
s_cmp_lt_u32 s{sW}, 2
s_cselect_b32 s{T2}, 2048, 0
s_add_u32 s{T7}, s{T2}, s{T1}
s_add_u32 s{T2}, s{T2}, s{T0}''')
        loop, done = p.newlabel('mg'), p.newlabel('mgd')
        p.L(loop)
        for k in range(3):
            for v, (sa, sb) in enumerate(((T0, T2), (T1, T7))):
                for h in range(2):
                    r = 96 + 16 * k + 8 * v + 4 * h
                    so, im = (sa, 1024 * k + 16 * h) if k < 2 else (sb, 16 * h)
                    p.vm(f'buffer_load_dwordx4 v[{r}:{r + 3}], v13, {WS}, s{so} offen offset:{im} sc1')
        p.I(f'v_mov_b32 v40, 0\nv_mov_b32 v41, s{sTAG}')
        p.wait_vm_all()
        for n in range(12):
            p.I(f'v_bitop3_b32 v40, v40, v{98 + 4 * n}, v41 bitop3:0xf6')
        p.I(f'v_cmp_ne_u32 vcc, 0, v40\ns_cmp_eq_u64 vcc, 0\ns_cbranch_scc1 {done}')
        self.spin_tail(loop, done)
        self.stamp('mod_in')
        for k in range(3):
            for h in range(2):
                self.unpack(144 + 8 * k + 4 * h, 96 + 16 * k + 4 * h, 2)
            for e in range(8):
                p.I(f'v_dot2c_f32_bf16 v{144 + 8 * k + e}, v{64 + 8 * k + e}, v{96 + 16 * k + 8 + 4 * (e >> 2) + ((e >> 1) & 1)}')
        for k in range(3):
            for d in range(4):
                p.I(f'v_cvt_pk_bf16_f32 v{168 + 4 * k + d}, v{144 + 8 * k + 2 * d}, v{145 + 8 * k + 2 * d}')
        t = self.lstores([f'buffer_store_dwordx4 v[{168 + 4 * k}:{171 + 4 * k}], v12, {WS}, s{so} offen'
                          for k, so in enumerate((T3, T4, T5))])
        p.I(f'''s_lshl_b32 s{T0}, s{sR}, 7
s_lshl_b32 s{T1}, s{sC}, 2
s_add_u32 s{T0}, s{T0}, s{T1}
s_add_u32 s{T0}, s{T0}, {F_H}''')
        self.wave0(T0, T0)
        p.wait(vm=t)
        p.I('s_barrier')
        self.flag(T0, 44, True)
        self.stamp('h_pub')

    def raw_loads(self):
        p = self.p
        ops = []
        wi = self.srd(SA, P_WIN, 640 * 3072)
        p.I(f'''v_and_b32 v4, 31, v{vLANE}
v_min_u32 v4, 23, v4
v_lshlrev_b32 v5, 4, v4
v_add_u32 v6, 1536, v5
v_subrev_u32 v5, 192, v5
v_cmp_gt_u32 vcc, 12, v4
v_cndmask_b32 v5, v5, v6, vcc
v_lshrrev_b32 v6, 5, v0
v_mul_u32_u24 v6, 3072, v6
v_add_u32 v5, v5, v6
s_mul_i32 s{T0}, s{sRB}, {32 * 3072}
s_mul_i32 s{T1}, s{sJ}, 192
s_add_u32 s{T0}, s{T0}, s{T1}
s_cmp_lt_u32 s{sRB}, 20
s_cselect_b32 s{PB}, s{T0}, {OOB}''')
        for k in range(1, 4):
            p.I(f's_add_u32 s{PB + k}, s{PB}, {8 * 3072 * k}')
        for k in range(4):
            ops.append(f'buffer_load_dwordx4 a[{160 + 4 * k}:{163 + 4 * k}], v5, {wi}, s{PB + k} offen')
        wu = self.srd(SB, P_WOUT, 768 * 1280)
        p.I(f'''v_and_b32 v4, 15, v{vLANE}
v_min_u32 v4, 9, v4
v_lshrrev_b32 v6, 4, v0
v_mul_u32_u24 v6, 1280, v6
v_lshl_add_u32 v6, v4, 4, v6
s_mul_i32 s{T0}, s{sRB}, {32 * 1280}
s_mul_i32 s{T1}, s{sJ}, 160
s_add_u32 s{T0}, s{T0}, s{T1}
s_cmp_lt_u32 s{sRB}, 24
s_cselect_b32 s{PB + 4}, s{T0}, {OOB}
s_add_u32 s{PB + 5}, s{PB + 4}, {16 * 1280}''')
        for k in range(2):
            ops.append(f'buffer_load_dwordx4 a[{176 + 4 * k}:{179 + 4 * k}], v6, {wu}, s{PB + 4 + k} offen')
        wm = self.srd(PB + 12, P_WMOD, 640 * 7680)
        cs = self.srd(PB + 16, P_C, 1280)
        p.I(f'''v_lshrrev_b32 v7, 1, v0
v_lshlrev_b32 v8, 1, v7
v_mul_u32_u24 v7, 7680, v7
v_and_b32 v4, 1, v0
v_lshl_add_u32 v7, v4, 4, v7
s_mul_i32 s{T0}, s{sX}, 20
s_add_u32 s{sT9}, s{T0}, s{sI}
s_lshl_b32 s{T0}, s{sT9}, 5
s_add_u32 s{T0}, s{T0}, 2560
s_cmp_lt_u32 s{sI}, 20
s_cselect_b32 s{PB + 6}, s{T0}, {OOB}''')
        for k in range(1, 5):
            p.I(f's_add_u32 s{PB + 6 + k}, s{PB + 6}, {128 * 7680 * k}')
        for k in range(5):
            ops.append(f'buffer_load_dwordx4 a[{184 + 4 * k}:{187 + 4 * k}], v7, {wm}, s{PB + 6 + k} offen')
        for k in range(5):
            ops.append(f'buffer_load_ushort a{204 + k}, v8, {cs}, 0 offen offset:{256 * k}')
        ws_ = self.srd(PB + 20, P_WSP, 2048 * 4096)
        p.I(f'''v_and_b32 v9, 31, v{vLANE}
v_lshlrev_b32 v9, 12, v9
v_lshrrev_b32 v4, 5, v{vLANE}
v_lshl_add_u32 v9, v4, 4, v9
s_lshl_b32 s{T0}, s{sRB}, 18
s_lshl_b32 s{T1}, s{sJ}, 9
s_add_u32 s{T0}, s{T0}, s{T1}
s_lshl_b32 s{T1}, s{sW}, 7
s_add_u32 s{PB + 24}, s{T0}, s{T1}
s_add_u32 s{PB + 25}, s{PB + 24}, {32 * 4096}''')
        for ks in range(4):
            for tt in range(2):
                r = 212 + 8 * ks + 4 * tt
                ops.append(f'buffer_load_dwordx4 a[{r}:{r + 3}], v9, {ws_}, s{PB + 24 + tt} offen offset:{32 * ks}')
        return ops

    def p1_main(self):
        p = self.p
        p.I(f's_lshl_b32 s{T0}, s{sC}, 7\ns_add_u32 s{T0}, s{T0}, {F_W1}')
        self.spoll_n(T0, 16)
        self.stamp('w1_in')
        p.I(f'''s_mul_i32 s{T7}, s{sC}, 0x1e000
s_mul_i32 s{T8}, s{sW}, 3072
s_add_u32 s{T7}, s{T7}, s{T8}
s_add_u32 s{T7}, s{T7}, {W1M}''')
        chunk_tok = []

        def issue_chunk():
            chunk_tok.append(self.dma(T7, T8, 3))
            p.I(f's_add_u32 s{T7}, s{T7}, 12288\ns_add_u32 s{T8}, s{T8}, 12288')
        LA_C, LA_H = 3, 12
        for _ in range(LA_C):
            issue_chunk()
        raw = self.raw_loads()
        p.I(f'''v_and_b32 v10, 3, v{vLANE}
v_lshlrev_b32 v10, 2, v10
s_lshl_b32 s{T0}, s{sR}, 7
s_lshl_b32 s{T1}, s{sW}, 4
s_add_u32 s{T0}, s{T0}, s{T1}
s_add_u32 s{T0}, s{T0}, {F_H}
s_lshl_b32 s{T6}, s{sR}, 2
s_add_u32 s{T6}, s{T6}, s{sW}
s_mul_i32 s{T6}, s{T6}, 40960
s_add_u32 s{T6}, s{T6}, {HF}
v_add_u32 v11, 0x10000, v{vL16}''')
        self.vpoll(10, 63, T0)
        self.stamp('h_in')
        htok = []

        def issue_h():
            ks = len(htok)
            htok.append(p.vm(f'buffer_load_dwordx4 a[{4 * ks}:{4 * ks + 3}], v{vL16}, {WS}, s{T6} offen offset:{1024 * (ks & 3)} sc1'))
            if ks & 3 == 3:
                p.I(f's_add_u32 s{T6}, s{T6}, 4096')
        for _ in range(LA_H):
            issue_h()

        def rd(ks):
            t = None
            for T in range(3):
                off = (ks * 3 + T) * 1024
                b, off = (vL16, off) if off < 65536 else (11, off - 65536)
                r = 128 + 12 * (ks & 1) + 4 * T
                t = p.ds(f'ds_read_b128 v[{r}:{r + 3}], v{b} offset:{off}')
            return t
        p.I('s_barrier')
        nxt = rd(0)
        for ks in range(40):
            cur = nxt
            if ks + 1 < 40:
                if (ks + 1) % 4 == 0 and (ks + 1) // 4 >= LA_C:
                    p.wait(vm=chunk_tok[(ks + 1) // 4])
                    p.I('s_barrier')
                nxt = rd(ks + 1)
            if ks % 4 == 0 and len(chunk_tok) < 10:
                issue_chunk()
            if len(htok) < 40:
                issue_h()
            elif raw:
                for _ in range(2):
                    if raw:
                        self.t_rawp1 = p.vm(raw.pop(0))
            p.wait(vm=htok[ks], ds=cur)
            for T in range(3):
                r = 128 + 12 * (ks & 1) + 4 * T
                acc = vr(64 + 16 * T, 16)
                p.I(f'v_mfma_f32_32x32x16_bf16 {acc}, v[{r}:{r + 3}], a[{4 * ks}:{4 * ks + 3}], {acc if ks else 0}')
        while raw:
            self.t_rawp1 = p.vm(raw.pop(0))
        self.stamp('p1_main')
        p.I(f'''s_barrier
s_mul_i32 s{T7}, s{sC}, 0xa000
s_mul_i32 s{T8}, s{sW}, 10240
s_add_u32 s{T7}, s{T7}, s{T8}
s_add_u32 s{T7}, s{T7}, {W1T}''')
        for n in (4, 4, 2):
            self.t_t3 = self.dma(T7, T8, n)
            p.I(f's_add_u32 s{T7}, s{T7}, 4096\ns_add_u32 s{T8}, s{T8}, 4096')

    def chain_softmax(self, src, out):
        p = self.p
        for k in range(10):
            p.I(f'v_cvt_pk_bf16_f32 v{164 + k}, v{src + 2 * k}, v{src + 2 * k + 1}')
        p.I('v_mov_b32 v174, 0\nv_mov_b32 v175, 0')
        for kap in range(3):
            for mt in range(2):
                acc = vr(176 + 16 * mt, 16)
                fr = 232 + 12 * mt + 4 * kap
                p.I(f'v_mfma_f32_32x32x16_bf16 {acc}, v[{fr}:{fr + 3}], v[{164 + 4 * kap}:{167 + 4 * kap}], {acc if kap else 0}')
        P = 176
        p.I(f's_mov_b32 s{sCA}, {hex(f2u(LOG2E))}\ns_mov_b32 s{sCA + 1}, s{sCA}')
        p.I(f'v_max3_f32 v196, v{P}, v{P + 1}, v{P + 2}\nv_min3_f32 v198, v{P}, v{P + 1}, v{P + 2}')
        for k in range(3, 19, 2):
            p.I(f'v_max3_f32 v196, v196, v{P + k}, v{P + k + 1}\nv_min3_f32 v198, v198, v{P + k}, v{P + k + 1}')
        p.I(f'''v_max_f32 v196, v196, v{P + 19}
v_min_f32 v198, v198, v{P + 19}
v_mul_f32 v196, {hex(f2u(-LOG2E))}, v196
v_mul_f32 v198, {hex(f2u(LOG2E))}, v198''')
        E = 128
        ca = f's[{sCA}:{sCA + 1}]'
        for k in range(10):
            p.I(f'v_pk_fma_f32 v[{E + 2 * k}:{E + 2 * k + 1}], v[{P + 2 * k}:{P + 2 * k + 1}], {ca}, v[196:197] op_sel_hi:[1,1,0]')
            p.I(f'v_pk_fma_f32 v[{P + 2 * k}:{P + 2 * k + 1}], v[{P + 2 * k}:{P + 2 * k + 1}], {ca}, v[198:199] op_sel_hi:[1,1,0] neg_lo:[1,0,0] neg_hi:[1,0,0]')
        for k in range(20):
            p.I(f'v_exp_f32 v{E + k}, v{E + k}\nv_exp_f32 v{P + k}, v{P + k}')
        p.I(f'v_pk_add_f32 v[200:201], v[{E}:{E + 1}], v[{E + 2}:{E + 3}]\nv_pk_add_f32 v[202:203], v[{P}:{P + 1}], v[{P + 2}:{P + 3}]')
        for k in range(2, 10):
            p.I(f'v_pk_add_f32 v[200:201], v[200:201], v[{E + 2 * k}:{E + 2 * k + 1}]\n'
                f'v_pk_add_f32 v[202:203], v[202:203], v[{P + 2 * k}:{P + 2 * k + 1}]')
        p.I('v_add_f32 v200, v200, v201\nv_add_f32 v202, v202, v203\nv_rcp_f32 v200, v200\nv_rcp_f32 v202, v202')
        for k in range(10):
            p.I(f'v_pk_mul_f32 v[{E + 2 * k}:{E + 2 * k + 1}], v[{E + 2 * k}:{E + 2 * k + 1}], v[200:201] op_sel_hi:[1,0]')
            p.I(f'v_pk_mul_f32 v[{P + 2 * k}:{P + 2 * k + 1}], v[{P + 2 * k}:{P + 2 * k + 1}], v[202:203] op_sel_hi:[1,0]')
        for k in range(10):
            p.I(f'v_cvt_pk_bf16_f32 v{out + k}, v{E + 2 * k}, v{E + 2 * k + 1}\n'
                f'v_cvt_pk_bf16_f32 v{out + 10 + k}, v{P + 2 * k}, v{P + 2 * k + 1}')

    def p1_kv(self):
        p = self.p
        for k in range(10):
            p.I(f'v_cvt_pk_bf16_f32 v{152 + k}, v{84 + 2 * k}, v{85 + 2 * k}')
        p.I('v_mov_b32 v162, 0x3f80\nv_mov_b32 v163, 0')
        self.chain_softmax(64, 208)
        p.I(f'''v_and_b32 v4, 31, v{vLANE}
v_lshrrev_b32 v5, 5, v{vLANE}
v_lshlrev_b32 v5, 14, v5
v_lshl_add_u32 v5, v4, 7, v5
s_lshl_b32 s{T0}, s{sW}, 12
s_add_u32 s{T0}, s{T0}, {L_PHS}
v_add_u32 v5, s{T0}, v5
v_bfe_u32 v6, v{vLANE}, 1, 1
v_bfe_u32 v7, v{vLANE}, 2, 1
v_lshl_add_u32 v6, v6, 1, v7
v_and_b32 v7, 1, v{vLANE}
v_lshl_add_u32 v6, v6, 1, v7
v_lshl_add_u32 v5, v6, 4, v5''')
        for ch in range(8):
            src = 208 + 4 * ch if ch < 5 else 152 + 4 * (ch - 5)
            if ch:
                p.I(f'v_xor_b32 v{6 + (ch & 1)}, {16 * ch}, v5')
            p.ds(f'ds_write_b128 v{6 + (ch & 1) if ch else 5}, v[{src}:{src + 3}]')
        p.I(f'''v_bfe_u32 v4, v{vLANE}, 2, 2
v_lshrrev_b32 v5, 5, v{vLANE}
v_lshl_add_u32 v5, v5, 3, v4
v_lshlrev_b32 v5, 7, v5
s_lshr_b32 s{T0}, s{sW}, 1
s_lshl_b32 s{T0}, s{T0}, 14
s_add_u32 s{T0}, s{T0}, {L_PHS}
v_add_u32 v5, s{T0}, v5
v_lshrrev_b32 v6, 1, v4
v_and_b32 v7, 1, v4
v_lshl_add_u32 v6, v6, 2, v7
v_bfe_u32 v7, v{vLANE}, 4, 1
v_and_b32 v8, 1, v{vLANE}
v_bfe_u32 v9, v{vLANE}, 1, 1
v_lshl_add_u32 v10, v7, 1, v8
s_and_b32 s{T1}, s{sW}, 1
s_lshl_b32 s{T1}, s{T1}, 2
v_add_u32 v10, s{T1}, v10
v_xor_b32 v10, v10, v6
v_lshlrev_b32 v10, 4, v10
v_lshl_add_u32 v10, v9, 3, v10
v_add_u32 v12, v5, v10
v_xor_b32 v10, 32, v10
v_add3_u32 v13, v5, v10, s{T2}
v_lshl_add_u32 v10, v7, 1, v9
v_add_u32 v10, 5, v10
v_min_u32 v10, 7, v10
v_xor_b32 v10, v10, v6
v_lshlrev_b32 v10, 4, v10
v_lshl_add_u32 v10, v8, 3, v10
v_add_u32 v14, v5, v10
v_xor_b32 v10, 32, v10
v_add3_u32 v15, v5, v10, s{T2}'''.replace(f'v_add_u32 v12, v5, v10', f's_mov_b32 s{T2}, 512\nv_add_u32 v12, v5, v10'))
        p.wait_lgkm_all()
        p.I('s_barrier')
        toks = []
        for ks in range(8):
            a, b = 128 + 8 * (ks & 3), 132 + 8 * (ks & 3)
            if ks >= 4:
                self.kv_mfma(ks - 4, toks)
            p.ds(f'ds_read_b64_tr_b16 v[{a}:{a + 1}], v12 offset:{2048 * ks}')
            p.ds(f'ds_read_b64_tr_b16 v[{a + 2}:{a + 3}], v13 offset:{2048 * ks}')
            p.ds(f'ds_read_b64_tr_b16 v[{b}:{b + 1}], v14 offset:{2048 * ks}')
            toks.append(p.ds(f'ds_read_b64_tr_b16 v[{b + 2}:{b + 3}], v15 offset:{2048 * ks}'))
        for ks in range(4, 8):
            self.kv_mfma(ks, toks)
        p.I(f'''v_and_b32 v4, 31, v{vLANE}
s_and_b32 s{T1}, s{sW}, 1
s_lshl_b32 s{T2}, s{T1}, 5
v_and_b32 v5, s{T2}, v{vLANE}
v_add_u32 v4, v4, v5
v_mov_b32 v5, {OOB}
v_cmp_lt_u32 vcc, 20, v4
v_cndmask_b32 v4, v{vL16}, v5, vcc
s_lshl_b32 s{T0}, s{sC}, 4
s_add_u32 s{T0}, s{T0}, s{sR}
s_mul_i32 s{T0}, s{T0}, 5120
s_lshr_b32 s{T2}, s{sW}, 1
s_mul_i32 s{T2}, s{T2}, 2560
s_add_u32 s{T0}, s{T0}, s{T2}
s_lshl_b32 s{T2}, s{T1}, 11
s_add_u32 s{T0}, s{T0}, s{T2}
s_add_u32 s{T0}, s{T0}, {KVP}
s_cmp_eq_u32 s{T1}, 0
s_cselect_b32 s{T1}, s{T0}, {OOB}''')
        for k in range(8):
            p.I(f'v_cvt_pk_bf16_f32 v{128 + k}, v{176 + 2 * k}, v{177 + 2 * k}')
        p.vm(f'buffer_store_dwordx4 v[128:131], v4, {WS}, s{T0} offen sc1')
        p.vm(f'buffer_store_dwordx4 v[132:135], v4, {WS}, s{T1} offen offset:1024 sc1')
        p.I(f'''s_lshl_b32 s{T0}, s{sRB}, 18
s_lshl_b32 s{T1}, s{sJ}, 15
s_add_u32 s{T0}, s{T0}, s{T1}
s_lshl_b32 s{T1}, s{sW}, 13
s_add_u32 s{T0}, s{T0}, s{T1}
s_add_u32 s{T0}, s{T0}, {WSF}
s_add_u32 s{T1}, s{T0}, 4096
s_lshl_b32 s{T2}, s{sC}, 7
s_lshl_b32 s{T3}, s{sR}, 2
s_add_u32 s{T2}, s{T2}, s{T3}
s_add_u32 s{T2}, s{T2}, {F_KV}''')
        self.wave0(T2, T2)
        p.wait_vm_all()
        p.I('s_barrier')
        self.flag(T2, 44, False)
        self.stamp('kv_pub')
        for n in range(8):
            self.t_wsst = p.vm(f'buffer_store_dwordx4 a[{212 + 4 * n}:{215 + 4 * n}], v{vL16}, {WS}, s{T0 if n < 4 else T1} offen offset:{1024 * (n & 3)} sc1')

    def kv_mfma(self, ks, toks):
        p = self.p
        a, b = 128 + 8 * (ks & 3), 132 + 8 * (ks & 3)
        p.wait(ds=toks[ks])
        p.I(f'v_mfma_f32_32x32x16_bf16 v[176:191], v[{a}:{a + 3}], v[{b}:{b + 3}], {"v[176:191]" if ks else 0}')

    def p1_q(self):
        p = self.p
        p.I(f's_lshl_b32 s{T0}, s{sJ}, 7\ns_add_u32 s{T0}, s{T0}, {F_WO}')
        self.spoll_n(T0, 20)
        p.I(f'''s_mul_i32 s{T7}, s{sJ}, 0x19000
s_mul_i32 s{T8}, s{sW}, 25600
s_add_u32 s{T7}, s{T7}, s{T8}
s_add_u32 s{T7}, s{T7}, {WOF}
s_add_u32 s{T8}, s{T8}, 40960''')
        groups = [4] * 6 + [1]

        def rd(ks):
            r = 128 + 4 * (ks & 3)
            return p.ds(f'ds_read_b128 v[{r}:{r + 3}], v{vL16} offset:{1024 * ks}')
        toks = [rd(0), rd(1), rd(2)]
        for ks in range(40):
            if ks + 3 < 40:
                toks.append(rd(ks + 3))
            if ks % 4 == 1 and groups:
                self.t_wo = self.dma(T7, T8, groups.pop(0))
                p.I(f's_add_u32 s{T7}, s{T7}, 4096\ns_add_u32 s{T8}, s{T8}, 4096')
            p.wait(ds=toks[ks])
            r = 128 + 4 * (ks & 3)
            p.I(f'v_mfma_f32_32x32x16_bf16 v[112:127], v[{r}:{r + 3}], a[{4 * ks}:{4 * ks + 3}], {"v[112:127]" if ks else 0}')
        self.stamp('t3_done')
        p.I(f'''s_barrier
v_lshlrev_b32 v4, 4, v0''')
        for k in range(4):
            p.ds(f'ds_write_b128 v4, a[{160 + 4 * k}:{163 + 4 * k}] offset:{4096 * k}')
        for k in range(2):
            p.ds(f'ds_write_b128 v4, a[{176 + 4 * k}:{179 + 4 * k}] offset:{16384 + 4096 * k}')
        self.chain_softmax(104, 208)
        self.stamp('q_done')

    def repack_mid(self):
        p = self.p
        for k in range(25):
            p.I(f'v_accvgpr_read_b32 v{64 + k}, a{184 + k}')
        for k in range(5):
            self.silu_pack(84 + k, 90 + 2 * k, 91 + 2 * k, 100)
        for n in range(8):
            p.I(f'v_mov_b32 v{40 + n}, 0')
        for k in range(5):
            for d in range(4):
                p.I(f'v_dot2c_f32_bf16 v{40 + 2 * d}, v{64 + 4 * k + d}, v{90 + 2 * k}\n'
                    f'v_dot2c_f32_bf16 v{41 + 2 * d}, v{64 + 4 * k + d}, v{91 + 2 * k}')
        self.merge8(40)
        for c in ('row_ror:8', 'row_ror:4', 'row_ror:2'):
            self.dpp_add((40, 44), c)
        p.I(f'''v_lshrrev_b32 v31, 4, v{vLANE}
v_and_b32 v32, 1, v{vLANE}
v_lshl_add_u32 v31, v32, 3, v31
v_lshlrev_b32 v31, 2, v31
s_lshl_b32 s{T0}, s{sW}, 6
s_add_u32 s{T0}, s{T0}, {L_SCR_G2}
v_add_u32 v31, s{T0}, v31''')
        p.ds('ds_write_b32 v31, v40')
        p.ds('ds_write_b32 v31, v44 offset:16')
        self.trbase16(31, 512, 32)
        p.I(f'''s_lshr_b32 s{T2}, s{sW}, 1
s_and_b32 s{T3}, s{sW}, 1
s_cmp_eq_u32 s{T2}, 0
s_cselect_b32 s{T4}, 8, 48
s_cselect_b32 s{T5}, 32, 8
s_cselect_b32 s{T6}, 0, 192
s_mul_i32 s{T1}, s{T5}, 3
s_mul_i32 s{T1}, s{T1}, s{T3}
s_add_u32 s{T6}, s{T6}, s{T1}
v_mul_lo_u32 v33, v32, s{T4}
v_add3_u32 v33, v33, v31, s{T6}
v_add_u32 v34, s{T5}, v33
v_add_u32 v35, s{T5}, v34
s_mul_i32 s{T0}, s{sJ}, 0x3c000
s_mul_i32 s{T1}, s{T2}, 0x1e000
s_add_u32 s{T0}, s{T0}, s{T1}
s_mul_i32 s{T1}, s{sRB}, 6144
s_add_u32 s{T0}, s{T0}, s{T1}
s_mul_i32 s{T1}, s{T3}, 3072
s_add_u32 s{T0}, s{T0}, s{T1}
s_add_u32 s{T0}, s{T0}, {W2F}
s_cmp_lt_u32 s{sRB}, 20
s_cselect_b32 s{T2}, s{T0}, {OOB}
v_and_b32 v36, 3, v{vLANE}
v_lshlrev_b32 v36, 4, v36
v_add_u32 v37, {L_SCR_G2}, v36''')
        p.wait_lgkm_all()
        p.I('s_barrier')
        toks = []
        for k in range(3):
            p.ds(f'ds_read_b64_tr_b16 v[{64 + 4 * k}:{65 + 4 * k}], v{33 + k}')
            toks.append(p.ds(f'ds_read_b64_tr_b16 v[{66 + 4 * k}:{67 + 4 * k}], v{33 + k} offset:2048'))
        for w in range(4):
            tg = p.ds(f'ds_read_b128 v[{16 + 4 * w}:{19 + 4 * w}], v37 offset:{64 * w}')
        for k in range(3):
            p.wait(ds=toks[k])
            p.vm(f'buffer_store_dwordx4 v[{64 + 4 * k}:{67 + 4 * k}], v{vL16}, {WS}, s{T2} offen offset:{1024 * k} sc1')
        p.I(f'''s_sub_u32 s{T0}, s{sT9}, 80
s_cmp_lt_u32 s{T0}, 40
s_cselect_b32 s{T3}, 1.0, 0
s_lshl_b32 s{T0}, s{sT9}, 5
s_add_u32 s{T0}, s{T0}, {M2}
s_cmp_lt_u32 s{sI}, 20
s_cselect_b32 s{T4}, s{T0}, {OOB}''')
        self.wave0(T4, T4)
        p.wait(ds=tg)
        for d in range(4):
            p.I(f'v_add_f32 v{16 + d}, v{16 + d}, v{20 + d}\nv_add_f32 v{24 + d}, v{24 + d}, v{28 + d}')
        for d in range(4):
            p.I(f'v_add_f32 v{16 + d}, v{16 + d}, v{24 + d}')
        self.round_add_round(16, T3, 20)
        p.I('v_lshrrev_b32 v36, 1, v36\ns_mov_b64 exec, 15')
        p.vm(f'buffer_store_dwordx2 v[20:21], v36, {WS}, s{T4} offen sc1')
        p.I('s_mov_b64 exec, -1')
        self.repack5(16384, WOUTF, 0x1e000, 24, 76)
        p.wait_vm_all()
        p.I('s_barrier')
        self.flag_ks(F_WIN, 20)
        self.flag(T0, 44, False)
        self.flag_ks(F_WOUT, 24)
        self.flag(T0, 44, False)
        p.I(f'''s_lshl_b32 s{T0}, s{sRB}, 5
s_lshl_b32 s{T1}, s{sJ}, 2
s_add_u32 s{T0}, s{T0}, s{T1}
s_add_u32 s{T0}, s{T0}, {F_WS}''')
        self.wave0(T0, T0)
        self.flag(T0, 44, False)
        p.I(f'''s_mul_i32 s{T0}, s{sT9}, 1639
s_lshr_b32 s{T0}, s{T0}, 16
s_mul_i32 s{T1}, s{T0}, 40
s_sub_u32 s{T1}, s{sT9}, s{T1}
s_mul_i32 s{T2}, s{T1}, 205
s_lshr_b32 s{T2}, s{T2}, 10
s_mul_i32 s{T3}, s{T2}, 5
s_sub_u32 s{T1}, s{T1}, s{T3}
s_lshl_b32 s{T0}, s{T0}, 5
s_lshl_b32 s{T2}, s{T2}, 7
s_lshl_b32 s{T1}, s{T1}, 2
s_add_u32 s{T0}, s{T0}, s{T1}
s_add_u32 s{T0}, s{T0}, s{T2}
s_add_u32 s{T0}, s{T0}, {F_M2}
s_cmp_lt_u32 s{sI}, 20
s_cselect_b32 s{T0}, s{T0}, {OOB}''')
        self.wave0(T0, T0)
        self.flag(T0, 44, False)
        self.stamp('rp_pub')

    def p1_o(self):
        p = self.p
        p.I(f'''v_mul_u32_u24 v4, 3121, v0
v_lshrrev_b32 v4, 16, v4
v_mul_u32_u24 v5, 21, v4
v_sub_u32 v5, v0, v5
v_lshlrev_b32 v5, 4, v5
v_lshl_add_u32 v6, v4, 9, v5
v_mul_u32_u24 v4, 384, v4
v_add3_u32 v7, v4, v5, s{T2}
v_mov_b32 v4, {OOB}
v_mov_b32 v5, {L_ZERO + 2048}
v_cmp_gt_u32 vcc, 210, v0
v_cndmask_b32 v6, v4, v6, vcc
v_cndmask_b32 v7, v5, v7, vcc
v_bfe_u32 v4, v{vLANE}, 3, 2
v_and_b32 v5, 3, v{vLANE}
v_lshl_add_u32 v4, v4, 2, v5
v_bfe_u32 v5, v{vLANE}, 2, 1
v_mul_u32_u24 v8, 1920, v5
v_lshl_add_u32 v8, v4, 4, v8
v_add_u32 v8, {L_KVR}, v8
v_lshrrev_b32 v9, 5, v{vLANE}
v_mov_b32 v10, {L_ZERO}
v_cmp_eq_u32 vcc, v5, v9
v_cndmask_b32 v8, v10, v8, vcc
v_add_u32 v11, 256, v8
v_cmp_ge_u32 vcc, 4, v4
v_cndmask_b32 v11, v10, v11, vcc
v_bfe_u32 v4, v{vLANE}, 4, 1
v_mul_u32_u24 v4, 20480, v4
v_and_b32 v5, 15, v{vLANE}
v_lshl_add_u32 v4, v5, 4, v4
v_lshl_add_u32 v12, v9, 9, v4
v_lshl_add_u32 v13, v9, 3, v4
s_lshl_b32 s{T5}, s{sR}, 2
s_add_u32 s{T5}, s{T5}, s{sW}
s_mul_i32 s{T5}, s{T5}, 40960
s_mul_i32 s{T1}, s{sC}, 1280
s_add_u32 s{T5}, s{T5}, s{T1}
s_add_u32 s{T5}, s{T5}, {OF}
s_mul_i32 s{T6}, s{sC}, {16 * 5120}
s_add_u32 s{T6}, s{T6}, {KVP}
s_lshl_b32 s{T0}, s{sC}, 7
s_add_u32 s{T0}, s{T0}, {F_KV}'''.replace('v_mul_u32_u24 v4, 384, v4', f's_mov_b32 s{T2}, {L_KVR}\nv_mul_u32_u24 v4, 384, v4'))
        self.pretouch([f'buffer_load_dword v63, v12, {WS}, s{T5} offen sc1',
                       f'buffer_load_dword v63, v12, {WS}, s{T5} offen offset:256 sc1',
                       f'buffer_load_dword v63, v13, {WS}, s{T5} offen offset:1024 sc1'])
        self.spoll_n(T0, 16)
        self.stamp('kv_in')
        toks = []
        for r in range(16):
            toks.append(p.vm(f'buffer_load_dwordx4 v[{64 + 4 * r}:{67 + 4 * r}], v6, {WS}, s{T6} offen sc1'))
            if r < 15:
                p.I(f's_add_u32 s{T6}, s{T6}, 5120')
        p.I('v_mov_b32 v38, 0x3f80\nv_mov_b32 v39, 1.0')
        for n in range(8):
            p.I(f'v_mov_b32 v{40 + n}, 0')
        for r in range(16):
            p.wait(vm=toks[r])
            for d in range(4):
                p.I(f'v_dot2c_f32_bf16 v{40 + 2 * d}, v{64 + 4 * r + d}, v38\nv_dot2c_f32_bf16 v{41 + 2 * d}, v{64 + 4 * r + d}, v39')
        for d in range(4):
            p.I(f'v_cvt_pk_bf16_f32 v{48 + d}, v{40 + 2 * d}, v{41 + 2 * d}')
        p.ds('ds_write_b128 v7, v[48:51]')
        p.wait_lgkm_all()
        p.I('s_barrier')
        toks = []
        for ks in range(5):
            p.ds(f'ds_read_b128 v[{64 + 8 * ks}:{67 + 8 * ks}], v8 offset:{384 * ks}')
            toks.append(p.ds(f'ds_read_b128 v[{68 + 8 * ks}:{71 + 8 * ks}], v11 offset:{384 * ks}'))
        for ks in range(5):
            p.wait(ds=toks[ks])
            for tp in range(2):
                acc = vr(128 + 16 * tp, 16)
                r = 64 + 8 * ks + 4 * tp
                p.I(f'v_mfma_f32_32x32x16_bf16 {acc}, v[{r}:{r + 3}], v[{208 + 4 * ks}:{211 + 4 * ks}], {acc if ks else 0}')
        p.I(f'''s_lshl_b32 s{T0}, s{sR}, 8
s_lshl_b32 s{T1}, s{sW}, 6
s_add_u32 s{T0}, s{T0}, s{T1}
s_lshl_b32 s{T1}, s{sC}, 2
s_add_u32 s{T0}, s{T0}, s{T1}
s_add_u32 s{T0}, s{T0}, {F_O}
v_add_f32 v148, {hex(f2u(1e-6))}, v148
v_rcp_f32 v148, v148''')
        for k in range(10):
            p.I(f'v_pk_mul_f32 v[{128 + 2 * k}:{129 + 2 * k}], v[{128 + 2 * k}:{129 + 2 * k}], v[148:149] op_sel_hi:[1,0]')
        for k in range(10):
            p.I(f'v_cvt_pk_bf16_f32 v{152 + k}, v{128 + 2 * k}, v{129 + 2 * k}')
        t = self.lstores([f'buffer_store_dwordx4 v[152:155], v12, {WS}, s{T5} offen',
                          f'buffer_store_dwordx4 v[156:159], v12, {WS}, s{T5} offen offset:256',
                          f'buffer_store_dwordx2 v[160:161], v13, {WS}, s{T5} offen offset:1024'])
        p.wait(vm=t)
        self.flag(T0, 44, True)
        self.stamp('o_pub')

    def wsp_begin(self):
        p = self.p
        p.I(f's_lshl_b32 s{T0}, s{sRB}, 5\ns_add_u32 s{T0}, s{T0}, {F_WS}')
        self.spoll_n(T0, 8)
        p.I(f'''s_lshl_b32 s{sT10}, s{sRB}, 18
s_lshl_b32 s{T0}, s{sW}, 16
s_add_u32 s{sT10}, s{sT10}, s{T0}
s_add_u32 s{sT10}, s{sT10}, {WSF}''')
        self.nws = 0

    def wsp_load(self, n):
        p = self.p
        for _ in range(n):
            if self.nws >= 64:
                return
            k = self.nws
            self.t_ws = p.vm(f'buffer_load_dwordx4 a[{4 * k}:{4 * k + 3}], v{vL16}, {WS}, s{sT10} offen offset:{1024 * (k & 3)} sc1')
            if k & 3 == 3:
                p.I(f's_add_u32 s{sT10}, s{sT10}, 4096')
            self.nws += 1

    def dma_range(self, src0, n0, n1, lds0):
        p = self.p
        per = (n1 - n0) // 4
        assert per * 4 == n1 - n0
        p.I(f'''s_mul_i32 s{T8}, s{sW}, {per * 1024}
s_add_u32 s{T7}, s{T8}, s{src0}
s_add_u32 s{T7}, s{T7}, {n0 * 1024}
s_add_u32 s{T8}, s{T8}, {lds0}''')
        tok = None
        while per:
            n = min(per, 4)
            tok = self.dma(T7, T8, n)
            per -= n
            if per:
                p.I(f's_add_u32 s{T7}, s{T7}, 4096\ns_add_u32 s{T8}, s{T8}, 4096')
        return tok

    def lds_frag(self, r, addr):
        b = (vL16, 5, 6)[addr >> 16]
        return self.p.ds(f'ds_read_b128 v[{r}:{r + 3}], v{b} offset:{addr & 0xffff}')

    def gemm16(self, nks, nt, btok, breg, addr_of, abuf, acc, swap=False, hook=None, pre=None):
        p = self.p

        def rd(ks):
            if pre:
                pre(ks)
            return [self.lds_frag(abuf + 4 * nt * (ks & 1) + 4 * n, addr_of(ks, n)) for n in range(nt)]
        nxt = rd(0)
        for ks in range(nks):
            cur = nxt
            if ks + 1 < nks:
                nxt = rd(ks + 1)
            if hook:
                hook(ks)
            for n in range(nt):
                p.wait(vm=btok[ks] if btok else None, ds=cur[n])
                w = vr(abuf + 4 * nt * (ks & 1) + 4 * n, 4)
                x = vr(breg + 4 * ks, 4)
                d = vr(acc + 4 * n, 4)
                a, b = (x, w) if swap else (w, x)
                p.I(f'v_mfma_f32_16x16x32_bf16 {d}, {a}, {b}, {d if ks else 0}')

    def tile_addr(self):
        self.p.I(f'''v_lshrrev_b32 v4, 4, v{vLANE}
v_and_b32 v11, 15, v{vLANE}
v_lshlrev_b32 v9, 5, v4
v_lshlrev_b32 v10, 3, v4
v_add_u32 v10, 128, v10
v_mul_u32_u24 v8, 1280, v11
v_add_u32 v7, v8, v9
v_add_u32 v8, v8, v10''')

    def load_vec(self, dst, vec):
        p = self.p
        p.I(f's_mul_i32 s{T0}, s{sJ}, 160\ns_add_u32 s{T0}, s{T0}, {M2 + 1280 * vec}')
        p.vm(f'buffer_load_dwordx4 v[{dst}:{dst + 3}], v9, {WS}, s{T0} offen sc1')
        p.vm(f'buffer_load_dwordx4 v[{dst + 4}:{dst + 7}], v9, {WS}, s{T0} offen offset:16 sc1')
        return p.vm(f'buffer_load_dwordx2 v[{dst + 8}:{dst + 9}], v10, {WS}, s{T0} offen sc1')

    def rstd(self, s, q, n):
        self.p.I(f'''s_mov_b32 s{T2}, {hex(f2u(1 / n))}
v_mul_f32 v{s}, s{T2}, v{s}
v_mul_f32 v4, v{s}, v{s}
v_fma_f32 v{q}, v{q}, s{T2}, -v4
v_max_f32 v{q}, 0, v{q}
v_add_f32 v{q}, {hex(f2u(1e-5))}, v{q}
v_rsq_f32 v{q}, v{q}
v_mul_f32 v{s}, -v{s}, v{q}''')

    def p2a(self):
        p = self.p
        X1, GA, A2, SBv, ACC = 232, 16, 36, 204, 184
        p.I(f'v_add_u32 v5, 0x10000, v{vL16}\nv_add_u32 v6, 0x20000, v{vL16}')
        self.tile_addr()
        xs = self.srd(SA, P_X, 2048 * 1280)
        p.I(f'''s_lshl_b32 s{T6}, s{sRB}, 2
s_add_u32 s{T6}, s{T6}, s{sW}
s_mul_i32 s{T1}, s{T6}, {16 * 1280}
s_mul_i32 s{T2}, s{sJ}, 160
s_add_u32 s{sT9}, s{T1}, s{T2}''')
        p.vm(f'buffer_load_dwordx4 v[64:67], v7, {xs}, s{sT9} offen')
        p.vm(f'buffer_load_dwordx4 v[68:71], v7, {xs}, s{sT9} offen offset:16')
        p.vm(f'buffer_load_dwordx2 v[72:73], v8, {xs}, s{sT9} offen')
        p.I(f's_lshl_b32 s{T0}, s{sJ}, 7\ns_add_u32 s{T0}, s{T0}, {F_M2}')
        self.spoll(T0, [(16, PB, 0), (16, PB + 16, 64)], [PB + 8 * v + 2 * k for v in range(4) for k in range(2)],
                   [PB + 8 * v + 4 for v in range(4)])
        self.load_vec(76, 0)
        self.load_vec(88, 2)
        t = self.load_vec(100, 1)
        p.I(f'''v_lshlrev_b32 v12, 4, v11
v_lshrrev_b32 v4, 4, v{vLANE}
v_lshl_add_u32 v13, v4, 9, v12
v_lshrrev_b32 v14, 1, v4
v_lshl_add_u32 v14, v14, 8, v12
v_and_b32 v15, 1, v4
v_lshl_add_u32 v14, v15, 3, v14
v_lshl_add_u32 v15, v4, 10, v12
s_mul_i32 s{T5}, s{T6}, 20480
s_mul_i32 s{T1}, s{sJ}, 2560
s_add_u32 s{T4}, s{T5}, s{T1}
s_add_u32 s{T4}, s{T4}, {H2F}
s_add_u32 s{T5}, s{T5}, {OF}
s_lshl_b32 s{T3}, s{sRB}, 13
s_lshl_b32 s{T1}, s{sW}, 8
s_add_u32 s{T3}, s{T3}, s{T1}
s_add_u32 s{T3}, s{T3}, {ST2}
s_lshl_b32 s{T1}, s{sJ}, 10
s_add_u32 s{T6}, s{T3}, s{T1}''')
        self.pretouch([f'buffer_load_dword v63, v13, {WS}, s{T4} offen sc1',
                       f'buffer_load_dword v63, v13, {WS}, s{T4} offen offset:256 sc1',
                       f'buffer_load_dword v63, v14, {WS}, s{T4} offen offset:2048 sc1',
                       f'buffer_load_dword v63, v12, {WS}, s{T6} offen sc1'])
        p.I(f's_lshl_b32 s{T0}, s{sJ}, 7\ns_add_u32 s{T0}, s{T0}, {F_WIN}')
        self.spoll_n(T0, 20)
        p.I(f's_mul_i32 s{sCA}, s{sJ}, 0x3c000\ns_add_u32 s{sCA}, s{sCA}, {W2F}')
        self.dma_range(sCA, 0, 36, 0)
        self.wsp_begin()
        p.wait(vm=t)
        self.unpack(X1, 64, 10)
        self.unpack(GA, 76, 10)
        self.unpack(A2, 88, 10)
        self.unpack(SBv, 100, 10)
        p.I(f'''v_and_b32 v4, 15, v{vLANE}
v_lshlrev_b32 v4, 2, v4
s_lshl_b32 s{T0}, s{sR}, 8
s_and_b32 s{T1}, s{sRB}, 1
s_lshl_b32 s{T1}, s{T1}, 1
s_lshr_b32 s{T2}, s{sW}, 1
s_add_u32 s{T1}, s{T1}, s{T2}
s_lshl_b32 s{T1}, s{T1}, 6
s_add_u32 s{T0}, s{T0}, s{T1}
s_add_u32 s{T0}, s{T0}, {F_O}''')
        self.vpoll(4, 63, T0)
        self.stamp('o_in')
        bt = []
        for ks in range(20):
            bt.append(p.vm(f'buffer_load_dwordx4 v[{64 + 4 * ks}:{67 + 4 * ks}], v{vL16}, {WS}, s{T5} offen offset:{1024 * (ks & 3)} sc1'))
            if ks & 3 == 3:
                p.I(f's_add_u32 s{T5}, s{T5}, 4096')
        p.I('s_barrier')
        self.gemm16(20, 5, bt, 64, lambda ks, n: 40960 + (ks * 5 + n) * 1024, 144, ACC,
                    hook=lambda ks: self.wsp_load(1) if ks >= 6 else None)
        p.I('s_barrier')
        self.stamp('p2a_mm')
        for k in range(10):
            p.I(f'v_pk_fma_f32 v[{X1 + 2 * k}:{X1 + 2 * k + 1}], v[{GA + 2 * k}:{GA + 2 * k + 1}], v[{ACC + 2 * k}:{ACC + 2 * k + 1}], v[{X1 + 2 * k}:{X1 + 2 * k + 1}]')
        p.I(f'v_pk_add_f32 v[56:57], v[{X1}:{X1 + 1}], v[{X1 + 2}:{X1 + 3}]\nv_pk_mul_f32 v[58:59], v[{X1}:{X1 + 1}], v[{X1}:{X1 + 1}]')
        for k in range(1, 10):
            x = f'v[{X1 + 2 * k}:{X1 + 2 * k + 1}]'
            if k > 1:
                p.I(f'v_pk_add_f32 v[56:57], v[56:57], {x}')
            p.I(f'v_pk_fma_f32 v[58:59], {x}, {x}, v[58:59]')
        p.I('v_add_f32 v56, v56, v57\nv_add_f32 v58, v58, v59')
        self.xreduce_sq(56, 58, 57)
        p.I(f'v_mov_b32 v58, s{sTAG}\nv_mov_b32 v59, 0\ns_mov_b64 exec, 0xffff')
        self.lstores([f'buffer_store_dwordx4 v[56:59], v12, {WS}, s{T6} offen'])
        p.I(f's_mov_b64 exec, -1\ns_add_u32 s{T1}, s{T3}, 4096')
        loop, done = p.newlabel('s2'), p.newlabel('s2d')
        p.L(loop)
        p.vm(f'buffer_load_dwordx4 v[64:67], v15, {WS}, s{T3} offen sc1')
        p.vm(f'buffer_load_dwordx4 v[68:71], v15, {WS}, s{T1} offen sc1')
        p.wait_vm_all()
        p.I(f'''v_cmp_ne_u32 vcc, s{sTAG}, v66
v_cmp_ne_u32 s[{sM}:{sM + 1}], s{sTAG}, v70
s_or_b64 vcc, vcc, s[{sM}:{sM + 1}]
s_cmp_eq_u64 vcc, 0
s_cbranch_scc1 {done}''')
        self.spin_tail(loop, done)
        self.stamp('st2_in')
        p.I('v_add_f32 v56, v64, v68\nv_add_f32 v60, v65, v69')
        self.xreduce_sq(56, 60, 58)
        self.rstd(56, 58, 640)
        for k in range(10):
            p.I(f'v_pk_fma_f32 v[{ACC + 2 * k}:{ACC + 2 * k + 1}], v[{X1 + 2 * k}:{X1 + 2 * k + 1}], v[58:59], v[56:57] op_sel_hi:[1,0,0]')
        for k in range(10):
            p.I(f'v_pk_fma_f32 v[{ACC + 2 * k}:{ACC + 2 * k + 1}], v[{ACC + 2 * k}:{ACC + 2 * k + 1}], v[{A2 + 2 * k}:{A2 + 2 * k + 1}], v[{SBv + 2 * k}:{SBv + 2 * k + 1}]')
        for k in range(10):
            p.I(f'v_cvt_pk_bf16_f32 v{64 + k}, v{ACC + 2 * k}, v{ACC + 2 * k + 1}')
        t = self.lstores([f'buffer_store_dwordx4 v[64:67], v13, {WS}, s{T4} offen',
                          f'buffer_store_dwordx4 v[68:71], v13, {WS}, s{T4} offen offset:256',
                          f'buffer_store_dwordx2 v[72:73], v14, {WS}, s{T4} offen offset:2048'])
        p.I(f'''s_lshl_b32 s{T6}, s{sRB}, 7
s_lshl_b32 s{T1}, s{sW}, 5
s_add_u32 s{T6}, s{T6}, s{T1}
s_add_u32 s{T6}, s{T6}, {F_H2}
s_lshl_b32 s{T1}, s{sJ}, 2
s_add_u32 s{T0}, s{T6}, s{T1}''')
        p.wait(vm=t)
        self.flag(T0, 60, True)
        self.stamp('h2_pub')

    def gelu(self, x, n, t):
        p = self.p
        k0 = 0.7978845608028654
        A = -2 * LOG2E * k0
        B = A * 0.044715
        p.I(f's_mov_b32 s{sM}, {hex(f2u(B))}\ns_mov_b32 s{sM + 1}, s{sM}\nv_mov_b32 v56, {hex(f2u(A))}')
        pr = lambda b, k: f'v[{b + 2 * k}:{b + 2 * k + 1}]'
        for k in range(n // 2):
            p.I(f'v_pk_mul_f32 {pr(t, k)}, {pr(x, k)}, {pr(x, k)}')
        for k in range(n // 2):
            p.I(f'v_pk_fma_f32 {pr(t, k)}, {pr(t, k)}, s[{sM}:{sM + 1}], v[56:57] op_sel_hi:[1,1,0]')
        for k in range(n // 2):
            p.I(f'v_pk_mul_f32 {pr(t, k)}, {pr(t, k)}, {pr(x, k)}')
        for k in range(n):
            p.I(f'v_exp_f32 v{t + k}, v{t + k}')
        for k in range(n // 2):
            p.I(f'v_pk_add_f32 {pr(t, k)}, {pr(t, k)}, 1.0 op_sel_hi:[1,0]')
        for k in range(n):
            p.I(f'v_rcp_f32 v{t + k}, v{t + k}')
        for k in range(n // 2):
            p.I(f'v_pk_mul_f32 {pr(x, k)}, {pr(x, k)}, {pr(t, k)}')

    def p2b(self):
        p = self.p
        ACC, Z1, TMP = 192, 16, 144
        ta = self.dma_range(sCA, 36, 76, 40960)
        p.I(f'''v_and_b32 v4, 7, v{vLANE}
v_lshlrev_b32 v4, 2, v4
s_lshl_b32 s{T5}, s{sRB}, 2
s_add_u32 s{T5}, s{T5}, s{sW}
s_mul_i32 s{T5}, s{T5}, 20480
s_add_u32 s{T5}, s{T5}, {H2F}
v_lshrrev_b32 v12, 4, v{vLANE}
v_lshlrev_b32 v12, 6, v12
v_and_b32 v13, 3, v{vLANE}
v_lshl_add_u32 v13, v13, 4, v12
v_bfe_u32 v14, v{vLANE}, 3, 1
v_lshl_add_u32 v14, v14, 4, v12
v_and_b32 v15, 7, v{vLANE}
v_lshl_add_u32 v14, v15, 10, v14
s_lshl_b32 s{T3}, s{sRB}, 13
s_lshl_b32 s{T1}, s{sW}, 8
s_add_u32 s{T3}, s{T3}, s{T1}
s_add_u32 s{T3}, s{T3}, {ST3}
s_lshl_b32 s{T1}, s{sJ}, 10
s_add_u32 s{T4}, s{T3}, s{T1}''')
        self.pretouch([f'buffer_load_dword v63, v13, {WS}, s{T4} offen sc1'])
        self.vpoll(4, 63, T6)
        self.stamp('h2_in')
        bt = []
        for ks in range(20):
            bt.append(p.vm(f'buffer_load_dwordx4 v[{64 + 4 * ks}:{67 + 4 * ks}], v{vL16}, {WS}, s{T5} offen offset:{1024 * (ks & 3)} sc1'))
            if ks & 3 == 3:
                p.I(f's_add_u32 s{T5}, s{T5}, 4096')
        tb = self.dma_range(sCA, 76, 120, 40960 + 40 * 1024)
        p.I('s_barrier')
        z2addr = lambda n: n * 1024 if n < 36 else 40960 + (n - 36) * 1024

        def pre(ks):
            if ks == 12:
                p.wait(vm=tb)
                p.I('s_barrier')
        st = {}

        def hook(ks):
            if ks == 12:
                p.I(f's_add_u32 s{sCA}, s{sCA}, 0x1e000')
                st['c'] = self.dma_range(sCA, 0, 28, 40960 + 84 * 1024)
        self.gemm16(20, 6, bt, 64, lambda ks, n: z2addr(ks * 6 + n), TMP, ACC, swap=True, pre=pre, hook=hook)
        p.I('s_barrier')
        self.stamp('z2_mm')
        td = self.dma_range(sCA, 28, 68, 0)
        self.gelu(ACC, 24, TMP)
        pr = lambda b: f'v[{b}:{b + 1}]'
        p.I(f'v_pk_add_f32 v[40:41], {pr(ACC)}, {pr(ACC + 4)}\nv_pk_add_f32 v[42:43], {pr(ACC + 2)}, {pr(ACC + 6)}')
        p.I(f'v_pk_mul_f32 v[44:45], {pr(ACC)}, {pr(ACC)}\nv_pk_mul_f32 v[46:47], {pr(ACC + 2)}, {pr(ACC + 2)}')
        for ft in range(1, 6):
            a, b = pr(ACC + 4 * ft), pr(ACC + 4 * ft + 2)
            if ft > 1:
                p.I(f'v_pk_add_f32 v[40:41], v[40:41], {a}\nv_pk_add_f32 v[42:43], v[42:43], {b}')
            p.I(f'v_pk_fma_f32 v[44:45], {a}, {a}, v[44:45]\nv_pk_fma_f32 v[46:47], {b}, {b}, v[46:47]')
        for c in ('row_ror:8', 'row_ror:4', 'row_ror:2', 'row_ror:1'):
            self.dpp_add(range(40, 48), c)
        p.I(f'''s_mov_b32 vcc_lo, 0xaaaaaaaa
s_mov_b32 vcc_hi, 0xaaaaaaaa
v_cndmask_b32 v40, v40, v41, vcc
v_cndmask_b32 v42, v42, v43, vcc
v_cndmask_b32 v44, v44, v45, vcc
v_cndmask_b32 v46, v46, v47, vcc
s_mov_b32 vcc_lo, 0xcccccccc
s_mov_b32 vcc_hi, 0xcccccccc
v_cndmask_b32 v48, v40, v42, vcc
v_cndmask_b32 v49, v44, v46, vcc
v_mov_b32 v50, s{sTAG}
v_mov_b32 v51, 0
s_mov_b32 exec_lo, 0x000f000f
s_mov_b32 exec_hi, 0x000f000f''')
        self.lstores([f'buffer_store_dwordx4 v[48:51], v13, {WS}, s{T4} offen'])
        p.I('s_mov_b64 exec, -1')
        loop, done = p.newlabel('s3'), p.newlabel('s3d')
        p.L(loop)
        p.vm(f'buffer_load_dwordx4 v[40:43], v14, {WS}, s{T3} offen sc1')
        p.vm(f'buffer_load_dwordx4 v[44:47], v14, {WS}, s{T3} offen offset:32 sc1')
        p.wait_vm_all()
        p.I(f'''v_cmp_ne_u32 vcc, s{sTAG}, v42
v_cmp_ne_u32 s[{sM}:{sM + 1}], s{sTAG}, v46
s_or_b64 vcc, vcc, s[{sM}:{sM + 1}]
s_cmp_eq_u64 vcc, 0
s_cbranch_scc1 {done}''')
        self.spin_tail(loop, done)
        self.stamp('st3_in')
        for c in ('quad_perm:[1,0,3,2]', 'quad_perm:[2,3,0,1]', 'row_half_mirror'):
            self.dpp_add((40, 41, 44, 45), c)
        self.rstd(40, 41, 768)
        self.rstd(44, 45, 768)
        for dst, src in ((48, 41), (50, 45), (52, 40), (54, 44)):
            p.I(f'v_mov_b32_dpp v{dst}, v{src} row_newbcast:0 row_mask:0xf bank_mask:0xf\n'
                f'v_mov_b32_dpp v{dst + 1}, v{src} row_newbcast:8 row_mask:0xf bank_mask:0xf')
        for ft in range(6):
            for h in range(2):
                x = pr(ACC + 4 * ft + 2 * h)
                p.I(f'v_pk_fma_f32 {x}, {x}, {pr(48 + 2 * h)}, {pr(52 + 2 * h)}')
        for k in range(12):
            p.I(f'v_cvt_pk_bf16_f32 v{TMP + k}, v{ACC + 2 * k}, v{ACC + 2 * k + 1}')
        for F in range(3):
            p.I(f'v_permlane16_swap_b32 v{TMP + 4 * F}, v{TMP + 4 * F + 2}\nv_permlane16_swap_b32 v{TMP + 4 * F + 1}, v{TMP + 4 * F + 3}')
        p.I(f'''s_mul_i32 s{T5}, s{sJ}, {128 * 3072}
s_add_u32 s{T5}, s{T5}, {Z2F}
s_lshl_b32 s{T0}, s{sRB}, 2
s_add_u32 s{T0}, s{T0}, s{sW}
s_mul_i32 s{T0}, s{T0}, 3072
s_add_u32 s{T0}, s{T0}, s{T5}''')
        for F in range(3):
            p.vm(f'buffer_store_dwordx4 v[{TMP + 4 * F}:{TMP + 4 * F + 3}], v{vL16}, {WS}, s{T0} offen offset:{1024 * F} sc1')
        p.I(f'''s_lshl_b32 s{T6}, s{sJ}, 7
s_add_u32 s{T6}, s{T6}, {F_Z2}
s_lshl_b32 s{T1}, s{sRB}, 2
s_add_u32 s{T0}, s{T6}, s{T1}''')
        self.wave0(T0, T0)
        p.wait_vm_all()
        p.I('s_barrier')
        self.flag(T0, 60, False)
        self.stamp('z2_pub')
        te = self.dma_range(sCA, 68, 120, 40960)
        z1addr = lambda n: 40960 + (84 + n) * 1024 if n < 28 else (n - 28) * 1024 if n < 68 else 40960 + (n - 68) * 1024

        def pre1(ks):
            if ks == 11:
                p.wait(vm=te)
                p.I('s_barrier')
        self.gemm16(20, 6, None, 64, lambda ks, n: z1addr(ks * 6 + n), TMP, Z1, pre=pre1,
                    hook=lambda ks: self.wsp_load(3))
        self.wsp_load(64)
        bs = self.srd(SA, P_BSP, 4096)
        p.I(f'''s_lshl_b32 s{T0}, s{sRB}, 7
s_lshl_b32 s{T1}, s{sW}, 5
s_add_u32 s{T0}, s{T0}, s{T1}
v_lshlrev_b32 v4, 1, v11''')
        self.t_b = p.vm(f'buffer_load_ushort v40, v4, {bs}, s{T0} offen')
        self.gelu(Z1, 24, TMP)
        self.stamp('z1_done')

    def p3a(self):
        p = self.p
        ACC, RING, D, Z1 = 136, 44, 7, 16
        p.I(f's_lshl_b32 s{T0}, s{sJ}, 7\ns_add_u32 s{T0}, s{T0}, {F_WOUT}')
        self.spoll_n(T0, 24)
        p.I(f'''s_lshl_b32 s{T1}, s{sW}, 5
s_add_u32 s{T0}, s{T6}, s{T1}
s_mul_i32 s{T1}, s{sW}, {32 * 3072}
s_add_u32 s{T5}, s{T5}, s{T1}
v_lshrrev_b32 v4, 4, v{vLANE}
v_mul_u32_u24 v12, 768, v4
v_lshl_add_u32 v12, v11, 4, v12
s_lshl_b32 s{T4}, s{sRB}, 2
s_add_u32 s{T4}, s{T4}, s{sW}
s_mul_i32 s{T4}, s{T4}, 24576
s_add_u32 s{T4}, s{T4}, {UF}
s_mul_i32 s{T1}, s{sJ}, 3072
s_add_u32 s{T3}, s{T4}, s{T1}''')
        self.spoll_n(T0, 8)
        self.stamp('z2_in')
        toks = []

        def issue():
            s = len(toks)
            for F in range(3):
                r = RING + 12 * (s % D) + 4 * F
                t = p.vm(f'buffer_load_dwordx4 v[{r}:{r + 3}], v{vL16}, {WS}, s{T5} offen offset:{1024 * F} sc1')
            p.I(f's_add_u32 s{T5}, s{T5}, 3072')
            toks.append(t)
        for _ in range(D - 1):
            issue()
        for s in range(32):
            if len(toks) < 32:
                issue()
            if s == 26:
                self.pretouch([f'buffer_load_dword v41, v12, {WS}, s{T3} offen offset:{256 * m} sc1' for m in range(3)])
                p.I(f's_mul_i32 s{sCA}, s{sJ}, 0x1e000\ns_add_u32 s{sCA}, s{sCA}, {WOUTF}\ns_barrier')
                self.dma_range(sCA, 0, 60, 102400)
            p.wait(vm=toks[s])
            for F in range(3):
                for tt in range(2):
                    r = RING + 12 * (s % D) + 4 * F
                    acc = vr(ACC + 16 * (2 * F + tt), 16)
                    b = 4 * (2 * s + tt)
                    p.I(f'v_mfma_f32_32x32x16_bf16 {acc}, v[{r}:{r + 3}], a[{b}:{b + 3}], {acc if s else 0}')
        self.stamp('p3a_mm')
        p.I(f'''v_and_b32 v4, 31, v{vLANE}
v_mul_u32_u24 v13, 400, v4
v_lshrrev_b32 v4, 5, v{vLANE}
v_lshl_add_u32 v13, v4, 4, v13
s_mul_i32 s{T0}, s{sW}, 25600
v_add_u32 v13, s{T0}, v13
v_lshrrev_b32 v4, 4, v{vLANE}
v_mul_u32_u24 v14, 96, v4
v_mul_u32_u24 v4, 400, v11
s_mul_i32 s{T0}, s{sW}, 6400
v_add3_u32 v14, v14, v4, s{T0}
v_add_u32 v15, 51200, v14''')
        for F in range(3):
            for tt in range(2):
                for q in range(4):
                    r = ACC + 16 * (2 * F + tt) + 4 * q
                    p.ds(f'ds_write_b128 v13, v[{r}:{r + 3}] offset:{tt * 12800 + F * 128 + q * 32}')
        p.wait_lgkm_all()
        p.I('s_barrier')
        G = 44
        toks = []
        for m in range(6):
            for pp in range(4):
                r = G + 24 * pp + 4 * m
                t = p.ds(f'ds_read_b128 v[{r}:{r + 3}], v{14 + (pp >> 1)} offset:{25600 * (pp & 1) + 16 * m}')
            toks.append(t)
        p.wait(vm=self.t_b)
        p.I('v_lshlrev_b32 v42, 16, v40')
        pr = lambda b: f'v[{b}:{b + 1}]'
        for m in range(6):
            p.wait(ds=toks[m])
            for h in range(2):
                r = G + 4 * m + 2 * h
                p.I(f'v_pk_add_f32 {pr(r)}, {pr(r)}, {pr(r + 24)}\nv_pk_add_f32 {pr(r + 48)}, {pr(r + 48)}, {pr(r + 72)}')
            for h in range(2):
                r = G + 4 * m + 2 * h
                p.I(f'v_pk_add_f32 {pr(r)}, {pr(r)}, v[42:43] op_sel_hi:[1,0]')
            for h in range(2):
                r = G + 4 * m + 2 * h
                p.I(f'v_pk_add_f32 {pr(r)}, {pr(r)}, {pr(r + 48)}')
            for h in range(2):
                r = G + 4 * m + 2 * h
                p.I(f'v_pk_mul_f32 {pr(r)}, {pr(r)}, {pr(Z1 + 4 * m + 2 * h)}')
        for k in range(12):
            p.I(f'v_cvt_pk_bf16_f32 v{140 + k}, v{G + 2 * k}, v{G + 2 * k + 1}')
        t = self.lstores([f'buffer_store_dwordx4 v[{140 + 4 * m}:{143 + 4 * m}], v12, {WS}, s{T3} offen offset:{256 * m}'
                          for m in range(3)])
        p.I(f'''s_lshl_b32 s{T6}, s{sRB}, 7
s_lshl_b32 s{T1}, s{sW}, 5
s_add_u32 s{T6}, s{T6}, s{T1}
s_add_u32 s{T6}, s{T6}, {F_U}
s_lshl_b32 s{T1}, s{sJ}, 2
s_add_u32 s{T0}, s{T6}, s{T1}''')
        p.wait(vm=t)
        self.flag(T0, 60, True)
        self.stamp('u_pub')

    def p3b(self):
        p = self.p
        X1, ACC, GB = 232, 200, 16
        p.I('s_barrier')
        t = self.load_vec(40, 3)
        tb = self.dma_range(sCA, 60, 120, 0)
        p.I(f'v_and_b32 v4, 7, v{vLANE}\nv_lshlrev_b32 v4, 2, v4')
        p.wait(vm=t)
        self.unpack(GB, 40, 10)
        self.vpoll(4, 63, T6)
        self.stamp('u_in')
        bt = []
        for ks in range(24):
            bt.append(p.vm(f'buffer_load_dwordx4 v[{64 + 4 * ks}:{67 + 4 * ks}], v{vL16}, {WS}, s{T4} offen offset:{1024 * (ks & 3)} sc1'))
            if ks & 3 == 3:
                p.I(f's_add_u32 s{T4}, s{T4}, 4096')
        p.I('s_barrier')
        addr = lambda n: 102400 + n * 1024 if n < 60 else (n - 60) * 1024
        self.gemm16(24, 5, bt, 64, lambda ks, n: addr(ks * 5 + n), 160, ACC)
        os_ = self.srd(SA, P_OUT, 2048 * 1280)
        self.stamp('p3b_mm')
        for k in range(10):
            p.I(f'v_pk_fma_f32 v[{X1 + 2 * k}:{X1 + 2 * k + 1}], v[{GB + 2 * k}:{GB + 2 * k + 1}], v[{ACC + 2 * k}:{ACC + 2 * k + 1}], v[{X1 + 2 * k}:{X1 + 2 * k + 1}]')
        for k in range(10):
            p.I(f'v_cvt_pk_bf16_f32 v{64 + k}, v{X1 + 2 * k}, v{X1 + 2 * k + 1}')
        p.vm(f'buffer_store_dwordx4 v[64:67], v7, {os_}, s{sT9} offen')
        p.vm(f'buffer_store_dwordx4 v[68:71], v7, {os_}, s{sT9} offen offset:16')
        p.vm(f'buffer_store_dwordx2 v[72:73], v8, {os_}, s{sT9} offen')

    def build(self):
        p = self.p
        p.L(KNAME)
        stages = [('entry', self.entry), ('gemv1', self.gemv1), ('repack0', self.repack_start), ('ln', self.ln_stats),
                  ('h', self.make_h), ('p1main', self.p1_main), ('kv', self.p1_kv), ('q', self.p1_q),
                  ('repack1', self.repack_mid), ('o', self.p1_o), ('p2a', self.p2a), ('p2b', self.p2b),
                  ('p3a', self.p3a), ('p3b', self.p3b)]
        for name, fn in stages:
            p.C(f'======== {name}')
            fn()
            if self.o.stop == name:
                break
        p.L('L_fin')
        if self.o.stop is None:
            p.I(f's_or_b32 s{T0}, s{sROLE}, s{sW}\ns_cmp_eq_u32 s{T0}, 0\ns_cselect_b32 s{T0}, {WS_EPOCH}, {OOB}')
            self.flag(T0, 60, False)
        if self.o.stamps:
            self.stamp('end')
            p.I(f'''s_lshl_b32 s{T0}, s{sROLE}, 2
s_add_u32 s{T0}, s{T0}, s{sW}
s_lshl_b32 s{T0}, s{T0}, 8
s_add_u32 s{T0}, s{T0}, {STAMPS}
v_lshlrev_b32 v4, 2, v{vLANE}''')
            p.vm(f'buffer_store_dword v{vSTAMP}, v4, {WS}, s{T0} offen')
        p.I('s_endpgm')
        for lg, lb, texts in self.ool:
            p.L(lg)
            for t in texts:
                p.vm(t, count=False)
            p.I(f's_branch {lb}')
        p.L('L_end')
        p.I('s_endpgm')
        head = open('adaLN_cond__linear_kernel_hedgehog__mixer_gmlp__prompt.s.ref').read().split('\n')
        hdr = [l for l in head if l.startswith(';') and '@launch' not in l and 'Override' not in l and 'grid=ceil' not in l]
        txt = '\n'.join(hdr) + f'\n; @launch grid=(256,1,1) block=(256,1,1) lds={LDS_BYTES}\n'
        txt += f'.amdgcn_target "amdgcn-amd-amdhsa--gfx950"\n.text\n.globl {KNAME}\n.p2align 8\n.type {KNAME},@function\n'
        txt += p.render()
        txt += f'''.section .rodata,"a"
.p2align 6
.amdhsa_kernel {KNAME}
  .amdhsa_next_free_vgpr 512
  .amdhsa_next_free_sgpr 102
  .amdhsa_accum_offset 256
  .amdhsa_group_segment_fixed_size 0
  .amdhsa_kernarg_size 112
  .amdhsa_user_sgpr_count 2
  .amdhsa_user_sgpr_kernarg_segment_ptr 1
  .amdhsa_system_sgpr_workgroup_id_x 1
  .amdhsa_float_denorm_mode_32 3
.end_amdhsa_kernel
'''
        return txt


if __name__ == '__main__':
    import argparse
    ap = argparse.ArgumentParser()
    ap.add_argument('-o', default='mk.s')
    ap.add_argument('--stamps', action='store_true')
    ap.add_argument('--nolocal', action='store_true')
    ap.add_argument('--stop')
    a = ap.parse_args()
    o = Opt()
    o.stamps, o.local, o.stop = a.stamps, not a.nolocal, a.stop
    g = Gen(o)
    s = g.build()
    open(a.o, 'w').write(s)
    open(a.o + '.stamps', 'w').write('\n'.join(g.stamp_names))
    print('instructions', sum(1 for k, _ in g.p.items if k == 'i'), 'nops', g.p.nnop)
```

```python
import re

TRANS = ('v_exp_f32', 'v_log_f32', 'v_rcp_f32', 'v_rsq_f32', 'v_sqrt_f32', 'v_sin_f32', 'v_cos_f32',
         'v_rcp_iflag_f32')
NO_DST_S = ('s_cmp', 's_cbranch', 's_waitcnt', 's_barrier', 's_nop', 's_setprio', 's_sleep', 's_endpgm',
            's_branch', 's_bitcmp', 's_setpc', 's_sendmsg')


def regs_of(tok):
    tok = tok.strip()
    tok = tok.lstrip('-')
    if tok.startswith('abs(') and tok.endswith(')'):
        tok = tok[4:-1]
    tok = tok.strip('|')
    m = re.fullmatch(r'([vas])(\d+)', tok)
    if m:
        return [(m.group(1), int(m.group(2)))]
    m = re.fullmatch(r'([vas])\[(\d+):(\d+)\]', tok)
    if m:
        return [(m.group(1), i) for i in range(int(m.group(2)), int(m.group(3)) + 1)]
    if tok in ('vcc', 'vcc_lo', 'vcc_hi'):
        return [('x', 'vcc')]
    if tok in ('exec', 'exec_lo', 'exec_hi'):
        return [('x', 'exec')]
    if tok == 'm0':
        return [('x', 'm0')]
    return []


class Ins:
    def __init__(self, text):
        self.text = text
        t = text.split(';')[0].strip()
        parts = t.split(None, 1)
        self.mn = parts[0]
        rest = parts[1] if len(parts) > 1 else ''
        ops, depth, cur = [], 0, ''
        for ch in rest:
            if ch in '[(':
                depth += 1
            if ch in '])':
                depth -= 1
            if ch == ',' and depth == 0:
                ops.append(cur.strip())
                cur = ''
            else:
                cur += ch
        if cur.strip():
            ops.append(cur.strip())
        self.mods = ''
        if ops:
            last = ops[-1].split(None, 1)
            ops[-1] = last[0]
            self.mods = last[1] if len(last) > 1 else ''
        self.ops = ops
        mn = self.mn
        self.valu = mn.startswith('v_') and not mn.startswith('v_mfma')
        self.mfma = mn.startswith('v_mfma')
        self.vmem = mn.startswith(('buffer_', 'global_', 'flat_'))
        self.ds = mn.startswith('ds_')
        self.smem = mn.startswith(('s_load', 's_memtime', 's_memrealtime', 's_buffer_load', 's_atomic'))
        self.salu = mn.startswith('s_') and not self.smem
        self.trans = any(mn.startswith(x) for x in TRANS)
        self.dpp = '_dpp' in mn or 'row_' in self.mods or 'quad_perm' in self.mods
        self.sdwa = '_sdwa' in mn
        self.dot = mn.startswith('v_dot')
        self.permlane = mn.startswith('v_permlane')
        self.readlane = mn.startswith(('v_readlane', 'v_readfirstlane'))
        self.passes = 0
        self.nstates = 1
        R = [regs_of(o) for o in ops]
        flat = lambda L: [r for x in L for r in x]
        self.w, self.r = [], []
        self.srcc = []
        self.srcab = []
        self.store_data = []
        if mn == 's_nop':
            self.nstates = int(ops[0], 0) + 1
        elif self.mfma:
            self.passes = 8 if '32x32x16' in mn else 4 if '16x16x32' in mn else None
            assert self.passes, mn
            self.w = R[0]
            self.srcab = R[1] + R[2]
            self.srcc = R[3]
            self.r = self.srcab + self.srcc
        elif self.valu:
            if self.permlane:
                self.w = R[0] + R[1]
                self.r = R[0] + R[1]
            elif mn == 'v_nop':
                pass
            else:
                self.w = list(R[0])
                self.r = flat(R[1:])
                if mn.startswith(('v_fmac', 'v_dot2c', 'v_mac', 'v_writelane', 'v_pk_fmac')) or self.dpp or self.sdwa:
                    self.r += R[0]
                if mn.startswith('v_cndmask') and len(ops) == 3:
                    self.r.append(('x', 'vcc'))
                if mn.startswith('v_cmpx'):
                    self.w.append(('x', 'exec'))
                assert not mn.startswith(('v_add_co', 'v_addc', 'v_sub_co', 'v_div_scale', 'v_mad_u64')), mn
        elif self.vmem:
            lds = re.search(r'\blds\b', self.mods) is not None
            if mn.startswith(('buffer_inv', 'buffer_wbl2')):
                pass
            elif 'load' in mn and not lds:
                self.w = R[0]
                self.r = flat(R[1:])
            elif 'load' in mn and lds:
                self.r = flat(R) + [('x', 'm0')]
            else:
                self.r = flat(R)
                if 'x3' in mn or 'x4' in mn:
                    self.store_data = R[0] if mn.startswith('buffer_') else R[1]
        elif self.ds:
            if mn.startswith(('ds_read', 'ds_bpermute', 'ds_permute', 'ds_swizzle')):
                self.w = R[0]
                self.r = flat(R[1:])
            else:
                self.r = flat(R)
        elif self.smem:
            self.w = R[0] if R else []
            self.r = flat(R[1:])
        elif self.salu:
            if mn.startswith(NO_DST_S):
                self.r = flat(R)
            else:
                self.w = list(R[0])
                self.r = flat(R[1:])
                if 'saveexec' in mn:
                    self.w.append(('x', 'exec'))
                    self.r.append(('x', 'exec'))
        self.ws = set(self.w)
        self.rs = set(self.r)


def need(p, c):
    n = 0
    pw = p.ws
    if p.mfma:
        big = p.passes == 8
        if c.mfma:
            if pw & set(c.srcab):
                n = max(n, 12 if big else 8)
            if pw & set(c.srcc):
                same = (c.srcc == p.w and c.passes == p.passes)
                if not same:
                    n = max(n, 10 if big else 6)
            if (pw & c.ws) and not (c.srcc == p.w and c.passes == p.passes):
                n = max(n, 10 if big else 6)
        elif c.valu:
            if pw & (c.rs | c.ws):
                n = max(n, 12 if big else 8)
            if set(p.srcc) & c.ws:
                n = max(n, 7 if big else 3)
        elif c.vmem or c.ds:
            if pw & (c.rs | c.ws):
                n = max(n, 12 if big else 8)
        return n
    if p.valu:
        vw = {r for r in pw if r[0] in 'va'}
        sw = {r for r in pw if r[0] == 's' or r == ('x', 'vcc')}
        if c.mfma and (vw & c.rs):
            n = max(n, 2)
        if c.mfma and ('x', 'exec') in pw:
            n = max(n, 4)
        if c.valu:
            if p.trans and (vw & c.rs) and not c.trans:
                n = max(n, 1)
            if p.trans and (vw & c.rs) and c.trans:
                n = max(n, 1)
            if c.dpp and (vw & c.rs):
                n = max(n, 2)
            if c.permlane and (vw & c.rs):
                n = max(n, 2)
            if c.readlane and (vw & c.rs):
                n = max(n, 1)
            if (p.sdwa or 'op_sel' in p.mods) and (vw & (c.rs | c.ws)):
                n = max(n, 1)
            if p.dot and (vw & (c.rs | c.ws)):
                same_acc = c.mn == p.mn and not (vw & set(sum([regs_of(o) for o in c.ops[1:3]], [])))
                if not same_acc:
                    n = max(n, 3)
            if sw & c.rs:
                n = max(n, 4 if (c.readlane or c.mn.startswith('v_writelane')) else 2)
            if ('x', 'exec') in pw:
                n = max(n, 5 if c.dpp else 4 if (c.readlane or c.permlane) else 2)
        if c.mfma and p.dot and (vw & c.rs):
            n = max(n, 3)
        if (c.vmem or c.ds) and p.dot and (vw & c.rs):
            n = max(n, 3)
        if (c.vmem or c.ds) and p.trans and (vw & c.rs):
            n = max(n, 1)
        if c.vmem and (sw & c.rs):
            n = max(n, 5)
        if c.salu and (sw & c.rs):
            n = max(n, 1)
        return n
    if p.salu:
        if ('x', 'm0') in pw and ('x', 'm0') in c.rs and (c.vmem or c.ds):
            n = max(n, 1)
        return n
    if p.vmem and p.store_data:
        if set(p.store_data) & c.ws:
            n = max(n, 2 if (c.valu or c.mfma) else 1)
    return n


class Prog:
    def __init__(self):
        self.items = []
        self.vm_ops = []
        self.vm_done = -1
        self.ds_ops = []
        self.ds_done = -1
        self.smem_pending = False
        self.cond = False
        self.uid = 0
        self.pend_vm = {}
        self.pend_ds = {}
        self.warn = []

    def I(self, text):
        for line in text.strip().split('\n'):
            line = line.strip()
            if not line:
                continue
            ins = Ins(line)
            assert not (ins.vmem or ins.ds or ins.smem), 'use vm/ds/sm: ' + line
            self._check(ins)
            self.items.append(('i', ins))

    def _check(self, ins):
        is_load = (ins.vmem or ins.ds) and ins.w
        touched = ins.rs | (set() if is_load else ins.ws)
        for pend, done in ((self.pend_vm, max(self.vm_done, self.c_vm_done if self.cond else -1)),
                           (self.pend_ds, max(self.ds_done, self.c_ds_done if self.cond else -1))):
            for r in touched:
                if r in pend:
                    if pend[r] > done:
                        self.warn.append(f'pending load into {r} touched by: {ins.text}')
        if is_load:
            pend, other = (self.pend_vm, self.pend_ds) if ins.vmem else (self.pend_ds, self.pend_vm)
            odone = max(self.ds_done, self.c_ds_done if self.cond else -1) if ins.vmem else max(self.vm_done, self.c_vm_done if self.cond else -1)
            for r in ins.ws:
                if r in other and other[r] > odone:
                    self.warn.append(f'two pending loads of different kinds into {r}: {ins.text}')

    c_vm_done = -1
    c_ds_done = -1

    def T(self, text):
        self.items.append(('t', text))

    def C(self, text):
        self.items.append(('t', '    ; ' + text))

    def L(self, name):
        self.items.append(('l', name))

    def newlabel(self, base):
        self.uid += 1
        return f'L_{base}_{self.uid}'

    def vm(self, text, count=True):
        ins = Ins(text.strip())
        assert ins.vmem, text
        if count:
            self._check(ins)
        self.items.append(('i', ins))
        if not count:
            return None
        self.vm_ops.append(self.cond)
        for r in ins.ws:
            self.pend_vm[r] = len(self.vm_ops) - 1
        return len(self.vm_ops) - 1

    def ds(self, text, count=True):
        ins = Ins(text.strip())
        assert ins.ds, text
        self._check(ins)
        self.items.append(('i', ins))
        if not count:
            return None
        self.ds_ops.append(self.cond)
        for r in ins.ws:
            self.pend_ds[r] = len(self.ds_ops) - 1
        return len(self.ds_ops) - 1

    def sm(self, text):
        ins = Ins(text.strip())
        assert ins.smem, text
        self.items.append(('i', ins))
        self.smem_pending = True

    def _n(self, ops, t):
        return sum(1 for c in ops[t + 1:] if not c or c == self.cond)

    def wait(self, vm=None, ds=None, force=False):
        parts = []
        if vm is not None and (vm > self.vm_done or force):
            n = self._n(self.vm_ops, vm)
            if n < 63:
                parts.append(f'vmcnt({n})')
            if not self.cond:
                self.vm_done = max(self.vm_done, vm)
            else:
                self.c_vm_done = max(self.c_vm_done, vm)
        if ds is not None and (ds > self.ds_done or force):
            n = self._n(self.ds_ops, ds)
            if self.smem_pending:
                n = 0
            parts.append(f'lgkmcnt({min(n, 15)})')
            if not self.cond:
                self.ds_done = max(self.ds_done, ds if n > 0 else len(self.ds_ops) - 1)
                if n == 0:
                    self.smem_pending = False
            else:
                self.c_ds_done = max(self.c_ds_done, ds)
        if parts:
            self.I('s_waitcnt ' + ' '.join(parts))

    def wait_vm_all(self):
        self.I('s_waitcnt vmcnt(0)')
        if not self.cond:
            self.vm_done = len(self.vm_ops) - 1
        else:
            self.c_vm_done = len(self.vm_ops) - 1

    def wait_lgkm_all(self):
        self.I('s_waitcnt lgkmcnt(0)')
        if not self.cond:
            self.ds_done = len(self.ds_ops) - 1
            self.smem_pending = False
        else:
            self.c_ds_done = len(self.ds_ops) - 1

    def last_vm(self):
        return len(self.vm_ops) - 1

    def last_ds(self):
        return len(self.ds_ops) - 1

    def render(self):
        out = []
        hist = []
        nnop = 0
        for kind, x in self.items:
            if kind == 't':
                out.append(x)
                continue
            if kind == 'l':
                out.append(x + ':')
                continue
            req = 0
            dist = 0
            for p in reversed(hist):
                if dist >= 20:
                    break
                n = need(p, x)
                if n > dist:
                    req = max(req, n - dist)
                dist += p.nstates
            while req > 0:
                k = min(req, 16)
                nop = Ins(f's_nop {k - 1}')
                hist.append(nop)
                out.append('    ' + nop.text)
                nnop += 1
                req -= k
            hist.append(x)
            if len(hist) > 40:
                hist = hist[-30:]
            out.append('    ' + x.text)
        self.nnop = nnop
        return '\n'.join(out) + '\n'


def vr(base, n=1, k='v'):
    return f'{k}{base}' if n == 1 else f'{k}[{base}:{base + n - 1}]'


def ar(base, n=1):
    return vr(base, n, 'a')


def sr(base, n=1):
    return vr(base, n, 's')
```

```python
WS_EPOCH = 0
F_HELLO = 0x1000
F_W1 = 0x1400
F_WO = 0x1C00
F_WIN = 0x2000
F_WOUT = 0x2400
F_KV = 0x2800
F_Z2 = 0x3000
F_M2 = 0x3400
F_WS = 0x3800
F_H = 0x4000
F_O = 0x5000
F_H2 = 0x6000
F_U = 0x7000
MODG = 0x8000
M2 = 0xE0000
ST2 = 0x20000
ST3 = 0x60000
STAMPS = 0xA0000
HF = 0x100000
W1M = 0x400000
W1T = 0x600000
WOF = 0x700000
WOUTF = 0x800000
W2F = 0x900000
KVP = 0xB00000
OF = 0xD00000
H2F = 0x1000000
Z2F = 0x1300000
UF = 0x1600000
WSF = 0x1900000
DBGX = 0x2100000
WS_USED = 0x2800000
OOB = 0x40000000

L_STG_W1 = 0x1E000
L_STG_WS = 0x10000
L_STG_WO = 0x22000
L_MOD = 0x24000
L_DUMMY = 0x25000
L_PHS = 0x1E000
L_SCR_G1 = 0x25400
L_SCR_LN = 0x26000
L_M2 = 0x25800
L_SCR_G2 = 0x6000
L_WPH = 0x26400
L_KVR = 0x26400
L_ZERO = 0x27400
LDS_BYTES = 0x28000
```

```python
import sys
sys.path.insert(0, 'gen')
from asmlib import *
from layout import *

KNAME = 'adaLN_cond__linear_kernel_hedgehog__mixer_gmlp__prompt_kernel'


class Opt:
    local = True
    stamps = False
    nt = ' nt'
    stop = None


S_WS = 4
SA, SB = 8, 12
P_X, P_WQKV, P_WPHI, P_WO, P_WIN, P_WSP, P_BSP = 16, 18, 20, 22, 26, 28, 30
P_WOUT, P_C, P_WMOD, P_OUT, P_DBG, P_WS = 32, 34, 36, 38, 40, 42
sTAG, sROLE, sW, sX, sI, sR, sC, sRB, sJ, sMODE = 44, 46, 47, 48, 49, 50, 51, 52, 53, 54
T0, T1, T2, T3, T4, T5, T6, T7, T8 = 55, 56, 57, 58, 59, 60, 61, 62, 63
PB = 64
sK2, sT9, sSPIN, sT10 = 96, 97, 100, 101
sCA = 24
sM = 98

WS = f's[{S_WS}:{S_WS + 3}]'
vL16, vLANE, vSTAMP = 1, 2, 3

LOG2E = 1.4426950408889634


def f2u(x):
    import struct
    return struct.unpack('<I', struct.pack('<f', x))[0]


class Gen:
    def __init__(self, opt):
        self.o = opt
        self.p = Prog()
        self.ool = []
        self.nstamp = 0
        self.stamp_names = []

    def srd(self, q, ptr, nbytes):
        self.p.I(f's_mov_b32 s{q}, s{ptr}\ns_mov_b32 s{q + 1}, s{ptr + 1}\ns_mov_b32 s{q + 2}, {nbytes}\n'
                 f's_mov_b32 s{q + 3}, s{sK2}')
        return f's[{q}:{q + 3}]'

    def stamp(self, name):
        if not self.o.stamps:
            return
        p = self.p
        p.sm(f's_memrealtime s[{sM}:{sM + 1}]')
        p.wait_lgkm_all()
        p.I(f'v_writelane_b32 v{vSTAMP}, s{sM}, {self.nstamp}')
        if name in ('role_iss', 'end'):
            p.sm(f's_memtime s[{sM}:{sM + 1}]')
            p.wait_lgkm_all()
            p.I(f'v_writelane_b32 v{vSTAMP}, s{sM}, {62 if name == "role_iss" else 63}')
        self.stamp_names.append(name)
        self.nstamp += 1

    def spin_tail(self, loop, done):
        p = self.p
        p.I(f's_sub_u32 s{sSPIN}, s{sSPIN}, 1\ns_cbranch_scc0 {loop}\ns_mov_b32 s{sSPIN}, 0')
        p.L(done)

    def spoll(self, soff, loads, pairs, singles=()):
        p = self.p
        loop, done = p.newlabel('sp'), p.newlabel('spd')
        p.I(f's_add_u32 s{sM}, s{P_WS}, s{soff}\ns_addc_u32 s{sM + 1}, s{P_WS + 1}, 0')
        p.L(loop)
        for nd, dst, imm in loads:
            p.sm(f's_load_dwordx{nd} s[{dst}:{dst + nd - 1}], s[{sM}:{sM + 1}], {imm} glc')
        p.wait_lgkm_all()
        first = pairs[0]
        p.I(f's_xor_b64 s[{first}:{first + 1}], s[{first}:{first + 1}], s[{sTAG}:{sTAG + 1}]')
        for q in pairs[1:]:
            p.I(f's_xor_b64 s[{q}:{q + 1}], s[{q}:{q + 1}], s[{sTAG}:{sTAG + 1}]\n'
                f's_or_b64 s[{first}:{first + 1}], s[{first}:{first + 1}], s[{q}:{q + 1}]')
        for q in singles:
            p.I(f's_xor_b32 s{q}, s{q}, s{sTAG}\ns_or_b32 s{first}, s{first}, s{q}')
        p.I(f's_cmp_eq_u64 s[{first}:{first + 1}], 0\ns_cbranch_scc1 {done}')
        self.spin_tail(loop, done)

    def spoll_n(self, soff, n):
        loads, got = [], 0
        while got < n:
            nd = 16 if n - got > 8 else 8 if n - got > 4 else 4
            loads.append((nd, PB + got, got * 4))
            got += nd
        self.spoll(soff, loads, [PB + 2 * k for k in range(n // 2)])

    def vpoll(self, vaddr, vtmp, soff):
        p = self.p
        loop, done = p.newlabel('vp'), p.newlabel('vpd')
        p.L(loop)
        p.vm(f'buffer_load_dword v{vtmp}, v{vaddr}, {WS}, s{soff} offen sc1')
        p.wait_vm_all()
        p.I(f'v_cmp_ne_u32 vcc, s{sTAG}, v{vtmp}\ns_cmp_eq_u64 vcc, 0\ns_cbranch_scc1 {done}')
        self.spin_tail(loop, done)

    def lstores(self, texts):
        p = self.p
        if not self.o.local:
            return [p.vm(t + ' sc1') for t in texts][-1]
        lg, lb = p.newlabel('glob'), p.newlabel('back')
        p.I(f's_cmp_eq_u32 s{sMODE}, 0\ns_cbranch_scc1 {lg}')
        tok = [p.vm(t) for t in texts][-1]
        p.L(lb)
        self.ool.append((lg, lb, [t + ' sc1' for t in texts]))
        return tok

    def flag(self, soff, vtmp, local):
        p = self.p
        p.I(f'v_mov_b32 v{vtmp}, s{sTAG}\nv_mov_b32 v{vtmp + 1}, 0\ns_mov_b64 exec, 1')
        t = f'buffer_store_dword v{vtmp}, v{vtmp + 1}, {WS}, s{soff} offen'
        if local:
            self.lstores([t])
        else:
            p.vm(t + ' sc1')
        p.I('s_mov_b64 exec, -1')

    def wave0(self, dst, src):
        self.p.I(f's_cmp_eq_u32 s{sW}, 0\ns_cselect_b32 s{dst}, s{src}, {OOB}')

    def dma(self, soff, lds, n, extra=' sc1'):
        p = self.p
        p.I(f's_mov_b32 m0, s{lds}')
        tok = None
        for k in range(n):
            tok = p.vm(f'buffer_load_dwordx4 v{vL16}, {WS}, s{soff} offen offset:{1024 * k}{extra} lds')
        return tok

    def xreduce_sq(self, s, q, t):
        self.p.I(f'''v_permlane16_swap_b32 v{s}, v{q}
v_add_f32 v{s}, v{s}, v{q}
v_mov_b32 v{q}, v{s}
v_permlane32_swap_b32 v{s}, v{q}
v_add_f32 v{s}, v{s}, v{q}
v_mov_b32 v{t}, v{s}
v_permlane16_swap_b32 v{s}, v{t}''')

    def silu_pack(self, src, lo, hi, t):
        self.p.I(f'''v_lshlrev_b32 v{src}, 16, v{src}
v_mul_f32 v{t}, {hex(f2u(-LOG2E))}, v{src}
v_exp_f32 v{t}, v{t}
v_add_f32 v{t}, 1.0, v{t}
v_rcp_f32 v{t}, v{t}
v_mul_f32 v{t}, v{src}, v{t}
v_cvt_pk_bf16_f32 v{lo}, v{t}, 0
v_lshlrev_b32 v{hi}, 16, v{lo}''')

    def merge8(self, a):
        p = self.p
        for b in (a, a + 4):
            p.I(f'v_permlane32_swap_b32 v{b}, v{b + 2}\nv_permlane32_swap_b32 v{b + 1}, v{b + 3}')
        for b in (a, a + 4):
            p.I(f'v_add_f32 v{b}, v{b}, v{b + 2}\nv_add_f32 v{b + 1}, v{b + 1}, v{b + 3}')
        for b in (a, a + 4):
            p.I(f'v_permlane16_swap_b32 v{b}, v{b + 1}')
        for b in (a, a + 4):
            p.I(f'v_add_f32 v{b}, v{b}, v{b + 1}')

    def dpp_add(self, regs, ctrl):
        for r in regs:
            self.p.I(f'v_add_f32_dpp v{r}, v{r}, v{r} {ctrl} row_mask:0xf bank_mask:0xf')

    def unpack(self, dst, src, n):
        for k in range(n):
            self.p.I(f'v_lshlrev_b32 v{dst + 2 * k}, 16, v{src + k}\nv_and_b32 v{dst + 2 * k + 1}, 0xffff0000, v{src + k}')

    def round_add_round(self, a, sdelta, out):
        p = self.p
        p.I(f'v_cvt_pk_bf16_f32 v{out}, v{a}, v{a + 1}\nv_cvt_pk_bf16_f32 v{out + 1}, v{a + 2}, v{a + 3}')
        self.unpack(a, out, 2)
        for k in range(4):
            p.I(f'v_add_f32 v{a + k}, s{sdelta}, v{a + k}')
        p.I(f'v_cvt_pk_bf16_f32 v{out}, v{a}, v{a + 1}\nv_cvt_pk_bf16_f32 v{out + 1}, v{a + 2}, v{a + 3}')

    def stop_here(self, name):
        if self.o.stop == name:
            self.p.I('s_branch L_fin')
            return True
        return False

    def entry(self):
        p = self.p
        nt = self.o.nt
        p.I('s_cmp_ge_u32 s2, 256\ns_cbranch_scc1 L_end')
        if self.o.stamps:
            p.sm('s_memrealtime s[94:95]')
        p.sm(f's_load_dwordx4 s[{P_DBG}:{P_DBG + 3}], s[0:1], 96')
        p.sm(f's_load_dwordx8 s[{P_WOUT}:{P_WOUT + 7}], s[0:1], 64')
        p.sm(f's_load_dwordx16 s[{P_X}:{P_X + 15}], s[0:1], 0')
        p.I(f"""s_and_b32 s{sX}, s2, 7
s_lshr_b32 s{sI}, s2, 3
s_lshl_b32 s3, s{sX}, 5
s_add_u32 s{sROLE}, s3, s{sI}
v_and_b32 v{vLANE}, 63, v0
v_lshrrev_b32 v4, 6, v0
v_lshlrev_b32 v{vL16}, 4, v{vLANE}
v_readfirstlane_b32 s{sW}, v4
s_mov_b32 s{sK2}, 0x20000
s_lshr_b32 s{sR}, s{sROLE}, 4
s_and_b32 s{sC}, s{sROLE}, 15
s_lshr_b32 s{sRB}, s{sROLE}, 3
s_and_b32 s{sJ}, s{sROLE}, 7
s_mov_b32 s{sSPIN}, 400000
v_and_b32 v8, 7, v{vLANE}
v_lshrrev_b32 v9, 3, v0
v_mul_u32_u24 v10, 1280, v8
v_lshl_add_u32 v10, v9, 4, v10
s_cmp_lt_u32 s{sI}, 10
s_cbranch_scc0 L_iw1""")
        p.cond = True
        p.I(f"""s_mul_i32 s{sT9}, s{sX}, 10
s_add_u32 s{sT9}, s{sT9}, s{sI}
s_and_b32 s{T0}, s{sT9}, 3
s_mul_i32 s{T1}, s{T0}, {160 * 7680}
s_mul_i32 s{T2}, s{T0}, 320
s_lshr_b32 s{T0}, s{sT9}, 2
s_lshl_b32 s{T0}, s{T0}, 7
s_add_u32 s{T1}, s{T1}, s{T0}
v_mul_u32_u24 v5, 7680, v9
v_lshl_add_u32 v5, v8, 4, v5
v_lshlrev_b32 v6, 1, v9""")
        p.wait_lgkm_all()
        a = self.srd(SA, P_WMOD, 640 * 7680)
        for k in range(5):
            p.vm(f'buffer_load_dwordx4 v[{136 + 4 * k}:{139 + 4 * k}], v5, {a}, s{T1} offen{nt}')
            if k < 4:
                p.I(f's_add_u32 s{T1}, s{T1}, {32 * 7680}')
        b = self.srd(SB, P_C, 1280)
        for k in range(5):
            self.t_g1 = p.vm(f'buffer_load_ushort v{156 + k}, v6, {b}, s{T2} offen offset:{64 * k}')
        p.I('s_branch L_icommon')
        p.L('L_iw1')
        p.I(f"""s_mul_i32 s{sT9}, s{sX}, 20
s_add_u32 s{sT9}, s{sT9}, s{sI}
s_sub_u32 s{sT9}, s{sT9}, 12
v_min_u32 v12, 59, v{vLANE}
v_mul_u32_u24 v13, 13, v12
v_lshrrev_b32 v13, 8, v13
v_mul_u32_u24 v14, 960, v13
v_lshl_add_u32 v14, v12, 4, v14
v_add_u32 v14, 1280, v14
v_subrev_u32 v15, 3840, v14
v_cmp_eq_u32 vcc, 2, v13
v_cndmask_b32 v14, v14, v15, vcc
s_lshr_b32 s{T0}, s{sT9}, 2
s_lshl_b32 s{T0}, s{T0}, 4
s_add_u32 s{T0}, s{T0}, s{sW}
s_mul_i32 s{T0}, s{T0}, 3840
s_and_b32 s{T1}, s{sT9}, 3
s_mul_i32 s{T1}, s{T1}, 320
s_add_u32 s{T0}, s{T0}, s{T1}
s_cmp_ge_u32 s{sI}, 12
s_cselect_b32 s{T0}, s{T0}, {OOB}
s_cselect_b32 s{sT10}, 0, {OOB}
s_lshl_b32 s{T1}, s{sW}, 10
s_add_u32 s{T1}, s{T1}, {L_STG_W1}""")
        p.wait_lgkm_all()
        wq = self.srd(SA, P_WQKV, 640 * 3840)
        for k in range(4):
            p.I(f's_mov_b32 m0, s{T1}')
            p.vm(f'buffer_load_dwordx4 v14, {wq}, s{T0} offen{nt} lds')
            if k < 3:
                p.I(f's_add_u32 s{T0}, s{T0}, {4 * 3840}\ns_add_u32 s{T1}, s{T1}, 4096')
        wo = self.srd(SB, P_WO, 640 * 1280)
        p.I(f"""v_and_b32 v11, 15, v{vLANE}
v_min_u32 v12, 9, v11
v_lshlrev_b32 v12, 4, v12
v_lshrrev_b32 v13, 4, v0
v_and_b32 v15, 7, v13
v_lshrrev_b32 v13, 3, v13
s_lshr_b32 s{T0}, s{sT9}, 3
s_lshl_b32 s{T0}, s{T0}, 2
s_and_b32 s{T2}, s{sT9}, 7
s_mul_i32 s{T2}, s{T2}, 160
s_add_u32 s{T2}, s{T2}, s{sT10}
s_lshl_b32 s{T1}, s{sW}, 10
s_add_u32 s{T1}, s{T1}, {L_STG_WO}""")
        for k in range(2):
            p.I(f"""v_add_u32 v31, s{T0}, v13
v_mul_u32_u24 v32, 205, v31
v_lshrrev_b32 v32, 10, v32
v_mul_u32_u24 v33, 5, v32
v_sub_u32 v33, v31, v33
v_lshl_add_u32 v34, v33, 3, v15
v_add_u32 v35, 4, v34
v_cmp_lt_u32 vcc, 1, v33
v_cndmask_b32 v34, v34, v35, vcc
v_add_u32 v35, 16, v15
v_add_u32 v36, 32, v15
v_cmp_lt_u32 vcc, 3, v15
v_cndmask_b32 v35, v35, v36, vcc
v_cmp_eq_u32 vcc, 4, v33
v_cndmask_b32 v34, v34, v35, vcc
v_mul_u32_u24 v32, 40, v32
v_add_u32 v34, v34, v32
v_mul_u32_u24 v34, 1280, v34
v_add_u32 v34, v34, v12
s_mov_b32 m0, s{T1}""")
            self.t_raw = p.vm(f'buffer_load_dwordx4 v34, {wo}, s{T2} offen{nt} lds')
            if k == 0:
                p.I(f's_add_u32 s{T0}, s{T0}, 2\ns_add_u32 s{T1}, s{T1}, 4096')
        p.cond = False
        p.L('L_icommon')
        p.wait_lgkm_all()
        if self.o.stamps:
            p.I(f'v_mov_b32 v{vSTAMP}, 0\nv_writelane_b32 v{vSTAMP}, s94, 0')
            self.stamp_names.append('entry')
            self.nstamp = 1
            self.stamp('role_iss')
        p.sm(f's_load_dword s{sTAG}, s[{P_WS}:{P_WS + 1}], {WS_EPOCH}')
        xs = self.srd(SA, P_X, 2048 * 1280)
        p.I(f"""s_mul_i32 s{T0}, s{sROLE}, {8 * 1280}
s_cmp_lt_u32 s{sW}, 2
s_cselect_b32 s{T1}, s{T0}, {OOB}""")
        for k in range(3):
            self.t_x = p.vm(f'buffer_load_dwordx4 v[{48 + 4 * k}:{51 + 4 * k}], v10, {xs}, s{T0 if k < 2 else T1} offen offset:{512 * k}')
        p.I(f"""s_getpc_b64 s[{sM}:{sM + 1}]
s_lshl_b32 s{T0}, s{sI}, 2
s_add_u32 s{T0}, s{T0}, s{sW}
s_lshl_b32 s{T0}, s{T0}, 9
v_and_b32 v7, 3, v{vLANE}
v_lshlrev_b32 v7, 7, v7
v_add_u32 v7, s{T0}, v7
v_min_u32 v7, (L_end-L_pc0), v7""")
        p.L('L_pc0')
        p.vm(f'global_load_dword v63, v7, s[{sM}:{sM + 1}]')
        self.srd(S_WS, P_WS, WS_USED)
        wp = self.srd(SB, P_WPHI, 32 * 800)
        p.I(f"""v_lshlrev_b32 v31, 4, v0
v_min_u32 v31, 1584, v31
s_mul_i32 s{T0}, s{sC}, 1600
s_lshl_b32 s{T1}, s{sW}, 10
s_cmp_lt_u32 s{sW}, 2
s_cselect_b32 s{T1}, s{T1}, {(L_DUMMY - L_WPH) & 0xffffffff}
s_add_u32 s{T1}, s{T1}, {L_WPH}
s_mov_b32 m0, s{T1}""")
        p.vm(f'buffer_load_dwordx4 v31, {wp}, s{T0} offen lds')
        p.I(f"""v_mov_b32 v46, 0
v_mov_b32 v47, 0
v_lshlrev_b32 v45, 3, v0
v_add_u32 v45, {L_ZERO}, v45""")
        p.ds('ds_write_b64 v45, v[46:47]')
        p.wait_lgkm_all()
        p.I(f"""s_mul_i32 s{sTAG}, s{sTAG}, 0x2c1b3c6d
s_add_u32 s{sTAG}, s{sTAG}, 0x297a2d39
s_mov_b32 s{sTAG + 1}, s{sTAG}
s_mov_b32 s{sMODE}, 0""")
        if self.o.local:
            p.I(f"""s_getreg_b32 s{T0}, hwreg(HW_REG_XCC_ID, 0, 4)
s_lshl_b32 s{T1}, s{sROLE}, 2
s_add_u32 s{T1}, s{T1}, {F_HELLO}
s_add_u32 s{sCA}, s{T0}, s{sTAG}
s_add_u32 s{sCA}, s{sCA}, 1""")
            self.wave0(T1, T1)
            p.I(f'v_mov_b32 v45, s{sCA}\ns_mov_b64 exec, 1')
            p.vm(f'buffer_store_dword v45, v46, {WS}, s{T1} offen sc1')
            p.I('s_mov_b64 exec, -1')
        self.stamp('issued')

    def gemv(self, n, data, cval, scr):
        p = self.p
        for k in range(n):
            self.silu_pack(cval + k, 112 + 2 * k, 113 + 2 * k, 111)
        for c in range(8):
            p.I(f'v_mov_b32 v{124 + c}, 0')
        for k in range(n):
            for d in range(4):
                p.I(f'v_dot2c_f32_bf16 v{124 + 2 * d}, v{data + 4 * k + d}, v{112 + 2 * k}\n'
                    f'v_dot2c_f32_bf16 v{125 + 2 * d}, v{data + 4 * k + d}, v{113 + 2 * k}')
        self.merge8(124)
        self.dpp_add((124, 128), 'row_ror:8')
        p.I(f"""v_and_b32 v111, 7, v{vLANE}
v_lshrrev_b32 v112, 4, v{vLANE}
v_lshl_add_u32 v111, v111, 3, v112
v_lshlrev_b32 v111, 2, v111
s_lshl_b32 s{T0}, s{sW}, 8
s_add_u32 s{T0}, s{T0}, {scr}
v_add_u32 v111, s{T0}, v111""")
        p.ds('ds_write_b32 v111, v124')
        p.ds('ds_write_b32 v111, v128 offset:16')
        p.I(f'v_min_u32 v111, 21, v{vLANE}\nv_mul_u32_u24 v112, 12, v111\nv_add_u32 v112, {scr}, v112')

    def gemv_pub(self, soff):
        p = self.p
        for w in range(4):
            p.ds(f'ds_read2_b32 v[{114 + 4 * w}:{115 + 4 * w}], v112 offset0:{64 * w} offset1:{64 * w + 1}')
            t = p.ds(f'ds_read_b32 v{116 + 4 * w}, v112 offset:{256 * w + 8}')
        self.wave0(soff, soff)
        p.I(f'v_lshlrev_b32 v111, 4, v111\nv_mov_b32 v135, s{sTAG}')
        p.wait(ds=t, force=True)
        for d in range(3):
            p.I(f'v_add_f32 v{114 + d}, v{114 + d}, v{118 + d}\nv_add_f32 v{122 + d}, v{122 + d}, v{126 + d}')
        for d in range(3):
            p.I(f'v_add_f32 v{132 + d}, v{114 + d}, v{122 + d}')
        p.I('s_mov_b32 exec_lo, 0x3fffff\ns_mov_b32 exec_hi, 0')
        p.vm(f'buffer_store_dwordx4 v[132:135], v111, {WS}, s{soff} offen sc1')
        p.I('s_mov_b64 exec, -1')

    def trbase16(self, dst, rowbytes, t):
        sh = rowbytes.bit_length() - 1
        self.p.I(f"""v_lshrrev_b32 v{dst}, 4, v{vLANE}
v_bfe_u32 v{t}, v{vLANE}, 2, 2
v_lshl_add_u32 v{dst}, v{dst}, 3, v{t}
v_lshlrev_b32 v{dst}, {sh}, v{dst}
v_and_b32 v{t}, 3, v{vLANE}""")

    def repack5_addr(self, stg):
        p = self.p
        self.trbase16(31, 256, 32)
        p.I(f"""s_lshl_b32 s{T0}, s{sW}, 3
s_add_u32 s{T0}, s{T0}, {stg}
v_lshl_add_u32 v33, v32, 5, v31
v_add_u32 v33, s{T0}, v33
v_lshl_add_u32 v34, v32, 3, v31
v_add_u32 v34, {stg + 128}, v34""")

    def repack5(self, sdst, fr):
        p = self.p
        p.ds(f'ds_read_b64_tr_b16 v[{fr}:{fr + 1}], v33')
        t1 = p.ds(f'ds_read_b64_tr_b16 v[{fr + 2}:{fr + 3}], v33 offset:1024')
        p.ds(f'ds_read_b64_tr_b16 v[{fr + 4}:{fr + 5}], v34')
        t2 = p.ds(f'ds_read_b64_tr_b16 v[{fr + 6}:{fr + 7}], v34 offset:1024')
        p.I(f"""s_lshl_b32 s{T1}, s{sW}, 10
s_add_u32 s{T1}, s{T1}, s{sdst}
s_add_u32 s{T0}, s{sdst}, 4096""")
        self.wave0(T0, T0)
        p.wait(ds=t2, force=True)
        p.vm(f'buffer_store_dwordx4 v[{fr}:{fr + 3}], v{vL16}, {WS}, s{T1} offen sc1')
        return p.vm(f'buffer_store_dwordx4 v[{fr + 4}:{fr + 7}], v{vL16}, {WS}, s{T0} offen sc1')

    def flag_ks(self, base, nvalid):
        self.p.I(f"""s_lshl_b32 s{T0}, s{sJ}, 7
s_lshl_b32 s{T1}, s{sRB}, 2
s_add_u32 s{T0}, s{T0}, s{T1}
s_add_u32 s{T0}, s{T0}, {base}
s_cmp_lt_u32 s{sRB}, {nvalid}
s_cselect_b32 s{T0}, s{T0}, {OOB}""")
        self.wave0(T0, T0)

    def roles(self):
        p = self.p
        p.I(f"""v_bfe_u32 v41, v{vLANE}, 4, 1
v_bfe_u32 v42, v{vLANE}, 1, 1
v_lshl_add_u32 v41, v41, 1, v42
v_lshlrev_b32 v41, 2, v41
v_and_b32 v42, 1, v{vLANE}
v_bfe_u32 v43, v{vLANE}, 2, 2
v_lshrrev_b32 v44, 5, v{vLANE}
s_cmp_lt_u32 s{sI}, 10
s_cbranch_scc0 L_rw1""")
        p.cond = True
        p.wait(vm=self.t_g1)
        self.gemv(5, 136, 156, L_SCR_G1)
        p.I(f's_mul_i32 s{T2}, s{sT9}, 384\ns_add_u32 s{T2}, s{T2}, {MODG}')
        p.wait_lgkm_all()
        p.I('s_barrier')
        self.gemv_pub(T2)
        p.I(f's_mov_b32 s{T6}, {OOB}\ns_mov_b32 s{T7}, {OOB}\ns_branch L_rcommon')
        p.L('L_rw1')
        p.I(f"""v_lshl_add_u32 v35, v44, 3, v43
v_lshlrev_b32 v35, 10, v35
v_mul_u32_u24 v36, 40, v42
s_mul_i32 s{T0}, s{sW}, 80
s_add_u32 s{T0}, s{T0}, {L_STG_W1}
v_add3_u32 v35, v35, v36, s{T0}""")
        for T in range(4):
            p.I(f"""v_add_u32 v36, {16 * T}, v41
v_mul_u32_u24 v37, 13, v36
v_lshrrev_b32 v37, 8, v37
v_mul_u32_u24 v37, 280, v37
v_lshl_add_u32 v37, v36, 1, v37
v_add_u32 v{16 + T}, v37, v35""")
        self.repack5_addr(L_STG_WO)
        p.I(f"""s_and_b32 s{T0}, s{sT9}, 3
s_lshl_b32 s{T6}, s{T0}, 8
s_lshl_b32 s{T0}, s{T0}, 2
s_add_u32 s{T0}, s{T0}, s{sW}
s_lshr_b32 s{T1}, s{sT9}, 2
s_mul_i32 s{T2}, s{T0}, 0x1e000
s_mul_i32 s{T3}, s{T1}, 3072
s_add_u32 s{T2}, s{T2}, s{T3}
s_add_u32 s{T2}, s{T2}, {W1M}
s_add_u32 s{T2}, s{T2}, s{sT10}
s_mul_i32 s{T3}, s{T0}, 0xa000
s_lshl_b32 s{T4}, s{T1}, 10
s_add_u32 s{T3}, s{T3}, s{T4}
s_add_u32 s{T3}, s{T3}, {W1T}
s_add_u32 s{T3}, s{T3}, s{sT10}
s_lshl_b32 s{T1}, s{T1}, 2
s_add_u32 s{T6}, s{T6}, s{T1}
s_add_u32 s{T6}, s{T6}, {F_W1}
s_add_u32 s{T6}, s{T6}, s{sT10}
s_and_b32 s{T0}, s{sT9}, 7
s_lshr_b32 s{T1}, s{sT9}, 3
s_mul_i32 s{T4}, s{T0}, 0x19000
s_mul_i32 s{T5}, s{T1}, 5120
s_add_u32 s{T4}, s{T4}, s{T5}
s_add_u32 s{T4}, s{T4}, {WOF}
s_add_u32 s{T4}, s{T4}, s{sT10}
s_lshl_b32 s{T7}, s{T0}, 7
s_lshl_b32 s{T1}, s{T1}, 2
s_add_u32 s{T7}, s{T7}, s{T1}
s_add_u32 s{T7}, s{T7}, {F_WO}
s_add_u32 s{T7}, s{T7}, s{sT10}""")
        p.wait(vm=self.t_raw)
        p.I('s_barrier')
        for T in range(4):
            p.ds(f'ds_read_b64_tr_b16 v[{180 + 4 * T}:{181 + 4 * T}], v{16 + T}')
            t = p.ds(f'ds_read_b64_tr_b16 v[{182 + 4 * T}:{183 + 4 * T}], v{16 + T} offset:4096')
        p.wait(ds=t, force=True)
        for T in range(3):
            p.vm(f'buffer_store_dwordx4 v[{180 + 4 * T}:{183 + 4 * T}], v{vL16}, {WS}, s{T2} offen offset:{1024 * T} sc1')
        p.vm(f'buffer_store_dwordx4 v[192:195], v{vL16}, {WS}, s{T3} offen sc1')
        self.t_rp = self.repack5(T4, 196)
        p.cond = False
        p.L('L_rcommon')
        self.stamp('role_done')
        ws_ = self.srd(SA, P_WSP, 2048 * 4096)
        p.I(f"""v_and_b32 v31, 31, v{vLANE}
v_xor_b32 v31, v31, v44
v_lshlrev_b32 v31, 4, v31
v_lshl_add_u32 v31, v44, 12, v31
s_lshl_b32 s{T0}, s{sRB}, 18
s_lshl_b32 s{T1}, s{sJ}, 9
s_add_u32 s{T0}, s{T0}, s{T1}
s_lshl_b32 s{T1}, s{sW}, 16
s_add_u32 s{T0}, s{T0}, s{T1}
s_lshl_b32 s{T1}, s{sW}, 13
s_add_u32 s{T1}, s{T1}, {L_STG_WS}""")
        for n in range(8):
            p.I(f's_mov_b32 m0, s{T1}')
            if n:
                p.I(f'v_xor_b32 v{32 + (n & 1)}, {32 * n}, v31')
            p.vm(f'buffer_load_dwordx4 v{32 + (n & 1) if n else 31}, {ws_}, s{T0} offen{self.o.nt} lds')
            if n < 7:
                p.I(f's_add_u32 s{T0}, s{T0}, 8192\ns_add_u32 s{T1}, s{T1}, 1024')
        p.I(f"""v_lshlrev_b32 v12, 9, v9
v_lshl_add_u32 v12, v8, 4, v12
s_lshr_b32 s{T3}, s{sROLE}, 2
s_mul_i32 s{T3}, s{T3}, 40960
s_and_b32 s{T4}, s{sROLE}, 3
s_lshl_b32 s{T4}, s{T4}, 7
s_add_u32 s{T3}, s{T3}, s{T4}
s_add_u32 s{T3}, s{T3}, {HF}
s_add_u32 s{T4}, s{T3}, 16384
s_add_u32 s{T5}, s{T3}, 32768
s_cmp_lt_u32 s{sW}, 2
s_cselect_b32 s{T5}, s{T5}, {OOB}""")
        if self.o.local:
            for so in (T3, T4, T5):
                p.vm(f'buffer_load_dword v63, v12, {WS}, s{so} offen sc1')
            p.I(f"""v_lshrrev_b32 v31, 4, v{vLANE}
v_lshlrev_b32 v31, 12, v31
v_mov_b32 v32, s{sRB}
v_lshl_add_u32 v32, v32, 7, v31
v_mov_b32 v33, s{sR}
v_lshlrev_b32 v34, 7, v33
v_lshl_add_u32 v33, v33, 8, v31
v_lshl_add_u32 v33, v42, 7, v33
v_cmp_gt_u32 vcc, 32, v{vLANE}
v_cndmask_b32 v32, v32, v33, vcc
v_cmp_gt_u32 vcc, 16, v{vLANE}
v_cndmask_b32 v32, v32, v34, vcc
s_mov_b32 s{T0}, {F_H}""")
            p.vm(f'buffer_load_dword v63, v32, {WS}, s{T0} offen sc1')

    def ln_stats(self):
        p = self.p
        p.wait(vm=self.t_x)
        p.I('v_mov_b32 v16, 0\nv_mov_b32 v17, 0\nv_mov_b32 v18, 0x3f803f80')
        for k in range(12):
            p.I(f'v_dot2c_f32_bf16 v16, v{48 + k}, v18\nv_dot2c_f32_bf16 v17, v{48 + k}, v{48 + k}')
        self.dpp_add((16, 17), 'row_ror:8')
        p.I(f"""v_permlane16_swap_b32 v16, v17
v_add_f32 v16, v16, v17
v_mov_b32 v17, v16
v_permlane32_swap_b32 v16, v17
v_add_f32 v16, v16, v17
v_bfe_u32 v18, v{vLANE}, 4, 1
v_lshlrev_b32 v18, 5, v18
v_lshl_add_u32 v18, v8, 2, v18
s_lshl_b32 s{T0}, s{sW}, 6
s_add_u32 s{T0}, s{T0}, {L_SCR_LN}
v_add_u32 v18, s{T0}, v18""")
        p.ds('ds_write_b32 v18, v16')
        p.I(f"""v_mul_u32_u24 v36, 800, v42
v_mul_u32_u24 v37, 40, v43
v_add_u32 v36, v36, v37
v_lshl_add_u32 v36, v41, 1, v36
v_add_u32 v36, {L_WPH}, v36
v_mov_b32 v39, {L_ZERO}
v_cmp_eq_u32 vcc, v42, v44
v_cndmask_b32 v37, v39, v36, vcc
v_add_u32 v38, 32, v37
v_cmp_eq_u32 vcc, 0, v41
v_cndmask_b32 v38, v39, v38, vcc""")
        self.wave0(T6, T6)
        self.wave0(T7, T7)
        self.unpack(96, 48, 12)
        p.wait(vm=self.t_rp)
        p.wait_lgkm_all()
        p.I('s_barrier')
        self.flag(T6, 46, False)
        self.flag(T7, 46, False)
        self.stamp('w1_pub')
        p.I(f'v_lshlrev_b32 v18, 2, v8\nv_add_u32 v18, {L_SCR_LN}, v18')
        for w in range(4):
            t = p.ds(f'ds_read2_b32 v[{20 + 2 * w}:{21 + 2 * w}], v18 offset0:{16 * w} offset1:{16 * w + 8}')
        for mt in range(2):
            for kap in range(3):
                fr = 232 + 12 * mt + 4 * kap
                p.ds(f'ds_read_b64_tr_b16 v[{fr}:{fr + 1}], v{37 + mt} offset:{320 * kap}')
                if kap < 2:
                    p.ds(f'ds_read_b64_tr_b16 v[{fr + 2}:{fr + 3}], v{37 + mt} offset:{320 * kap + 160}')
                else:
                    p.I(f'v_mov_b32 v{fr + 2}, 0\nv_mov_b32 v{fr + 3}, 0')
        p.wait(ds=t)
        p.I("""v_add_f32 v20, v20, v22
v_add_f32 v21, v21, v23
v_add_f32 v24, v24, v26
v_add_f32 v25, v25, v27
v_add_f32 v16, v20, v24
v_add_f32 v17, v21, v25""")
        self.rstd(16, 17, 640)
        for e in range(24):
            p.I(f'v_fma_f32 v{96 + e}, v{96 + e}, v17, v16')
        for e in range(24):
            if e % 2 == 0:
                p.I(f'v_cvt_pk_bf16_f32 v{64 + e}, v{96 + e}, 0')
            else:
                p.I(f'v_cvt_pk_bf16_f32 v{64 + e}, 0, v{96 + e}')
        self.stamp('ln_done')

    def pretouch(self, texts):
        if self.o.local:
            for t in texts:
                self.p.vm(t)

    def mod_finish(self, data, nset, npart, vdelta, vlds):
        p = self.p
        for s_ in range(nset):
            b = data + 4 * npart * s_
            for k in range(1, npart):
                for d in range(3):
                    p.I(f'v_add_f32 v{b + d}, v{b + d}, v{b + 4 * k + d}')
            p.I(f"""v_cvt_pk_bf16_f32 v{b + 4}, v{b}, v{b + 1}
v_cvt_pk_bf16_f32 v{b + 5}, v{b + 2}, v{b + 2}
v_lshlrev_b32 v{b}, 16, v{b + 4}
v_and_b32 v{b + 1}, 0xffff0000, v{b + 4}
v_lshlrev_b32 v{b + 2}, 16, v{b + 5}
v_add_f32 v{b}, v{b}, v{vdelta + s_}
v_add_f32 v{b + 1}, v{b + 1}, v{vdelta + s_}
v_add_f32 v{b + 2}, v{b + 2}, v{vdelta + s_}
v_cvt_pk_bf16_f32 v{b + 4}, v{b}, v{b + 1}
v_cvt_pk_bf16_f32 v{b + 5}, v{b + 2}, v{b + 2}""")
            p.ds(f'ds_write_b16 v{vlds + s_}, v{b + 4}')
            p.ds(f'ds_write_b16_d16_hi v{vlds + s_}, v{b + 4} offset:2')
            p.ds(f'ds_write_b16 v{vlds + s_}, v{b + 5} offset:4')

    def make_h(self):
        p = self.p
        for s_ in range(2):
            p.I(f"""v_add_u32 v31, {256 * s_}, v0
v_min_u32 v31, 439, v31
v_mul_u32_u24 v32, 2979, v31
v_lshrrev_b32 v32, 16, v32
v_mul_u32_u24 v33, 22, v32
v_sub_u32 v33, v31, v33
v_mul_u32_u24 v34, 1536, v32
v_lshl_add_u32 v{20 + s_}, v33, 4, v34
v_mul_u32_u24 v34, 144, v32
v_mul_u32_u24 v33, 6, v33
v_add3_u32 v{22 + s_}, v33, v34, s{T2}
v_cmp_lt_u32 vcc, 9, v32
v_cndmask_b32 v{24 + s_}, 0, 1.0, vcc""".replace('v_mul_u32_u24 v34, 144, v32', f's_mov_b32 s{T2}, {L_MOD}\nv_mul_u32_u24 v34, 144, v32'))
        p.I(f"""v_min_u32 v26, 39, v{vLANE}
v_lshlrev_b32 v26, 2, v26
v_and_b32 v27, 31, v{vLANE}
v_lshlrev_b32 v27, 2, v27
v_lshrrev_b32 v13, 3, v9
v_mul_u32_u24 v13, 144, v13
v_and_b32 v28, 7, v9
v_lshl_add_u32 v13, v28, 4, v13
v_add_u32 v13, {L_MOD}, v13
s_mov_b32 s{T0}, {MODG}
s_lshr_b32 s{T1}, s{sC}, 2
s_lshl_b32 s{T1}, s{T1}, 8
s_add_u32 s{T1}, s{T1}, {F_W1}
s_lshl_b32 s{T2}, s{sX}, 7
s_add_u32 s{T2}, s{T2}, {F_HELLO}
s_add_u32 s{T6}, s{sTAG}, 1
v_mov_b32 v29, s{sTAG}""")
        loop, done = p.newlabel('mg'), p.newlabel('mgd')
        p.L(loop)
        for s_ in range(2):
            for k in range(4):
                r = 96 + 16 * s_ + 4 * k
                p.vm(f'buffer_load_dwordx4 v[{r}:{r + 3}], v{20 + s_}, {WS}, s{T0} offen offset:{384 * k} sc1')
        p.vm(f'buffer_load_dword v30, v26, {WS}, s{T1} offen sc1')
        if self.o.local:
            p.vm(f'buffer_load_dword v31, v27, {WS}, s{T2} offen sc1')
        p.wait_vm_all()
        p.I('v_xor_b32 v30, v30, v29')
        for n in range(8):
            p.I(f'v_bitop3_b32 v30, v30, v{99 + 4 * n}, v29 bitop3:0xf6')
        if self.o.local:
            p.I(f'v_subrev_u32 v32, s{T6}, v31\nv_lshrrev_b32 v32, 4, v32\nv_or_b32 v30, v30, v32')
        p.I(f'v_cmp_ne_u32 vcc, 0, v30\ns_cmp_eq_u64 vcc, 0\ns_cbranch_scc1 {done}')
        self.spin_tail(loop, done)
        self.stamp('mod_in')
        self.mod_finish(96, 2, 4, 24, 22)
        if self.o.local:
            p.I(f'v_cmp_ne_u32 vcc, s{sCA}, v31\ns_cmp_eq_u64 vcc, 0\ns_cselect_b32 s{sMODE}, 1, 0')
        p.wait_lgkm_all()
        p.I('s_barrier')
        toks = []
        for k in range(3):
            p.ds(f'ds_read_b128 v[{96 + 8 * k}:{99 + 8 * k}], v13 offset:{576 * k}')
            toks.append(p.ds(f'ds_read_b128 v[{100 + 8 * k}:{103 + 8 * k}], v13 offset:{576 * k + 1440}'))
        for k in range(3):
            p.wait(ds=toks[k])
            self.unpack(144 + 8 * k, 96 + 8 * k, 4)
            for e in range(8):
                p.I(f'v_dot2c_f32_bf16 v{144 + 8 * k + e}, v{64 + 8 * k + e}, v{100 + 8 * k + (e >> 1)}')
        for k in range(3):
            for d in range(4):
                p.I(f'v_cvt_pk_bf16_f32 v{168 + 4 * k + d}, v{144 + 8 * k + 2 * d}, v{145 + 8 * k + 2 * d}')
        t = self.lstores([f'buffer_store_dwordx4 v[{168 + 4 * k}:{171 + 4 * k}], v12, {WS}, s{so} offen'
                          for k, so in enumerate((T3, T4, T5))])
        p.I(f"""s_and_b32 s{sT10}, s{sR}, 1
s_mul_i32 s{T7}, s{sC}, 0x1e000
s_mul_i32 s{T8}, s{sW}, 3072
s_add_u32 s{T7}, s{T7}, s{T8}
s_mul_i32 s{T0}, s{sT10}, 61440
s_add_u32 s{T7}, s{T7}, s{T0}
s_add_u32 s{T7}, s{T7}, {W1M}""")
        self.chunk_tok = []
        for _ in range(self.LA_C):
            self.issue_chunk()
        p.I(f"""v_and_b32 v31, 31, v{vLANE}
v_and_b32 v32, 15, v{vLANE}
s_lshl_b32 s{T0}, s{sW}, 3
v_add_u32 v33, s{T0}, v44
v_xor_b32 v33, v33, v32
v_lshlrev_b32 v33, 4, v33
v_lshl_add_u32 v33, v31, 9, v33
v_add_u32 v33, {L_STG_WS}, v33""")
        for ks in range(4):
            if ks:
                p.I(f'v_xor_b32 v{33 + ks}, {32 * ks}, v33')
            for tt in range(2):
                r = 212 + 8 * ks + 4 * tt
                p.ds(f'ds_read_b128 a[{r}:{r + 3}], v{33 + ks} offset:{16384 * tt}')
        p.I(f"""s_lshl_b32 s{T0}, s{sR}, 7
s_lshl_b32 s{T1}, s{sC}, 2
s_add_u32 s{T0}, s{T0}, s{T1}
s_add_u32 s{T0}, s{T0}, {F_H}""")
        self.wave0(T0, T0)
        p.wait(vm=t)
        p.wait_lgkm_all()
        p.I('s_barrier')
        self.flag(T0, 46, True)
        self.stamp('h_pub')

    LA_C = 3

    def issue_chunk(self):
        p = self.p
        self.chunk_tok.append(self.dma(T7, T8, 3))
        p.I(f's_add_u32 s{T7}, s{T7}, 12288\ns_add_u32 s{T8}, s{T8}, 12288')
        if len(self.chunk_tok) == 5:
            p.I(f's_mul_i32 s{T0}, s{sT10}, 122880\ns_sub_u32 s{T7}, s{T7}, s{T0}')

    def raw_loads(self):
        p = self.p
        nt = self.o.nt
        wi = self.srd(SA, P_WIN, 640 * 3072)
        p.I(f"""v_and_b32 v4, 31, v{vLANE}
v_min_u32 v4, 23, v4
v_lshlrev_b32 v5, 4, v4
v_add_u32 v6, 1536, v5
v_subrev_u32 v5, 192, v5
v_cmp_gt_u32 vcc, 12, v4
v_cndmask_b32 v5, v5, v6, vcc
v_lshrrev_b32 v6, 5, v0
v_mul_u32_u24 v6, 3072, v6
v_add_u32 v5, v5, v6
s_mul_i32 s{T0}, s{sRB}, {32 * 3072}
s_mul_i32 s{T1}, s{sJ}, 192
s_add_u32 s{T0}, s{T0}, s{T1}
s_cmp_lt_u32 s{sRB}, 20
s_cselect_b32 s{T0}, s{T0}, {OOB}""")
        for k in range(4):
            p.vm(f'buffer_load_dwordx4 a[{160 + 4 * k}:{163 + 4 * k}], v5, {wi}, s{T0} offen{nt}')
            if k < 3:
                p.I(f's_add_u32 s{T0}, s{T0}, {8 * 3072}')
        wm = self.srd(SB, P_WMOD, 640 * 7680)
        p.I(f"""v_lshrrev_b32 v7, 3, v0
v_lshlrev_b32 v8, 1, v7
v_mul_u32_u24 v7, 7680, v7
v_and_b32 v4, 7, v0
v_lshl_add_u32 v7, v4, 4, v7
s_mul_i32 s{sT9}, s{sX}, 25
s_add_u32 s{sT9}, s{sT9}, s{sI}
s_mul_i32 s{T0}, s{sT9}, 205
s_lshr_b32 s{T0}, s{T0}, 10
s_mul_i32 s{T1}, s{T0}, 5
s_sub_u32 s{T1}, s{sT9}, s{T1}
s_lshl_b32 s{T2}, s{T1}, 8
s_mul_i32 s{T1}, s{T1}, {128 * 7680}
s_lshl_b32 s{T0}, s{T0}, 7
s_add_u32 s{T0}, s{T0}, s{T1}
s_add_u32 s{T0}, s{T0}, 2560
s_cmp_lt_u32 s{sI}, 25
s_cselect_b32 s{T0}, s{T0}, {OOB}""")
        for k in range(4):
            p.vm(f'buffer_load_dwordx4 a[{184 + 4 * k}:{187 + 4 * k}], v7, {wm}, s{T0} offen{nt}')
            if k < 3:
                p.I(f's_add_u32 s{T0}, s{T0}, {32 * 7680}')
        cs = self.srd(SA, P_C, 1280)
        for k in range(4):
            p.vm(f'buffer_load_ushort a{200 + k}, v8, {cs}, s{T2} offen offset:{64 * k}')
        wu = self.srd(SB, P_WOUT, 768 * 1280)
        p.I(f"""v_and_b32 v4, 15, v{vLANE}
v_min_u32 v4, 9, v4
v_lshrrev_b32 v6, 4, v0
v_mul_u32_u24 v6, 1280, v6
v_lshl_add_u32 v6, v4, 4, v6
s_mul_i32 s{T0}, s{sRB}, {32 * 1280}
s_mul_i32 s{T1}, s{sJ}, 160
s_add_u32 s{T0}, s{T0}, s{T1}
s_cmp_lt_u32 s{sRB}, 24
s_cselect_b32 s{T0}, s{T0}, {OOB}
s_add_u32 s{T1}, s{T0}, {16 * 1280}""")
        for k in range(2):
            self.t_rawp1 = p.vm(f'buffer_load_dwordx4 a[{176 + 4 * k}:{179 + 4 * k}], v6, {wu}, s{T0 + k} offen{nt}')

    def check_flags(self, tok, vval, vaddr, soff):
        p = self.p
        loop, done = p.newlabel('cf'), p.newlabel('cfd')
        p.wait(vm=tok)
        p.I(f'v_cmp_ne_u32 vcc, s{sTAG}, v{vval}\ns_cmp_eq_u64 vcc, 0\ns_cbranch_scc1 {done}')
        p.L(loop)
        p.vm(f'buffer_load_dword v{vval}, v{vaddr}, {WS}, s{soff} offen sc1', count=False)
        p.I(f's_waitcnt vmcnt(0)\nv_cmp_ne_u32 vcc, s{sTAG}, v{vval}\ns_cmp_eq_u64 vcc, 0\ns_cbranch_scc1 {done}')
        self.spin_tail(loop, done)

    def dma_rot(self, ssrc, n0, per, lds0, stride=None):
        p = self.p
        tok = None
        p.I(f's_mul_i32 s{T2}, s{sW}, {4 * per * 1024}')
        for g in range(4):
            p.I(f"""s_add_u32 s{T0}, s{sRB}, {g}
s_and_b32 s{T0}, s{T0}, 3
s_mul_i32 s{T0}, s{T0}, {per * 1024}
s_add_u32 s{T0}, s{T0}, s{T2}
s_add_u32 s{T8}, s{T0}, {lds0}
s_add_u32 s{T7}, s{T0}, s{ssrc}""")
            if n0:
                p.I(f's_add_u32 s{T7}, s{T7}, {n0 * 1024}')
            left = per
            while left:
                n = min(left, 4)
                tok = self.dma(T7, T8, n)
                left -= n
                if left:
                    p.I(f's_add_u32 s{T7}, s{T7}, 4096\ns_add_u32 s{T8}, s{T8}, 4096')
        return tok

    def p1_main(self):
        p = self.p
        LA_H = 6
        p.I(f"""v_and_b32 v10, 3, v{vLANE}
v_lshlrev_b32 v10, 2, v10
s_lshl_b32 s{T0}, s{sR}, 7
s_lshl_b32 s{T1}, s{sW}, 4
s_add_u32 s{T0}, s{T0}, s{T1}
s_add_u32 s{T0}, s{T0}, {F_H}
s_lshl_b32 s{T6}, s{sR}, 2
s_add_u32 s{T6}, s{T6}, s{sW}
s_mul_i32 s{T6}, s{T6}, 40960
s_mul_i32 s{T1}, s{sT10}, 20480
s_add_u32 s{T6}, s{T6}, s{T1}
s_add_u32 s{T6}, s{T6}, {HF}
v_add_u32 v11, 0x10000, v{vL16}
v_min_u32 v14, 19, v{vLANE}
v_lshlrev_b32 v14, 2, v14
s_lshl_b32 s{T5}, s{sJ}, 7
s_add_u32 s{T5}, s{T5}, {F_WO}""")
        self.vpoll(10, 63, T0)
        self.stamp('h_in')
        htok = []

        def issue_h():
            ks = len(htok)
            htok.append(p.vm(f'buffer_load_dwordx4 a[{4 * ks}:{4 * ks + 3}], v{vL16}, {WS}, s{T6} offen offset:{1024 * (ks & 3)} sc1'))
            if ks & 3 == 3:
                p.I(f's_add_u32 s{T6}, s{T6}, 4096')
            if ks == 19:
                p.I(f's_mul_i32 s{T0}, s{sT10}, 40960\ns_sub_u32 s{T6}, s{T6}, s{T0}')
        for _ in range(LA_H):
            issue_h()

        def rd(ks, T):
            off = (ks * 3 + T) * 1024
            b, off = (vL16, off) if off < 65536 else (11, off - 65536)
            r = 128 + 12 * (ks % 3) + 4 * T
            return p.ds(f'ds_read_b128 v[{r}:{r + 3}], v{b} offset:{off}')
        p.I('s_barrier')
        rt = {}
        for ks in range(2):
            for T in range(3):
                rt[ks] = rd(ks, T)
        for ks in range(40):
            if ks + 2 < 40 and (ks + 2) % 4 == 0 and (ks + 2) // 4 >= self.LA_C:
                p.wait(vm=self.chunk_tok[(ks + 2) // 4])
                p.I('s_barrier')
            if ks % 4 == 0 and len(self.chunk_tok) < 10:
                self.issue_chunk()
            if len(htok) < 40:
                issue_h()
            if ks == 35:
                tf = p.vm(f'buffer_load_dword v15, v14, {WS}, s{T5} offen sc1')
            p.wait(vm=htok[ks], ds=rt[ks])
            for T in range(3):
                r = 128 + 12 * (ks % 3) + 4 * T
                acc = vr(64 + 16 * T, 16)
                p.I(f'v_mfma_f32_32x32x16_bf16 {acc}, v[{r}:{r + 3}], a[{4 * ks}:{4 * ks + 3}], {acc if ks else 0}')
                if ks + 2 < 40:
                    rt[ks + 2] = rd(ks + 2, T)
        self.stamp('p1_main')
        p.I(f"""s_barrier
s_lshl_b32 s{T0}, s{sT10}, 1
s_add_u32 s{T0}, s{T0}, s{sW}
s_and_b32 s{T0}, s{T0}, 3
s_mul_i32 s{T7}, s{T0}, 10240
s_mul_i32 s{T0}, s{sC}, 0xa000
s_add_u32 s{T7}, s{T7}, s{T0}
s_add_u32 s{T7}, s{T7}, {W1T}
s_mul_i32 s{T8}, s{sW}, 10240""")
        for n in (4, 4, 2):
            self.t_t3 = self.dma(T7, T8, n)
            p.I(f's_add_u32 s{T7}, s{T7}, 4096\ns_add_u32 s{T8}, s{T8}, 4096')
        self.check_flags(tf, 15, 14, T5)
        p.I(f's_mul_i32 s{T6}, s{sJ}, 0x19000\ns_add_u32 s{T6}, s{T6}, {WOF}')
        self.dma_rot(T6, 0, 5, 40960)

    def chain_softmax(self, src, out):
        p = self.p
        for k in range(10):
            p.I(f'v_cvt_pk_bf16_f32 v{164 + k}, v{src + 2 * k}, v{src + 2 * k + 1}')
        p.I('v_mov_b32 v174, 0\nv_mov_b32 v175, 0')
        for kap in range(3):
            for mt in range(2):
                acc = vr(176 + 16 * mt, 16)
                fr = 232 + 12 * mt + 4 * kap
                p.I(f'v_mfma_f32_32x32x16_bf16 {acc}, v[{fr}:{fr + 3}], v[{164 + 4 * kap}:{167 + 4 * kap}], {acc if kap else 0}')
        P = 176
        p.I(f's_mov_b32 s{sCA}, {hex(f2u(LOG2E))}\ns_mov_b32 s{sCA + 1}, s{sCA}')
        p.I(f'v_max3_f32 v196, v{P}, v{P + 1}, v{P + 2}\nv_min3_f32 v198, v{P}, v{P + 1}, v{P + 2}')
        for k in range(3, 19, 2):
            p.I(f'v_max3_f32 v196, v196, v{P + k}, v{P + k + 1}\nv_min3_f32 v198, v198, v{P + k}, v{P + k + 1}')
        p.I(f'''v_max_f32 v196, v196, v{P + 19}
v_min_f32 v198, v198, v{P + 19}
v_mul_f32 v196, {hex(f2u(-LOG2E))}, v196
v_mul_f32 v198, {hex(f2u(LOG2E))}, v198''')
        E = 128
        ca = f's[{sCA}:{sCA + 1}]'
        for k in range(10):
            p.I(f'v_pk_fma_f32 v[{E + 2 * k}:{E + 2 * k + 1}], v[{P + 2 * k}:{P + 2 * k + 1}], {ca}, v[196:197] op_sel_hi:[1,1,0]')
            p.I(f'v_pk_fma_f32 v[{P + 2 * k}:{P + 2 * k + 1}], v[{P + 2 * k}:{P + 2 * k + 1}], {ca}, v[198:199] op_sel_hi:[1,1,0] neg_lo:[1,0,0] neg_hi:[1,0,0]')
        for k in range(20):
            p.I(f'v_exp_f32 v{E + k}, v{E + k}\nv_exp_f32 v{P + k}, v{P + k}')
        p.I(f'v_pk_add_f32 v[200:201], v[{E}:{E + 1}], v[{E + 2}:{E + 3}]\nv_pk_add_f32 v[202:203], v[{P}:{P + 1}], v[{P + 2}:{P + 3}]')
        for k in range(2, 10):
            p.I(f'v_pk_add_f32 v[200:201], v[200:201], v[{E + 2 * k}:{E + 2 * k + 1}]\n'
                f'v_pk_add_f32 v[202:203], v[202:203], v[{P + 2 * k}:{P + 2 * k + 1}]')
        p.I('v_add_f32 v200, v200, v201\nv_add_f32 v202, v202, v203\nv_rcp_f32 v200, v200\nv_rcp_f32 v202, v202')
        for k in range(10):
            p.I(f'v_pk_mul_f32 v[{E + 2 * k}:{E + 2 * k + 1}], v[{E + 2 * k}:{E + 2 * k + 1}], v[200:201] op_sel_hi:[1,0]')
            p.I(f'v_pk_mul_f32 v[{P + 2 * k}:{P + 2 * k + 1}], v[{P + 2 * k}:{P + 2 * k + 1}], v[202:203] op_sel_hi:[1,0]')
        for k in range(10):
            p.I(f'v_cvt_pk_bf16_f32 v{out + k}, v{E + 2 * k}, v{E + 2 * k + 1}\n'
                f'v_cvt_pk_bf16_f32 v{out + 10 + k}, v{P + 2 * k}, v{P + 2 * k + 1}')

    def p1_kv(self):
        p = self.p
        for k in range(10):
            p.I(f'v_cvt_pk_bf16_f32 v{152 + k}, v{84 + 2 * k}, v{85 + 2 * k}')
        p.I('v_mov_b32 v162, 0x3f80\nv_mov_b32 v163, 0')
        self.chain_softmax(64, 208)
        p.I(f'''v_and_b32 v4, 31, v{vLANE}
v_lshrrev_b32 v5, 5, v{vLANE}
v_lshlrev_b32 v5, 14, v5
v_lshl_add_u32 v5, v4, 7, v5
s_lshl_b32 s{T0}, s{sW}, 12
s_add_u32 s{T0}, s{T0}, {L_PHS}
v_add_u32 v5, s{T0}, v5
v_bfe_u32 v6, v{vLANE}, 1, 1
v_bfe_u32 v7, v{vLANE}, 2, 1
v_lshl_add_u32 v6, v6, 1, v7
v_and_b32 v7, 1, v{vLANE}
v_lshl_add_u32 v6, v6, 1, v7
v_lshl_add_u32 v5, v6, 4, v5''')
        for ch in range(8):
            src = 208 + 4 * ch if ch < 5 else 152 + 4 * (ch - 5)
            if ch:
                p.I(f'v_xor_b32 v{6 + (ch & 1)}, {16 * ch}, v5')
            p.ds(f'ds_write_b128 v{6 + (ch & 1) if ch else 5}, v[{src}:{src + 3}]')
        p.I(f'''v_bfe_u32 v4, v{vLANE}, 2, 2
v_lshrrev_b32 v5, 5, v{vLANE}
v_lshl_add_u32 v5, v5, 3, v4
v_lshlrev_b32 v5, 7, v5
s_lshr_b32 s{T0}, s{sW}, 1
s_lshl_b32 s{T0}, s{T0}, 14
s_add_u32 s{T0}, s{T0}, {L_PHS}
v_add_u32 v5, s{T0}, v5
v_lshrrev_b32 v6, 1, v4
v_and_b32 v7, 1, v4
v_lshl_add_u32 v6, v6, 2, v7
v_bfe_u32 v7, v{vLANE}, 4, 1
v_and_b32 v8, 1, v{vLANE}
v_bfe_u32 v9, v{vLANE}, 1, 1
v_lshl_add_u32 v10, v7, 1, v8
s_and_b32 s{T1}, s{sW}, 1
s_lshl_b32 s{T1}, s{T1}, 2
v_add_u32 v10, s{T1}, v10
v_xor_b32 v10, v10, v6
v_lshlrev_b32 v10, 4, v10
v_lshl_add_u32 v10, v9, 3, v10
v_add_u32 v12, v5, v10
v_xor_b32 v10, 32, v10
v_add3_u32 v13, v5, v10, s{T2}
v_lshl_add_u32 v10, v7, 1, v9
v_add_u32 v10, 5, v10
v_min_u32 v10, 7, v10
v_xor_b32 v10, v10, v6
v_lshlrev_b32 v10, 4, v10
v_lshl_add_u32 v10, v8, 3, v10
v_add_u32 v14, v5, v10
v_xor_b32 v10, 32, v10
v_add3_u32 v15, v5, v10, s{T2}'''.replace(f'v_add_u32 v12, v5, v10', f's_mov_b32 s{T2}, 512\nv_add_u32 v12, v5, v10'))
        p.wait_lgkm_all()
        p.I('s_barrier')
        toks = []
        for ks in range(8):
            a, b = 128 + 8 * (ks & 3), 132 + 8 * (ks & 3)
            if ks >= 4:
                self.kv_mfma(ks - 4, toks)
            p.ds(f'ds_read_b64_tr_b16 v[{a}:{a + 1}], v12 offset:{2048 * ks}')
            p.ds(f'ds_read_b64_tr_b16 v[{a + 2}:{a + 3}], v13 offset:{2048 * ks}')
            p.ds(f'ds_read_b64_tr_b16 v[{b}:{b + 1}], v14 offset:{2048 * ks}')
            toks.append(p.ds(f'ds_read_b64_tr_b16 v[{b + 2}:{b + 3}], v15 offset:{2048 * ks}'))
        for ks in range(4, 8):
            self.kv_mfma(ks, toks)
        p.I(f'''v_and_b32 v4, 31, v{vLANE}
s_and_b32 s{T1}, s{sW}, 1
s_lshl_b32 s{T2}, s{T1}, 5
v_and_b32 v5, s{T2}, v{vLANE}
v_add_u32 v4, v4, v5
v_mov_b32 v5, {OOB}
v_cmp_lt_u32 vcc, 20, v4
v_cndmask_b32 v4, v{vL16}, v5, vcc
s_lshl_b32 s{T0}, s{sC}, 4
s_add_u32 s{T0}, s{T0}, s{sR}
s_mul_i32 s{T0}, s{T0}, 5120
s_lshr_b32 s{T2}, s{sW}, 1
s_mul_i32 s{T2}, s{T2}, 2560
s_add_u32 s{T0}, s{T0}, s{T2}
s_lshl_b32 s{T2}, s{T1}, 11
s_add_u32 s{T0}, s{T0}, s{T2}
s_add_u32 s{T0}, s{T0}, {KVP}
s_cmp_eq_u32 s{T1}, 0
s_cselect_b32 s{T1}, s{T0}, {OOB}''')
        for k in range(8):
            p.I(f'v_cvt_pk_bf16_f32 v{128 + k}, v{176 + 2 * k}, v{177 + 2 * k}')
        p.vm(f'buffer_store_dwordx4 v[128:131], v4, {WS}, s{T0} offen sc1')
        p.vm(f'buffer_store_dwordx4 v[132:135], v4, {WS}, s{T1} offen offset:1024 sc1')
        p.I(f'''s_lshl_b32 s{T0}, s{sRB}, 18
s_lshl_b32 s{T1}, s{sJ}, 15
s_add_u32 s{T0}, s{T0}, s{T1}
s_lshl_b32 s{T1}, s{sW}, 13
s_add_u32 s{T0}, s{T0}, s{T1}
s_add_u32 s{T0}, s{T0}, {WSF}
s_add_u32 s{T1}, s{T0}, 4096
s_lshl_b32 s{T2}, s{sC}, 7
s_lshl_b32 s{T3}, s{sR}, 2
s_add_u32 s{T2}, s{T2}, s{T3}
s_add_u32 s{T2}, s{T2}, {F_KV}''')
        self.wave0(T2, T2)
        p.wait_vm_all()
        p.I('s_barrier')
        self.flag(T2, 46, False)
        self.stamp('kv_pub')
        for n in range(8):
            p.vm(f'buffer_store_dwordx4 a[{212 + 4 * n}:{215 + 4 * n}], v{vL16}, {WS}, s{T0 if n < 4 else T1} offen offset:{1024 * (n & 3)} sc1')
        self.raw_loads()
        self.dma_range(T6, 80, 100, 40960 + 81920)

    def kv_mfma(self, ks, toks):
        p = self.p
        a, b = 128 + 8 * (ks & 3), 132 + 8 * (ks & 3)
        p.wait(ds=toks[ks])
        p.I(f'v_mfma_f32_32x32x16_bf16 v[176:191], v[{a}:{a + 3}], v[{b}:{b + 3}], {"v[176:191]" if ks else 0}')

    def p1_q(self):
        p = self.p

        def rd(ks):
            r = 128 + 4 * (ks & 3)
            return p.ds(f'ds_read_b128 v[{r}:{r + 3}], v{vL16} offset:{1024 * ks}')
        toks = [rd(0), rd(1), rd(2)]
        for ks in range(40):
            if ks + 3 < 40:
                toks.append(rd(ks + 3))
            p.wait(ds=toks[ks])
            r = 128 + 4 * (ks & 3)
            p.I(f'v_mfma_f32_32x32x16_bf16 v[112:127], v[{r}:{r + 3}], a[{4 * ks}:{4 * ks + 3}], {"v[112:127]" if ks else 0}')
        self.stamp('t3_done')
        self.chain_softmax(104, 208)
        self.stamp('q_done')

    def repack_mid(self):
        p = self.p
        p.I('s_barrier\nv_lshlrev_b32 v4, 4, v0')
        p.wait(vm=self.t_rawp1)
        for k in range(4):
            p.ds(f'ds_write_b128 v4, a[{160 + 4 * k}:{163 + 4 * k}] offset:{4096 * k}')
        for k in range(2):
            p.ds(f'ds_write_b128 v4, a[{176 + 4 * k}:{179 + 4 * k}] offset:{16384 + 4096 * k}')
        for k in range(20):
            p.I(f'v_accvgpr_read_b32 v{64 + k}, a{184 + k}')
        self.gemv(4, 64, 80, L_SCR_G2)
        self.trbase16(35, 512, 36)
        p.I(f"""s_lshr_b32 s{T2}, s{sW}, 1
s_and_b32 s{T3}, s{sW}, 1
s_cmp_eq_u32 s{T2}, 0
s_cselect_b32 s{T4}, 8, 48
s_cselect_b32 s{T5}, 32, 8
s_cselect_b32 s{T6}, 0, 192
s_mul_i32 s{T1}, s{T5}, 3
s_mul_i32 s{T1}, s{T1}, s{T3}
s_add_u32 s{T6}, s{T6}, s{T1}
v_mul_lo_u32 v37, v36, s{T4}
v_add3_u32 v37, v37, v35, s{T6}
v_add_u32 v38, s{T5}, v37
v_add_u32 v39, s{T5}, v38
s_mul_i32 s{T0}, s{sJ}, 0x3c000
s_mul_i32 s{T1}, s{T2}, 0x1e000
s_add_u32 s{T0}, s{T0}, s{T1}
s_mul_i32 s{T1}, s{sRB}, 6144
s_add_u32 s{T0}, s{T0}, s{T1}
s_mul_i32 s{T1}, s{T3}, 3072
s_add_u32 s{T0}, s{T0}, s{T1}
s_add_u32 s{T0}, s{T0}, {W2F}
s_cmp_lt_u32 s{sRB}, 20
s_cselect_b32 s{T2}, s{T0}, {OOB}
s_mul_i32 s{T3}, s{sT9}, 384
s_add_u32 s{T3}, s{T3}, {M2}
s_cmp_lt_u32 s{sI}, 25
s_cselect_b32 s{T3}, s{T3}, {OOB}
s_mul_i32 s{T4}, s{sJ}, 0x1e000
s_mul_i32 s{T1}, s{sRB}, 5120
s_add_u32 s{T4}, s{T4}, s{T1}
s_add_u32 s{T4}, s{T4}, {WOUTF}
s_cmp_lt_u32 s{sRB}, 24
s_cselect_b32 s{T4}, s{T4}, {OOB}""")
        self.repack5_addr(16384)
        p.wait_lgkm_all()
        p.I('s_barrier')
        self.gemv_pub(T3)
        for k in range(3):
            p.ds(f'ds_read_b64_tr_b16 v[{64 + 4 * k}:{65 + 4 * k}], v{37 + k}')
            t = p.ds(f'ds_read_b64_tr_b16 v[{66 + 4 * k}:{67 + 4 * k}], v{37 + k} offset:2048')
        p.wait(ds=t)
        for k in range(3):
            p.vm(f'buffer_store_dwordx4 v[{64 + 4 * k}:{67 + 4 * k}], v{vL16}, {WS}, s{T2} offen offset:{1024 * k} sc1')
        self.repack5(T4, 76)
        self.stamp('rp_done')

    def repack_flags(self):
        p = self.p
        self.flag_ks(F_WIN, 20)
        self.flag(T0, 46, False)
        self.flag_ks(F_WOUT, 24)
        self.flag(T0, 46, False)
        p.I(f"""s_lshl_b32 s{T0}, s{sROLE}, 2
s_add_u32 s{T0}, s{T0}, {F_WS}""")
        self.wave0(T0, T0)
        self.flag(T0, 46, False)

    def p1_o(self):
        p = self.p
        p.I(f'''v_mul_u32_u24 v4, 3121, v0
v_lshrrev_b32 v4, 16, v4
v_mul_u32_u24 v5, 21, v4
v_sub_u32 v5, v0, v5
v_lshlrev_b32 v5, 4, v5
v_lshl_add_u32 v6, v4, 9, v5
v_mul_u32_u24 v4, 384, v4
v_add3_u32 v7, v4, v5, s{T2}
v_mov_b32 v4, {OOB}
v_mov_b32 v5, {L_ZERO + 2048}
v_cmp_gt_u32 vcc, 210, v0
v_cndmask_b32 v6, v4, v6, vcc
v_cndmask_b32 v7, v5, v7, vcc
v_bfe_u32 v4, v{vLANE}, 3, 2
v_and_b32 v5, 3, v{vLANE}
v_lshl_add_u32 v4, v4, 2, v5
v_bfe_u32 v5, v{vLANE}, 2, 1
v_mul_u32_u24 v8, 1920, v5
v_lshl_add_u32 v8, v4, 4, v8
v_add_u32 v8, {L_KVR}, v8
v_lshrrev_b32 v9, 5, v{vLANE}
v_mov_b32 v10, {L_ZERO}
v_cmp_eq_u32 vcc, v5, v9
v_cndmask_b32 v8, v10, v8, vcc
v_add_u32 v11, 256, v8
v_cmp_ge_u32 vcc, 4, v4
v_cndmask_b32 v11, v10, v11, vcc
v_bfe_u32 v4, v{vLANE}, 4, 1
v_mul_u32_u24 v4, 20480, v4
v_and_b32 v5, 15, v{vLANE}
v_lshl_add_u32 v4, v5, 4, v4
v_lshl_add_u32 v12, v9, 9, v4
v_lshl_add_u32 v13, v9, 3, v4
s_lshl_b32 s{T5}, s{sR}, 2
s_add_u32 s{T5}, s{T5}, s{sW}
s_mul_i32 s{T5}, s{T5}, 40960
s_mul_i32 s{T1}, s{sC}, 1280
s_add_u32 s{T5}, s{T5}, s{T1}
s_add_u32 s{T5}, s{T5}, {OF}
s_mul_i32 s{T6}, s{sC}, {16 * 5120}
s_add_u32 s{T6}, s{T6}, {KVP}
s_lshl_b32 s{T0}, s{sC}, 7
s_add_u32 s{T0}, s{T0}, {F_KV}'''.replace('v_mul_u32_u24 v4, 384, v4', f's_mov_b32 s{T2}, {L_KVR}\nv_mul_u32_u24 v4, 384, v4'))
        self.pretouch([f'buffer_load_dword v63, v12, {WS}, s{T5} offen sc1',
                       f'buffer_load_dword v63, v12, {WS}, s{T5} offen offset:256 sc1',
                       f'buffer_load_dword v63, v13, {WS}, s{T5} offen offset:1024 sc1'])
        self.spoll_n(T0, 16)
        self.stamp('kv_in')
        toks = []
        for r in range(16):
            toks.append(p.vm(f'buffer_load_dwordx4 v[{64 + 4 * r}:{67 + 4 * r}], v6, {WS}, s{T6} offen sc1'))
            if r < 15:
                p.I(f's_add_u32 s{T6}, s{T6}, 5120')
        p.I('v_mov_b32 v38, 0x3f80\nv_mov_b32 v39, 1.0')
        for n in range(8):
            p.I(f'v_mov_b32 v{40 + n}, 0')
        for r in range(16):
            p.wait(vm=toks[r])
            for d in range(4):
                p.I(f'v_dot2c_f32_bf16 v{40 + 2 * d}, v{64 + 4 * r + d}, v38\nv_dot2c_f32_bf16 v{41 + 2 * d}, v{64 + 4 * r + d}, v39')
        for d in range(4):
            p.I(f'v_cvt_pk_bf16_f32 v{48 + d}, v{40 + 2 * d}, v{41 + 2 * d}')
        p.ds('ds_write_b128 v7, v[48:51]')
        p.wait_lgkm_all()
        p.I('s_barrier')
        toks = []
        for ks in range(5):
            p.ds(f'ds_read_b128 v[{64 + 8 * ks}:{67 + 8 * ks}], v8 offset:{384 * ks}')
            toks.append(p.ds(f'ds_read_b128 v[{68 + 8 * ks}:{71 + 8 * ks}], v11 offset:{384 * ks}'))
        self.repack_flags()
        for ks in range(5):
            p.wait(ds=toks[ks])
            for tp in range(2):
                acc = vr(128 + 16 * tp, 16)
                r = 64 + 8 * ks + 4 * tp
                p.I(f'v_mfma_f32_32x32x16_bf16 {acc}, v[{r}:{r + 3}], v[{208 + 4 * ks}:{211 + 4 * ks}], {acc if ks else 0}')
        p.I(f'''s_lshl_b32 s{T0}, s{sR}, 8
s_lshl_b32 s{T1}, s{sW}, 6
s_add_u32 s{T0}, s{T0}, s{T1}
s_lshl_b32 s{T1}, s{sC}, 2
s_add_u32 s{T0}, s{T0}, s{T1}
s_add_u32 s{T0}, s{T0}, {F_O}
v_add_f32 v148, {hex(f2u(1e-6))}, v148
v_rcp_f32 v148, v148''')
        for k in range(10):
            p.I(f'v_pk_mul_f32 v[{128 + 2 * k}:{129 + 2 * k}], v[{128 + 2 * k}:{129 + 2 * k}], v[148:149] op_sel_hi:[1,0]')
        for k in range(10):
            p.I(f'v_cvt_pk_bf16_f32 v{152 + k}, v{128 + 2 * k}, v{129 + 2 * k}')
        t = self.lstores([f'buffer_store_dwordx4 v[152:155], v12, {WS}, s{T5} offen',
                          f'buffer_store_dwordx4 v[156:159], v12, {WS}, s{T5} offen offset:256',
                          f'buffer_store_dwordx2 v[160:161], v13, {WS}, s{T5} offen offset:1024'])
        p.wait(vm=t)
        self.flag(T0, 46, True)
        self.stamp('o_pub')

    def wsp_load(self, n):
        p = self.p
        for _ in range(n):
            if self.nws >= 64:
                return
            k = self.nws
            if k % 16 == 0:
                p.I(f"""s_add_u32 s{sT10}, s{sRB}, {k // 16}
s_and_b32 s{sT10}, s{sT10}, 3
s_lshl_b32 s{sT10}, s{sT10}, 14
s_lshl_b32 s3, s{sRB}, 2
s_add_u32 s3, s3, s{sW}
s_lshl_b32 s3, s3, 16
s_add_u32 s{sT10}, s{sT10}, s3
s_add_u32 s{sT10}, s{sT10}, {WSF}""")
            self.t_ws = p.vm(f'buffer_load_dwordx4 a[{4 * k}:{4 * k + 3}], v{vL16}, {WS}, s{sT10} offen offset:{1024 * (k & 3)} sc1')
            if k & 3 == 3 and k % 16 != 15:
                p.I(f's_add_u32 s{sT10}, s{sT10}, 4096')
            self.nws += 1

    def dma_range(self, src0, n0, n1, lds0):
        p = self.p
        per = (n1 - n0) // 4
        assert per * 4 == n1 - n0
        p.I(f'''s_mul_i32 s{T8}, s{sW}, {per * 1024}
s_add_u32 s{T7}, s{T8}, s{src0}
s_add_u32 s{T7}, s{T7}, {n0 * 1024}
s_add_u32 s{T8}, s{T8}, {lds0}''')
        tok = None
        while per:
            n = min(per, 4)
            tok = self.dma(T7, T8, n)
            per -= n
            if per:
                p.I(f's_add_u32 s{T7}, s{T7}, 4096\ns_add_u32 s{T8}, s{T8}, 4096')
        return tok

    def lds_frag(self, r, addr):
        b = (vL16, 5, 6)[addr >> 16]
        return self.p.ds(f'ds_read_b128 v[{r}:{r + 3}], v{b} offset:{addr & 0xffff}')

    def gemm16(self, nks, nt, btok, breg, addr_of, abuf, acc, swap=False, hook=None, pre=None):
        p = self.p
        buf = lambda ks, n: abuf + 4 * nt * (ks % 3) + 4 * n
        rt = {}
        for ks in range(2):
            if pre:
                pre(ks)
            for n in range(nt):
                rt[ks] = self.lds_frag(buf(ks, n), addr_of(ks, n))
        for ks in range(nks):
            if pre and ks + 2 < nks:
                pre(ks + 2)
            if hook:
                hook(ks)
            p.wait(vm=btok[ks] if btok else None, ds=rt[ks])
            for n in range(nt):
                w = vr(buf(ks, n), 4)
                x = vr(breg + 4 * ks, 4)
                d = vr(acc + 4 * n, 4)
                a, b = (x, w) if swap else (w, x)
                p.I(f'v_mfma_f32_16x16x32_bf16 {d}, {a}, {b}, {d if ks else 0}')
                if ks + 2 < nks:
                    rt[ks + 2] = self.lds_frag(buf(ks + 2, n), addr_of(ks + 2, n))

    def tile_addr(self):
        self.p.I(f"""v_lshrrev_b32 v4, 4, v{vLANE}
v_and_b32 v11, 15, v{vLANE}
v_lshlrev_b32 v9, 5, v4
v_lshlrev_b32 v10, 3, v4
v_add_u32 v10, 128, v10
v_mul_u32_u24 v8, 1280, v11
v_add_u32 v7, v8, v9
v_add_u32 v8, v8, v10
s_and_b32 s{T0}, s{sJ}, 3
s_lshl_b32 s{T0}, s{T0}, 5
v_add_u32 v9, s{T0}, v9
v_lshrrev_b32 v4, 7, v9
v_lshl_add_u32 v9, v4, 4, v9
v_add_u32 v9, {L_M2}, v9
s_add_u32 s{T0}, s{T0}, {L_M2 + 16}
v_add_u32 v10, s{T0}, v10""")

    def load_vec(self, dst, vec):
        p = self.p
        p.ds(f'ds_read_b128 v[{dst}:{dst + 3}], v9 offset:{288 * vec}')
        p.ds(f'ds_read_b128 v[{dst + 4}:{dst + 7}], v9 offset:{288 * vec + 16}')
        return p.ds(f'ds_read_b64 v[{dst + 8}:{dst + 9}], v10 offset:{288 * vec}')

    def rstd(self, s, q, n):
        self.p.I(f'''s_mov_b32 s{T2}, {hex(f2u(1 / n))}
v_mul_f32 v{s}, s{T2}, v{s}
v_mul_f32 v4, v{s}, v{s}
v_fma_f32 v{q}, v{q}, s{T2}, -v4
v_max_f32 v{q}, 0, v{q}
v_add_f32 v{q}, {hex(f2u(1e-5))}, v{q}
v_rsq_f32 v{q}, v{q}
v_mul_f32 v{s}, -v{s}, v{q}''')

    def p2a(self):
        p = self.p
        X1, GA, A2, SBv, ACC = 232, 16, 76, 96, 204
        PA2, PSB = 36, 46
        p.I(f'v_add_u32 v5, 0x10000, v{vL16}\nv_add_u32 v6, 0x20000, v{vL16}')
        self.tile_addr()
        xs = self.srd(SA, P_X, 2048 * 1280)
        p.I(f"""s_lshl_b32 s{T6}, s{sRB}, 2
s_add_u32 s{T6}, s{T6}, s{sW}
s_mul_i32 s{T1}, s{T6}, {16 * 1280}
s_mul_i32 s{T2}, s{sJ}, 160
s_add_u32 s{sT9}, s{T1}, s{T2}""")
        p.vm(f'buffer_load_dwordx4 v[64:67], v7, {xs}, s{sT9} offen')
        p.vm(f'buffer_load_dwordx4 v[68:71], v7, {xs}, s{sT9} offen offset:16')
        p.vm(f'buffer_load_dwordx2 v[72:73], v8, {xs}, s{sT9} offen')
        p.I(f"""v_lshlrev_b32 v12, 4, v11
v_lshrrev_b32 v4, 4, v{vLANE}
v_lshl_add_u32 v13, v4, 9, v12
v_lshrrev_b32 v14, 1, v4
v_lshl_add_u32 v14, v14, 8, v12
v_and_b32 v15, 1, v4
v_lshl_add_u32 v14, v15, 3, v14
v_lshl_add_u32 v15, v4, 10, v12
s_mul_i32 s{T5}, s{T6}, 20480
s_mul_i32 s{T1}, s{sJ}, 2560
s_add_u32 s{T4}, s{T5}, s{T1}
s_add_u32 s{T4}, s{T4}, {H2F}
s_add_u32 s{T5}, s{T5}, {OF}
s_lshl_b32 s{T3}, s{sRB}, 13
s_lshl_b32 s{T1}, s{sW}, 8
s_add_u32 s{T3}, s{T3}, s{T1}
s_add_u32 s{T3}, s{T3}, {ST2}
s_lshl_b32 s{T1}, s{sJ}, 10
s_add_u32 s{T6}, s{T3}, s{T1}""")
        self.pretouch([f'buffer_load_dword v63, v13, {WS}, s{T4} offen sc1',
                       f'buffer_load_dword v63, v13, {WS}, s{T4} offen offset:256 sc1',
                       f'buffer_load_dword v63, v14, {WS}, s{T4} offen offset:2048 sc1',
                       f'buffer_load_dword v63, v12, {WS}, s{T6} offen sc1'])
        p.I(f"""v_min_u32 v56, 175, v0
v_mul_u32_u24 v57, 2979, v56
v_lshrrev_b32 v57, 16, v57
v_mul_u32_u24 v58, 22, v57
v_sub_u32 v58, v56, v58
v_lshrrev_b32 v59, 1, v57
v_mul_u32_u24 v60, 10, v59
v_and_b32 v61, 1, v57
s_mul_i32 s{T0}, s{sJ}, 5
s_lshr_b32 s{T0}, s{T0}, 2
v_add3_u32 v60, v60, v61, s{T0}
v_mul_u32_u24 v60, 1920, v60
v_lshl_add_u32 v60, v58, 4, v60
v_mul_u32_u24 v57, 144, v57
v_mul_u32_u24 v58, 6, v58
s_mov_b32 s{T0}, {L_M2}
v_add3_u32 v61, v57, v58, s{T0}
v_cmp_eq_u32 vcc, 2, v59
v_cndmask_b32 v62, 0, 1.0, vcc
s_mov_b32 s{T0}, {M2}
v_mov_b32 v57, s{sTAG}""")
        loop, done = p.newlabel('m2'), p.newlabel('m2d')
        p.L(loop)
        for k in range(5):
            p.vm(f'buffer_load_dwordx4 v[{76 + 4 * k}:{79 + 4 * k}], v60, {WS}, s{T0} offen offset:{384 * k} sc1')
        p.wait_vm_all()
        p.I('v_xor_b32 v56, v79, v57')
        for k in range(1, 5):
            p.I(f'v_bitop3_b32 v56, v56, v{79 + 4 * k}, v57 bitop3:0xf6')
        p.I(f'v_cmp_ne_u32 vcc, 0, v56\ns_cmp_eq_u64 vcc, 0\ns_cbranch_scc1 {done}')
        self.spin_tail(loop, done)
        self.mod_finish(76, 1, 5, 62, 61)
        self.unpack(X1, 64, 10)
        p.I(f"""v_min_u32 v56, 51, v{vLANE}
v_lshlrev_b32 v56, 2, v56
s_lshl_b32 s{T0}, s{sJ}, 7
s_add_u32 s{T1}, s{T0}, {F_WIN}
s_add_u32 s{T0}, s{T0}, {F_WOUT - 80}
s_lshl_b32 s{T2}, s{sRB}, 5
s_add_u32 s{T2}, s{T2}, {F_WS - 176}
v_mov_b32 v57, s{T1}
v_mov_b32 v58, s{T0}
v_cmp_lt_u32 vcc, 19, v{vLANE}
v_cndmask_b32 v57, v57, v58, vcc
v_mov_b32 v58, s{T2}
v_cmp_lt_u32 vcc, 43, v{vLANE}
v_cndmask_b32 v57, v57, v58, vcc
v_add_u32 v61, v56, v57
v_lshlrev_b32 v4, 2, v11
s_lshl_b32 s{T0}, s{sR}, 8
s_and_b32 s{T1}, s{sRB}, 1
s_lshl_b32 s{T1}, s{T1}, 1
s_lshr_b32 s{T2}, s{sW}, 1
s_add_u32 s{T1}, s{T1}, s{T2}
s_lshl_b32 s{T1}, s{T1}, 6
s_add_u32 s{T0}, s{T0}, s{T1}
s_add_u32 s{T0}, s{T0}, {F_O}
s_mul_i32 s{sCA}, s{sJ}, 0x3c000
s_add_u32 s{sCA}, s{sCA}, {W2F}
s_mov_b32 s{sCA + 1}, 0""")
        self.stamp('p2a_prep')
        self.vpoll(4, 63, T0)
        self.stamp('o_in')
        bt = []
        for ks in range(20):
            bt.append(p.vm(f'buffer_load_dwordx4 v[{64 + 4 * ks}:{67 + 4 * ks}], v{vL16}, {WS}, s{T5} offen offset:{1024 * (ks & 3)} sc1'))
            if ks & 3 == 3:
                p.I(f's_add_u32 s{T5}, s{T5}, 4096')
        tf = p.vm(f'buffer_load_dword v62, v61, {WS}, s{sCA + 1} offen sc1')
        p.wait_lgkm_all()
        p.I('s_barrier')
        self.load_vec(PA2, 2)
        self.load_vec(PSB, 1)
        self.nws = 0

        def hook(ks):
            if ks == 19:
                self.check_flags(tf, 62, 61, sCA + 1)
                self.dma_range(sCA, 0, 36, 0)
        self.gemm16(20, 5, bt, 64, lambda ks, n: 40960 + (ks * 5 + n) * 1024, 144, ACC, hook=hook)
        tg = self.load_vec(64, 0)
        p.wait(ds=tg)
        self.unpack(GA, 64, 10)
        p.I('s_barrier')
        self.stamp('p2a_mm')
        for k in range(10):
            p.I(f'v_pk_fma_f32 v[{X1 + 2 * k}:{X1 + 2 * k + 1}], v[{GA + 2 * k}:{GA + 2 * k + 1}], v[{ACC + 2 * k}:{ACC + 2 * k + 1}], v[{X1 + 2 * k}:{X1 + 2 * k + 1}]')
        p.I(f'v_pk_add_f32 v[56:57], v[{X1}:{X1 + 1}], v[{X1 + 2}:{X1 + 3}]\nv_pk_mul_f32 v[58:59], v[{X1}:{X1 + 1}], v[{X1}:{X1 + 1}]')
        for k in range(1, 10):
            x = f'v[{X1 + 2 * k}:{X1 + 2 * k + 1}]'
            if k > 1:
                p.I(f'v_pk_add_f32 v[56:57], v[56:57], {x}')
            p.I(f'v_pk_fma_f32 v[58:59], {x}, {x}, v[58:59]')
        p.I('v_add_f32 v56, v56, v57\nv_add_f32 v58, v58, v59')
        self.xreduce_sq(56, 58, 57)
        p.I(f'v_mov_b32 v58, s{sTAG}\nv_mov_b32 v59, 0\ns_mov_b64 exec, 0xffff')
        self.lstores([f'buffer_store_dwordx4 v[56:59], v12, {WS}, s{T6} offen'])
        p.I(f's_mov_b64 exec, -1\ns_add_u32 s{T1}, s{T3}, 4096')
        self.unpack(A2, PA2, 10)
        self.unpack(SBv, PSB, 10)
        loop, done = p.newlabel('s2'), p.newlabel('s2d')
        p.L(loop)
        p.vm(f'buffer_load_dwordx4 v[64:67], v15, {WS}, s{T3} offen sc1')
        p.vm(f'buffer_load_dwordx4 v[68:71], v15, {WS}, s{T1} offen sc1')
        p.wait_vm_all()
        p.I(f'''v_cmp_ne_u32 vcc, s{sTAG}, v66
v_cmp_ne_u32 s[{sM}:{sM + 1}], s{sTAG}, v70
s_or_b64 vcc, vcc, s[{sM}:{sM + 1}]
s_cmp_eq_u64 vcc, 0
s_cbranch_scc1 {done}''')
        self.spin_tail(loop, done)
        self.stamp('st2_in')
        p.I('v_add_f32 v56, v64, v68\nv_add_f32 v60, v65, v69')
        self.xreduce_sq(56, 60, 58)
        self.rstd(56, 58, 640)
        for k in range(10):
            p.I(f'v_pk_fma_f32 v[{ACC + 2 * k}:{ACC + 2 * k + 1}], v[{X1 + 2 * k}:{X1 + 2 * k + 1}], v[58:59], v[56:57] op_sel_hi:[1,0,0]')
        for k in range(10):
            p.I(f'v_pk_fma_f32 v[{ACC + 2 * k}:{ACC + 2 * k + 1}], v[{ACC + 2 * k}:{ACC + 2 * k + 1}], v[{A2 + 2 * k}:{A2 + 2 * k + 1}], v[{SBv + 2 * k}:{SBv + 2 * k + 1}]')
        for k in range(10):
            p.I(f'v_cvt_pk_bf16_f32 v{64 + k}, v{ACC + 2 * k}, v{ACC + 2 * k + 1}')
        t = self.lstores([f'buffer_store_dwordx4 v[64:67], v13, {WS}, s{T4} offen',
                          f'buffer_store_dwordx4 v[68:71], v13, {WS}, s{T4} offen offset:256',
                          f'buffer_store_dwordx2 v[72:73], v14, {WS}, s{T4} offen offset:2048'])
        p.I(f'''s_lshl_b32 s{T6}, s{sRB}, 7
s_lshl_b32 s{T1}, s{sW}, 5
s_add_u32 s{T6}, s{T6}, s{T1}
s_add_u32 s{T6}, s{T6}, {F_H2}
s_lshl_b32 s{T1}, s{sJ}, 2
s_add_u32 s{T0}, s{T6}, s{T1}''')
        p.wait(vm=t)
        self.flag(T0, 60, True)
        self.stamp('h2_pub')

    def gelu(self, x, n, t):
        p = self.p
        k0 = 0.7978845608028654
        A = -2 * LOG2E * k0
        B = A * 0.044715
        p.I(f's_mov_b32 s{sM}, {hex(f2u(B))}\ns_mov_b32 s{sM + 1}, s{sM}\nv_mov_b32 v56, {hex(f2u(A))}')
        pr = lambda b, k: f'v[{b + 2 * k}:{b + 2 * k + 1}]'
        for k in range(n // 2):
            p.I(f'v_pk_mul_f32 {pr(t, k)}, {pr(x, k)}, {pr(x, k)}')
        for k in range(n // 2):
            p.I(f'v_pk_fma_f32 {pr(t, k)}, {pr(t, k)}, s[{sM}:{sM + 1}], v[56:57] op_sel_hi:[1,1,0]')
        for k in range(n // 2):
            p.I(f'v_pk_mul_f32 {pr(t, k)}, {pr(t, k)}, {pr(x, k)}')
        for k in range(n):
            p.I(f'v_exp_f32 v{t + k}, v{t + k}')
        for k in range(n // 2):
            p.I(f'v_pk_add_f32 {pr(t, k)}, {pr(t, k)}, 1.0 op_sel_hi:[1,0]')
        for k in range(n):
            p.I(f'v_rcp_f32 v{t + k}, v{t + k}')
        for k in range(n // 2):
            p.I(f'v_pk_mul_f32 {pr(x, k)}, {pr(x, k)}, {pr(t, k)}')

    def p2b(self):
        p = self.p
        ACC, Z1, TMP = 16, 16, 144
        ta = self.dma_range(sCA, 36, 76, 40960)
        p.I(f'''v_and_b32 v4, 7, v{vLANE}
v_lshlrev_b32 v4, 2, v4
s_lshl_b32 s{T5}, s{sRB}, 2
s_add_u32 s{T5}, s{T5}, s{sW}
s_mul_i32 s{T5}, s{T5}, 20480
s_add_u32 s{T5}, s{T5}, {H2F}
v_lshrrev_b32 v12, 4, v{vLANE}
v_lshlrev_b32 v12, 6, v12
v_and_b32 v13, 3, v{vLANE}
v_lshl_add_u32 v13, v13, 4, v12
v_bfe_u32 v14, v{vLANE}, 3, 1
v_lshl_add_u32 v14, v14, 4, v12
v_and_b32 v15, 7, v{vLANE}
v_lshl_add_u32 v14, v15, 10, v14
s_lshl_b32 s{T3}, s{sRB}, 13
s_lshl_b32 s{T1}, s{sW}, 8
s_add_u32 s{T3}, s{T3}, s{T1}
s_add_u32 s{T3}, s{T3}, {ST3}
s_lshl_b32 s{T1}, s{sJ}, 10
s_add_u32 s{T4}, s{T3}, s{T1}''')
        self.pretouch([f'buffer_load_dword v63, v13, {WS}, s{T4} offen sc1'])
        self.vpoll(4, 63, T6)
        self.stamp('h2_in')
        bt = []
        for ks in range(20):
            bt.append(p.vm(f'buffer_load_dwordx4 v[{64 + 4 * ks}:{67 + 4 * ks}], v{vL16}, {WS}, s{T5} offen offset:{1024 * (ks & 3)} sc1'))
            if ks & 3 == 3:
                p.I(f's_add_u32 s{T5}, s{T5}, 4096')
        tb = self.dma_range(sCA, 76, 120, 40960 + 40 * 1024)
        p.I('s_barrier')
        z2addr = lambda n: n * 1024 if n < 36 else 40960 + (n - 36) * 1024

        def pre(ks):
            if ks == 12:
                p.wait(vm=tb)
                p.I('s_barrier')
        st = {}

        def hook(ks):
            if ks == 12:
                p.I(f's_add_u32 s{sCA}, s{sCA}, 0x1e000')
                st['c'] = self.dma_range(sCA, 0, 24, 40960 + 84 * 1024)
        self.gemm16(20, 6, bt, 64, lambda ks, n: z2addr(ks * 6 + n), TMP, ACC, swap=True, pre=pre, hook=hook)
        p.I('s_barrier')
        self.stamp('z2_mm')
        td = self.dma_range(sCA, 24, 64, 0)
        self.gelu(ACC, 24, TMP)
        pr = lambda b: f'v[{b}:{b + 1}]'
        p.I(f'v_pk_add_f32 v[40:41], {pr(ACC)}, {pr(ACC + 4)}\nv_pk_add_f32 v[42:43], {pr(ACC + 2)}, {pr(ACC + 6)}')
        p.I(f'v_pk_mul_f32 v[44:45], {pr(ACC)}, {pr(ACC)}\nv_pk_mul_f32 v[46:47], {pr(ACC + 2)}, {pr(ACC + 2)}')
        for ft in range(1, 6):
            a, b = pr(ACC + 4 * ft), pr(ACC + 4 * ft + 2)
            if ft > 1:
                p.I(f'v_pk_add_f32 v[40:41], v[40:41], {a}\nv_pk_add_f32 v[42:43], v[42:43], {b}')
            p.I(f'v_pk_fma_f32 v[44:45], {a}, {a}, v[44:45]\nv_pk_fma_f32 v[46:47], {b}, {b}, v[46:47]')
        for c in ('row_ror:8', 'row_ror:4', 'row_ror:2', 'row_ror:1'):
            self.dpp_add(range(40, 48), c)
        p.I(f'''s_mov_b32 vcc_lo, 0xaaaaaaaa
s_mov_b32 vcc_hi, 0xaaaaaaaa
v_cndmask_b32 v40, v40, v41, vcc
v_cndmask_b32 v42, v42, v43, vcc
v_cndmask_b32 v44, v44, v45, vcc
v_cndmask_b32 v46, v46, v47, vcc
s_mov_b32 vcc_lo, 0xcccccccc
s_mov_b32 vcc_hi, 0xcccccccc
v_cndmask_b32 v48, v40, v42, vcc
v_cndmask_b32 v49, v44, v46, vcc
v_mov_b32 v50, s{sTAG}
v_mov_b32 v51, 0
s_mov_b32 exec_lo, 0x000f000f
s_mov_b32 exec_hi, 0x000f000f''')
        self.lstores([f'buffer_store_dwordx4 v[48:51], v13, {WS}, s{T4} offen'])
        p.I('s_mov_b64 exec, -1')
        loop, done = p.newlabel('s3'), p.newlabel('s3d')
        p.L(loop)
        p.vm(f'buffer_load_dwordx4 v[40:43], v14, {WS}, s{T3} offen sc1')
        p.vm(f'buffer_load_dwordx4 v[44:47], v14, {WS}, s{T3} offen offset:32 sc1')
        p.wait_vm_all()
        p.I(f'''v_cmp_ne_u32 vcc, s{sTAG}, v42
v_cmp_ne_u32 s[{sM}:{sM + 1}], s{sTAG}, v46
s_or_b64 vcc, vcc, s[{sM}:{sM + 1}]
s_cmp_eq_u64 vcc, 0
s_cbranch_scc1 {done}''')
        self.spin_tail(loop, done)
        self.stamp('st3_in')
        for c in ('quad_perm:[1,0,3,2]', 'quad_perm:[2,3,0,1]', 'row_half_mirror'):
            self.dpp_add((40, 41, 44, 45), c)
        self.rstd(40, 41, 768)
        self.rstd(44, 45, 768)
        for dst, src in ((48, 41), (50, 45), (52, 40), (54, 44)):
            p.I(f'v_mov_b32_dpp v{dst}, v{src} row_newbcast:0 row_mask:0xf bank_mask:0xf\n'
                f'v_mov_b32_dpp v{dst + 1}, v{src} row_newbcast:8 row_mask:0xf bank_mask:0xf')
        for ft in range(6):
            for h in range(2):
                x = pr(ACC + 4 * ft + 2 * h)
                p.I(f'v_pk_fma_f32 {x}, {x}, {pr(48 + 2 * h)}, {pr(52 + 2 * h)}')
        for k in range(12):
            p.I(f'v_cvt_pk_bf16_f32 v{TMP + k}, v{ACC + 2 * k}, v{ACC + 2 * k + 1}')
        for F in range(3):
            p.I(f'v_permlane16_swap_b32 v{TMP + 4 * F}, v{TMP + 4 * F + 2}\nv_permlane16_swap_b32 v{TMP + 4 * F + 1}, v{TMP + 4 * F + 3}')
        p.I(f'''s_mul_i32 s{T5}, s{sJ}, {128 * 3072}
s_add_u32 s{T5}, s{T5}, {Z2F}
s_lshl_b32 s{T0}, s{sRB}, 2
s_add_u32 s{T0}, s{T0}, s{sW}
s_mul_i32 s{T0}, s{T0}, 3072
s_add_u32 s{T0}, s{T0}, s{T5}''')
        for F in range(3):
            p.vm(f'buffer_store_dwordx4 v[{TMP + 4 * F}:{TMP + 4 * F + 3}], v{vL16}, {WS}, s{T0} offen offset:{1024 * F} sc1')
        p.I(f'''s_lshl_b32 s{T6}, s{sJ}, 7
s_add_u32 s{T6}, s{T6}, {F_Z2}
s_lshl_b32 s{T1}, s{sRB}, 2
s_add_u32 s{T0}, s{T6}, s{T1}''')
        self.wave0(T0, T0)
        p.wait_vm_all()
        p.I('s_barrier')
        self.flag(T0, 60, False)
        self.stamp('z2_pub')
        te = self.dma_range(sCA, 64, 120, 40960)
        z1addr = lambda n: 40960 + (84 + n) * 1024 if n < 24 else (n - 24) * 1024 if n < 64 else 40960 + (n - 64) * 1024

        def pre1(ks):
            if ks == 10:
                p.wait(vm=te)
                p.I('s_barrier')
        self.gemm16(20, 6, None, 64, lambda ks, n: z1addr(ks * 6 + n), TMP, Z1, pre=pre1,
                    hook=lambda ks: self.wsp_load(4))
        self.wsp_load(64)
        bs = self.srd(SA, P_BSP, 4096)
        p.I(f'''s_lshl_b32 s{T0}, s{sRB}, 7
s_lshl_b32 s{T1}, s{sW}, 5
s_add_u32 s{T0}, s{T0}, s{T1}
v_lshlrev_b32 v4, 1, v11''')
        self.t_b = p.vm(f'buffer_load_ushort v40, v4, {bs}, s{T0} offen')
        self.gelu(Z1, 24, TMP)
        self.stamp('z1_done')

    def p3a(self):
        p = self.p
        ACC, RING, D, Z1 = 136, 44, 6, 16
        p.I(f"""s_lshl_b32 s{T1}, s{sW}, 5
s_add_u32 s{T0}, s{T6}, s{T1}
s_mul_i32 s{T1}, s{sW}, {32 * 3072}
s_add_u32 s{T6}, s{T5}, s{T1}
v_lshrrev_b32 v4, 4, v{vLANE}
v_mul_u32_u24 v12, 768, v4
v_lshl_add_u32 v12, v11, 4, v12
s_lshl_b32 s{T4}, s{sRB}, 2
s_add_u32 s{T4}, s{T4}, s{sW}
s_mul_i32 s{T4}, s{T4}, 24576
s_add_u32 s{T4}, s{T4}, {UF}
s_mul_i32 s{T1}, s{sJ}, 3072
s_add_u32 s{T3}, s{T4}, s{T1}""")
        self.spoll_n(T0, 8)
        self.stamp('z2_in')
        toks = []

        def issue():
            s = len(toks)
            if s % 8 == 0:
                p.I(f"""s_add_u32 s{T5}, s{sRB}, {s // 8}
s_and_b32 s{T5}, s{T5}, 3
s_mul_i32 s{T5}, s{T5}, {8 * 3072}
s_add_u32 s{T5}, s{T5}, s{T6}""")
            for F in range(3):
                r = RING + 12 * (s % D) + 4 * F
                t = p.vm(f'buffer_load_dwordx4 v[{r}:{r + 3}], v{vL16}, {WS}, s{T5} offen offset:{1024 * F} sc1')
            if s % 8 != 7:
                p.I(f's_add_u32 s{T5}, s{T5}, 3072')
            toks.append(t)
        for _ in range(D - 1):
            issue()
        for s in range(32):
            if len(toks) < 32:
                issue()
            if s == 33 - D:
                self.pretouch([f'buffer_load_dword v41, v12, {WS}, s{T3} offen offset:{256 * m} sc1' for m in range(3)])
                p.I(f's_mul_i32 s{sCA}, s{sJ}, 0x1e000\ns_add_u32 s{sCA}, s{sCA}, {WOUTF}\ns_barrier')
                self.dma_rot(sCA, 0, 3, 102400)
            p.wait(vm=toks[s])
            for F in range(3):
                for tt in range(2):
                    r = RING + 12 * (s % D) + 4 * F
                    acc = vr(ACC + 16 * (2 * F + tt), 16)
                    b = 4 * (2 * s + tt)
                    p.I(f'v_mfma_f32_32x32x16_bf16 {acc}, v[{r}:{r + 3}], a[{b}:{b + 3}], {acc if s else 0}')
        self.stamp('p3a_mm')
        p.I(f'''v_and_b32 v4, 31, v{vLANE}
v_mul_u32_u24 v13, 400, v4
v_lshrrev_b32 v4, 5, v{vLANE}
v_lshl_add_u32 v13, v4, 4, v13
s_mul_i32 s{T0}, s{sW}, 25600
v_add_u32 v13, s{T0}, v13
v_lshrrev_b32 v4, 4, v{vLANE}
v_mul_u32_u24 v14, 96, v4
v_mul_u32_u24 v4, 400, v11
s_mul_i32 s{T0}, s{sW}, 6400
v_add3_u32 v14, v14, v4, s{T0}
v_add_u32 v15, 51200, v14''')
        for F in range(3):
            for tt in range(2):
                for q in range(4):
                    r = ACC + 16 * (2 * F + tt) + 4 * q
                    p.ds(f'ds_write_b128 v13, v[{r}:{r + 3}] offset:{tt * 12800 + F * 128 + q * 32}')
        p.wait_lgkm_all()
        p.I('s_barrier')
        G = 44
        toks = []
        for m in range(6):
            for pp in range(4):
                r = G + 24 * pp + 4 * m
                t = p.ds(f'ds_read_b128 v[{r}:{r + 3}], v{14 + (pp >> 1)} offset:{25600 * (pp & 1) + 16 * m}')
            toks.append(t)
        p.wait(vm=self.t_b)
        p.I('v_lshlrev_b32 v42, 16, v40')
        pr = lambda b: f'v[{b}:{b + 1}]'
        for m in range(6):
            p.wait(ds=toks[m])
            for h in range(2):
                r = G + 4 * m + 2 * h
                p.I(f'v_pk_add_f32 {pr(r)}, {pr(r)}, {pr(r + 24)}\nv_pk_add_f32 {pr(r + 48)}, {pr(r + 48)}, {pr(r + 72)}')
            for h in range(2):
                r = G + 4 * m + 2 * h
                p.I(f'v_pk_add_f32 {pr(r)}, {pr(r)}, v[42:43] op_sel_hi:[1,0]')
            for h in range(2):
                r = G + 4 * m + 2 * h
                p.I(f'v_pk_add_f32 {pr(r)}, {pr(r)}, {pr(r + 48)}')
            for h in range(2):
                r = G + 4 * m + 2 * h
                p.I(f'v_pk_mul_f32 {pr(r)}, {pr(r)}, {pr(Z1 + 4 * m + 2 * h)}')
        for k in range(12):
            p.I(f'v_cvt_pk_bf16_f32 v{140 + k}, v{G + 2 * k}, v{G + 2 * k + 1}')
        t = self.lstores([f'buffer_store_dwordx4 v[{140 + 4 * m}:{143 + 4 * m}], v12, {WS}, s{T3} offen offset:{256 * m}'
                          for m in range(3)])
        p.I(f'''s_lshl_b32 s{T6}, s{sRB}, 7
s_lshl_b32 s{T1}, s{sW}, 5
s_add_u32 s{T6}, s{T6}, s{T1}
s_add_u32 s{T6}, s{T6}, {F_U}
s_lshl_b32 s{T1}, s{sJ}, 2
s_add_u32 s{T0}, s{T6}, s{T1}''')
        p.wait(vm=t)
        self.flag(T0, 60, True)
        self.stamp('u_pub')

    def p3b(self):
        p = self.p
        X1, ACC, GB = 232, 36, 16
        p.I('s_barrier')
        t = self.load_vec(40, 3)
        tb = self.dma_range(sCA, 48, 84, 0)
        p.I(f'v_and_b32 v4, 7, v{vLANE}\nv_lshlrev_b32 v4, 2, v4')
        p.wait(ds=t)
        self.unpack(GB, 40, 10)
        self.vpoll(4, 63, T6)
        self.stamp('u_in')
        bt = []
        for ks in range(24):
            bt.append(p.vm(f'buffer_load_dwordx4 v[{64 + 4 * ks}:{67 + 4 * ks}], v{vL16}, {WS}, s{T4} offen offset:{1024 * (ks & 3)} sc1'))
            if ks & 3 == 3:
                p.I(f's_add_u32 s{T4}, s{T4}, 4096')
            if ks == 11:
                tc = self.dma_range(sCA, 84, 120, 36 * 1024)
        p.I('s_barrier')
        addr = lambda n: 102400 + n * 1024 if n < 48 else (n - 48) * 1024

        def pre(ks):
            if ks == 16:
                p.wait(vm=tc)
                p.I('s_barrier')
        self.gemm16(24, 5, bt, 64, lambda ks, n: addr(ks * 5 + n), 160, ACC, pre=pre)
        os_ = self.srd(SA, P_OUT, 2048 * 1280)
        self.stamp('p3b_mm')
        for k in range(10):
            p.I(f'v_pk_fma_f32 v[{X1 + 2 * k}:{X1 + 2 * k + 1}], v[{GB + 2 * k}:{GB + 2 * k + 1}], v[{ACC + 2 * k}:{ACC + 2 * k + 1}], v[{X1 + 2 * k}:{X1 + 2 * k + 1}]')
        for k in range(10):
            p.I(f'v_cvt_pk_bf16_f32 v{64 + k}, v{X1 + 2 * k}, v{X1 + 2 * k + 1}')
        p.vm(f'buffer_store_dwordx4 v[64:67], v7, {os_}, s{sT9} offen')
        p.vm(f'buffer_store_dwordx4 v[68:71], v7, {os_}, s{sT9} offen offset:16')
        p.vm(f'buffer_store_dwordx2 v[72:73], v8, {os_}, s{sT9} offen')

    def build(self):
        p = self.p
        p.L(KNAME)
        stages = [('entry', self.entry), ('roles', self.roles), ('ln', self.ln_stats),
                  ('h', self.make_h), ('p1main', self.p1_main), ('kv', self.p1_kv), ('q', self.p1_q),
                  ('repack1', self.repack_mid), ('o', self.p1_o), ('p2a', self.p2a), ('p2b', self.p2b),
                  ('p3a', self.p3a), ('p3b', self.p3b)]
        for name, fn in stages:
            p.C(f'======== {name}')
            fn()
            if self.o.stop == name:
                break
        p.L('L_fin')
        if self.o.stop is None:
            p.I(f's_or_b32 s{T0}, s{sROLE}, s{sW}\ns_cmp_eq_u32 s{T0}, 0\ns_cselect_b32 s{T0}, {WS_EPOCH}, {OOB}')
            self.flag(T0, 60, False)
        if self.o.stamps:
            self.stamp('end')
            p.I(f'''s_lshl_b32 s{T0}, s{sROLE}, 2
s_add_u32 s{T0}, s{T0}, s{sW}
s_lshl_b32 s{T0}, s{T0}, 8
s_add_u32 s{T0}, s{T0}, {STAMPS}
v_lshlrev_b32 v4, 2, v{vLANE}''')
            p.vm(f'buffer_store_dword v{vSTAMP}, v4, {WS}, s{T0} offen')
        p.I('s_endpgm')
        for lg, lb, texts in self.ool:
            p.L(lg)
            for t in texts:
                p.vm(t, count=False)
            p.I(f's_branch {lb}')
        p.L('L_end')
        p.I('s_endpgm')
        head = open('adaLN_cond__linear_kernel_hedgehog__mixer_gmlp__prompt.s.ref').read().split('\n')
        hdr = [l for l in head if l.startswith(';') and '@launch' not in l and 'Override' not in l and 'grid=ceil' not in l]
        txt = '\n'.join(hdr) + f'\n; @launch grid=(256,1,1) block=(256,1,1) lds={LDS_BYTES}\n'
        txt += f'.amdgcn_target "amdgcn-amd-amdhsa--gfx950"\n.text\n.globl {KNAME}\n.p2align 8\n.type {KNAME},@function\n'
        txt += p.render()
        txt += f'''.section .rodata,"a"
.p2align 6
.amdhsa_kernel {KNAME}
  .amdhsa_next_free_vgpr 512
  .amdhsa_next_free_sgpr 102
  .amdhsa_accum_offset 256
  .amdhsa_group_segment_fixed_size 0
  .amdhsa_kernarg_size 112
  .amdhsa_user_sgpr_count 2
  .amdhsa_user_sgpr_kernarg_segment_ptr 1
  .amdhsa_system_sgpr_workgroup_id_x 1
  .amdhsa_float_denorm_mode_32 3
.end_amdhsa_kernel
'''
        return txt


if __name__ == '__main__':
    import argparse
    ap = argparse.ArgumentParser()
    ap.add_argument('-o', default='mk.s')
    ap.add_argument('--stamps', action='store_true')
    ap.add_argument('--nolocal', action='store_true')
    ap.add_argument('--stop')
    ap.add_argument('--nont', action='store_true')
    a = ap.parse_args()
    o = Opt()
    o.stamps, o.local, o.stop = a.stamps, not a.nolocal, a.stop
    o.nt = '' if a.nont else ' nt'
    g = Gen(o)
    s = g.build()
    open(a.o, 'w').write(s)
    open(a.o + '.stamps', 'w').write('\n'.join(g.stamp_names))
    for w in g.p.warn: print('WARN', w)
    print('instructions', sum(1 for k, _ in g.p.items if k == 'i'), 'nops', g.p.nnop)
```

```python
import sys
sys.path.insert(0, 'gen')
from asmlib import *
from layout import *

KNAME = 'adaLN_cond__linear_kernel_hedgehog__mixer_gmlp__prompt_kernel'


class Opt:
    local = True
    stamps = False
    nt = ' nt'
    dbgrole = None
    stop = None


S_WS = 4
SA, SB = 8, 12
P_X, P_WQKV, P_WPHI, P_WO, P_WIN, P_WSP, P_BSP = 16, 18, 20, 22, 26, 28, 30
P_WOUT, P_C, P_WMOD, P_OUT, P_DBG, P_WS = 32, 34, 36, 38, 40, 42
sTAG, sROLE, sW, sX, sI, sR, sC, sRB, sJ, sMODE = 44, 46, 47, 48, 49, 50, 51, 52, 53, 54
T0, T1, T2, T3, T4, T5, T6, T7, T8 = 55, 56, 57, 58, 59, 60, 61, 62, 63
PB = 64
sK2, sT9, sSPIN, sT10 = 96, 97, 100, 101
sCA = 24
sM = 98

WS = f's[{S_WS}:{S_WS + 3}]'
vL16, vLANE, vSTAMP = 1, 2, 3

LOG2E = 1.4426950408889634


def f2u(x):
    import struct
    return struct.unpack('<I', struct.pack('<f', x))[0]


class Gen:
    def __init__(self, opt):
        self.o = opt
        self.p = Prog()
        self.ool = []
        self.nstamp = 0
        self.stamp_names = []

    def srd(self, q, ptr, nbytes):
        self.p.I(f's_mov_b32 s{q}, s{ptr}\ns_mov_b32 s{q + 1}, s{ptr + 1}\ns_mov_b32 s{q + 2}, {nbytes}\n'
                 f's_mov_b32 s{q + 3}, s{sK2}')
        return f's[{q}:{q + 3}]'

    def stamp(self, name):
        if not self.o.stamps:
            return
        p = self.p
        p.sm(f's_memrealtime s[{sM}:{sM + 1}]')
        p.wait_lgkm_all()
        p.I(f'v_writelane_b32 v{vSTAMP}, s{sM}, {self.nstamp}')
        if name in ('role_iss', 'end'):
            p.sm(f's_memtime s[{sM}:{sM + 1}]')
            p.wait_lgkm_all()
            p.I(f'v_writelane_b32 v{vSTAMP}, s{sM}, {62 if name == "role_iss" else 63}')
        self.stamp_names.append(name)
        self.nstamp += 1

    def spin_tail(self, loop, done):
        p = self.p
        p.I(f's_sub_u32 s{sSPIN}, s{sSPIN}, 1\ns_cbranch_scc0 {loop}\ns_mov_b32 s{sSPIN}, 0')
        p.L(done)

    def spoll(self, soff, loads, pairs, singles=()):
        p = self.p
        loop, done = p.newlabel('sp'), p.newlabel('spd')
        p.I(f's_add_u32 s{sM}, s{P_WS}, s{soff}\ns_addc_u32 s{sM + 1}, s{P_WS + 1}, 0')
        p.L(loop)
        for nd, dst, imm in loads:
            p.sm(f's_load_dwordx{nd} s[{dst}:{dst + nd - 1}], s[{sM}:{sM + 1}], {imm} glc')
        p.wait_lgkm_all()
        first = pairs[0]
        p.I(f's_xor_b64 s[{first}:{first + 1}], s[{first}:{first + 1}], s[{sTAG}:{sTAG + 1}]')
        for q in pairs[1:]:
            p.I(f's_xor_b64 s[{q}:{q + 1}], s[{q}:{q + 1}], s[{sTAG}:{sTAG + 1}]\n'
                f's_or_b64 s[{first}:{first + 1}], s[{first}:{first + 1}], s[{q}:{q + 1}]')
        for q in singles:
            p.I(f's_xor_b32 s{q}, s{q}, s{sTAG}\ns_or_b32 s{first}, s{first}, s{q}')
        p.I(f's_cmp_eq_u64 s[{first}:{first + 1}], 0\ns_cbranch_scc1 {done}')
        self.spin_tail(loop, done)

    def spoll_n(self, soff, n):
        loads, got = [], 0
        while got < n:
            nd = 16 if n - got > 8 else 8 if n - got > 4 else 4
            loads.append((nd, PB + got, got * 4))
            got += nd
        self.spoll(soff, loads, [PB + 2 * k for k in range(n // 2)])

    def vpoll(self, vaddr, vtmp, soff):
        p = self.p
        loop, done = p.newlabel('vp'), p.newlabel('vpd')
        p.L(loop)
        p.vm(f'buffer_load_dword v{vtmp}, v{vaddr}, {WS}, s{soff} offen sc1')
        p.wait_vm_all()
        p.I(f'v_cmp_ne_u32 vcc, s{sTAG}, v{vtmp}\ns_cmp_eq_u64 vcc, 0\ns_cbranch_scc1 {done}')
        self.spin_tail(loop, done)

    def lstores(self, texts):
        p = self.p
        if not self.o.local:
            return [p.vm(t + ' sc1') for t in texts][-1]
        lg, lb = p.newlabel('glob'), p.newlabel('back')
        p.I(f's_cmp_eq_u32 s{sMODE}, 0\ns_cbranch_scc1 {lg}')
        tok = [p.vm(t) for t in texts][-1]
        p.L(lb)
        self.ool.append((lg, lb, [t + ' sc1' for t in texts]))
        return tok

    def flag(self, soff, vtmp, local):
        p = self.p
        p.I(f'v_mov_b32 v{vtmp}, s{sTAG}\nv_mov_b32 v{vtmp + 1}, 0\ns_mov_b64 exec, 1')
        t = f'buffer_store_dword v{vtmp}, v{vtmp + 1}, {WS}, s{soff} offen'
        if local:
            self.lstores([t])
        else:
            p.vm(t + ' sc1')
        p.I('s_mov_b64 exec, -1')

    def wave0(self, dst, src):
        self.p.I(f's_cmp_eq_u32 s{sW}, 0\ns_cselect_b32 s{dst}, s{src}, {OOB}')

    def dma(self, soff, lds, n, extra=' sc1'):
        p = self.p
        p.I(f's_mov_b32 m0, s{lds}')
        tok = None
        for k in range(n):
            tok = p.vm(f'buffer_load_dwordx4 v{vL16}, {WS}, s{soff} offen offset:{1024 * k}{extra} lds')
        return tok

    def xreduce_sq(self, s, q, t):
        self.p.I(f'''v_permlane16_swap_b32 v{s}, v{q}
v_add_f32 v{s}, v{s}, v{q}
v_mov_b32 v{q}, v{s}
v_permlane32_swap_b32 v{s}, v{q}
v_add_f32 v{s}, v{s}, v{q}
v_mov_b32 v{t}, v{s}
v_permlane16_swap_b32 v{s}, v{t}''')

    def silu_pack(self, src, lo, hi, t):
        self.p.I(f'''v_lshlrev_b32 v{src}, 16, v{src}
v_mul_f32 v{t}, {hex(f2u(-LOG2E))}, v{src}
v_exp_f32 v{t}, v{t}
v_add_f32 v{t}, 1.0, v{t}
v_rcp_f32 v{t}, v{t}
v_mul_f32 v{t}, v{src}, v{t}
v_cvt_pk_bf16_f32 v{lo}, v{t}, 0
v_lshlrev_b32 v{hi}, 16, v{lo}''')

    def merge8(self, a):
        p = self.p
        for b in (a, a + 4):
            p.I(f'v_permlane32_swap_b32 v{b}, v{b + 2}\nv_permlane32_swap_b32 v{b + 1}, v{b + 3}')
        for b in (a, a + 4):
            p.I(f'v_add_f32 v{b}, v{b}, v{b + 2}\nv_add_f32 v{b + 1}, v{b + 1}, v{b + 3}')
        for b in (a, a + 4):
            p.I(f'v_permlane16_swap_b32 v{b}, v{b + 1}')
        for b in (a, a + 4):
            p.I(f'v_add_f32 v{b}, v{b}, v{b + 1}')

    def dpp_add(self, regs, ctrl):
        for r in regs:
            self.p.I(f'v_add_f32_dpp v{r}, v{r}, v{r} {ctrl} row_mask:0xf bank_mask:0xf')

    def unpack(self, dst, src, n):
        for k in range(n):
            self.p.I(f'v_lshlrev_b32 v{dst + 2 * k}, 16, v{src + k}\nv_and_b32 v{dst + 2 * k + 1}, 0xffff0000, v{src + k}')

    def round_add_round(self, a, sdelta, out):
        p = self.p
        p.I(f'v_cvt_pk_bf16_f32 v{out}, v{a}, v{a + 1}\nv_cvt_pk_bf16_f32 v{out + 1}, v{a + 2}, v{a + 3}')
        self.unpack(a, out, 2)
        for k in range(4):
            p.I(f'v_add_f32 v{a + k}, s{sdelta}, v{a + k}')
        p.I(f'v_cvt_pk_bf16_f32 v{out}, v{a}, v{a + 1}\nv_cvt_pk_bf16_f32 v{out + 1}, v{a + 2}, v{a + 3}')

    def stop_here(self, name):
        if self.o.stop == name:
            self.p.I('s_branch L_fin')
            return True
        return False

    def entry(self):
        p = self.p
        nt = self.o.nt
        p.I('s_cmp_ge_u32 s2, 256\ns_cbranch_scc1 L_end')
        if self.o.stamps:
            p.sm('s_memrealtime s[94:95]')
        p.sm(f's_load_dwordx4 s[{P_DBG}:{P_DBG + 3}], s[0:1], 96')
        p.sm(f's_load_dwordx8 s[{P_WOUT}:{P_WOUT + 7}], s[0:1], 64')
        p.sm(f's_load_dwordx16 s[{P_X}:{P_X + 15}], s[0:1], 0')
        p.I(f"""s_and_b32 s{sX}, s2, 7
s_lshr_b32 s{sI}, s2, 3
s_lshl_b32 s3, s{sX}, 5
s_add_u32 s{sROLE}, s3, s{sI}
v_and_b32 v{vLANE}, 63, v0
v_lshrrev_b32 v4, 6, v0
v_lshlrev_b32 v{vL16}, 4, v{vLANE}
v_readfirstlane_b32 s{sW}, v4
s_mov_b32 s{sK2}, 0x20000
s_lshr_b32 s{sR}, s{sROLE}, 4
s_and_b32 s{sC}, s{sROLE}, 15
s_lshr_b32 s{sRB}, s{sROLE}, 3
s_and_b32 s{sJ}, s{sROLE}, 7
s_mov_b32 s{sSPIN}, 400000
v_and_b32 v8, 7, v{vLANE}
v_lshrrev_b32 v9, 3, v0
v_mul_u32_u24 v10, 1280, v8
v_lshl_add_u32 v10, v9, 4, v10
s_cmp_lt_u32 s{sI}, 10
s_cbranch_scc0 L_iw1""")
        p.cond = True
        p.I(f"""s_mul_i32 s{sT9}, s{sX}, 10
s_add_u32 s{sT9}, s{sT9}, s{sI}
s_and_b32 s{T0}, s{sT9}, 3
s_mul_i32 s{T1}, s{T0}, {160 * 7680}
s_mul_i32 s{T2}, s{T0}, 320
s_lshr_b32 s{T0}, s{sT9}, 2
s_lshl_b32 s{T0}, s{T0}, 7
s_add_u32 s{T1}, s{T1}, s{T0}
v_mul_u32_u24 v5, 7680, v9
v_lshl_add_u32 v5, v8, 4, v5
v_lshlrev_b32 v6, 1, v9""")
        p.wait_lgkm_all()
        a = self.srd(SA, P_WMOD, 640 * 7680)
        for k in range(5):
            p.vm(f'buffer_load_dwordx4 v[{136 + 4 * k}:{139 + 4 * k}], v5, {a}, s{T1} offen{nt}')
            if k < 4:
                p.I(f's_add_u32 s{T1}, s{T1}, {32 * 7680}')
        b = self.srd(SB, P_C, 1280)
        for k in range(5):
            self.t_g1 = p.vm(f'buffer_load_ushort v{156 + k}, v6, {b}, s{T2} offen offset:{64 * k}')
        p.I('s_branch L_icommon')
        p.L('L_iw1')
        p.I(f"""s_mul_i32 s{sT9}, s{sX}, 20
s_add_u32 s{sT9}, s{sT9}, s{sI}
s_sub_u32 s{sT9}, s{sT9}, 12
v_min_u32 v12, 59, v{vLANE}
v_mul_u32_u24 v13, 13, v12
v_lshrrev_b32 v13, 8, v13
v_mul_u32_u24 v14, 960, v13
v_lshl_add_u32 v14, v12, 4, v14
v_add_u32 v14, 1280, v14
v_subrev_u32 v15, 3840, v14
v_cmp_eq_u32 vcc, 2, v13
v_cndmask_b32 v14, v14, v15, vcc
s_lshr_b32 s{T0}, s{sT9}, 2
s_lshl_b32 s{T0}, s{T0}, 4
s_add_u32 s{T0}, s{T0}, s{sW}
s_mul_i32 s{T0}, s{T0}, 3840
s_and_b32 s{T1}, s{sT9}, 3
s_mul_i32 s{T1}, s{T1}, 320
s_add_u32 s{T0}, s{T0}, s{T1}
s_cmp_ge_u32 s{sI}, 12
s_cselect_b32 s{T0}, s{T0}, {OOB}
s_cselect_b32 s{sT10}, 0, {OOB}
s_lshl_b32 s{T1}, s{sW}, 10
s_add_u32 s{T1}, s{T1}, {L_STG_W1}""")
        p.wait_lgkm_all()
        wq = self.srd(SA, P_WQKV, 640 * 3840)
        for k in range(4):
            p.I(f's_mov_b32 m0, s{T1}')
            p.vm(f'buffer_load_dwordx4 v14, {wq}, s{T0} offen{nt} lds')
            if k < 3:
                p.I(f's_add_u32 s{T0}, s{T0}, {4 * 3840}\ns_add_u32 s{T1}, s{T1}, 4096')
        wo = self.srd(SB, P_WO, 640 * 1280)
        p.I(f"""v_and_b32 v11, 15, v{vLANE}
v_min_u32 v12, 9, v11
v_lshlrev_b32 v12, 4, v12
v_lshrrev_b32 v13, 4, v0
v_and_b32 v15, 7, v13
v_lshrrev_b32 v13, 3, v13
s_lshr_b32 s{T0}, s{sT9}, 3
s_lshl_b32 s{T0}, s{T0}, 2
s_and_b32 s{T2}, s{sT9}, 7
s_mul_i32 s{T2}, s{T2}, 160
s_add_u32 s{T2}, s{T2}, s{sT10}
s_lshl_b32 s{T1}, s{sW}, 10
s_add_u32 s{T1}, s{T1}, {L_STG_WO}""")
        for k in range(2):
            p.I(f"""v_add_u32 v31, s{T0}, v13
v_mul_u32_u24 v32, 205, v31
v_lshrrev_b32 v32, 10, v32
v_mul_u32_u24 v33, 5, v32
v_sub_u32 v33, v31, v33
v_lshl_add_u32 v34, v33, 3, v15
v_add_u32 v35, 4, v34
v_cmp_lt_u32 vcc, 1, v33
v_cndmask_b32 v34, v34, v35, vcc
v_add_u32 v35, 16, v15
v_add_u32 v36, 32, v15
v_cmp_lt_u32 vcc, 3, v15
v_cndmask_b32 v35, v35, v36, vcc
v_cmp_eq_u32 vcc, 4, v33
v_cndmask_b32 v34, v34, v35, vcc
v_mul_u32_u24 v32, 40, v32
v_add_u32 v34, v34, v32
v_mul_u32_u24 v34, 1280, v34
v_add_u32 v34, v34, v12
s_mov_b32 m0, s{T1}""")
            self.t_raw = p.vm(f'buffer_load_dwordx4 v34, {wo}, s{T2} offen{nt} lds')
            if k == 0:
                p.I(f's_add_u32 s{T0}, s{T0}, 2\ns_add_u32 s{T1}, s{T1}, 4096')
        p.cond = False
        p.L('L_icommon')
        p.wait_lgkm_all()
        if self.o.stamps:
            p.I(f'v_mov_b32 v{vSTAMP}, 0\nv_writelane_b32 v{vSTAMP}, s94, 0')
            self.stamp_names.append('entry')
            self.nstamp = 1
            self.stamp('role_iss')
        p.sm(f's_load_dword s{sTAG}, s[{P_WS}:{P_WS + 1}], {WS_EPOCH}')
        xs = self.srd(SA, P_X, 2048 * 1280)
        p.I(f"""s_mul_i32 s{T0}, s{sROLE}, {8 * 1280}
s_cmp_lt_u32 s{sW}, 2
s_cselect_b32 s{T1}, s{T0}, {OOB}""")
        for k in range(3):
            self.t_x = p.vm(f'buffer_load_dwordx4 v[{48 + 4 * k}:{51 + 4 * k}], v10, {xs}, s{T0 if k < 2 else T1} offen offset:{512 * k}')
        p.I(f"""s_getpc_b64 s[{sM}:{sM + 1}]
s_lshl_b32 s{T0}, s{sI}, 2
s_add_u32 s{T0}, s{T0}, s{sW}
s_lshl_b32 s{T0}, s{T0}, 9
v_and_b32 v7, 3, v{vLANE}
v_lshlrev_b32 v7, 7, v7
v_add_u32 v7, s{T0}, v7
v_min_u32 v7, (L_end-L_pc0), v7""")
        p.L('L_pc0')
        p.vm(f'global_load_dword v63, v7, s[{sM}:{sM + 1}]')
        self.srd(S_WS, P_WS, WS_USED)
        wp = self.srd(SB, P_WPHI, 32 * 800)
        p.I(f"""v_lshlrev_b32 v31, 4, v0
v_min_u32 v31, 1584, v31
s_mul_i32 s{T0}, s{sC}, 1600
s_lshl_b32 s{T1}, s{sW}, 10
s_cmp_lt_u32 s{sW}, 2
s_cselect_b32 s{T1}, s{T1}, {(L_DUMMY - L_WPH) & 0xffffffff}
s_add_u32 s{T1}, s{T1}, {L_WPH}
s_mov_b32 m0, s{T1}""")
        p.vm(f'buffer_load_dwordx4 v31, {wp}, s{T0} offen lds')
        p.I(f"""v_mov_b32 v46, 0
v_mov_b32 v47, 0
v_lshlrev_b32 v45, 3, v0
v_add_u32 v45, {L_ZERO}, v45""")
        p.ds('ds_write_b64 v45, v[46:47]')
        p.wait_lgkm_all()
        p.I(f"""s_mul_i32 s{sTAG}, s{sTAG}, 0x2c1b3c6d
s_add_u32 s{sTAG}, s{sTAG}, 0x297a2d39
s_mov_b32 s{sTAG + 1}, s{sTAG}
s_mov_b32 s{sMODE}, 0""")
        if self.o.local:
            p.I(f"""s_getreg_b32 s{T0}, hwreg(HW_REG_XCC_ID, 0, 4)
s_lshl_b32 s{T1}, s{sROLE}, 2
s_add_u32 s{T1}, s{T1}, {F_HELLO}
s_add_u32 s{sCA}, s{T0}, s{sTAG}
s_add_u32 s{sCA}, s{sCA}, 1""")
            self.wave0(T1, T1)
            p.I(f'v_mov_b32 v45, s{sCA}\ns_mov_b64 exec, 1')
            p.vm(f'buffer_store_dword v45, v46, {WS}, s{T1} offen sc1')
            p.I('s_mov_b64 exec, -1')
        self.stamp('issued')

    def gemv(self, n, data, cval, scr):
        p = self.p
        for k in range(n):
            self.silu_pack(cval + k, 112 + 2 * k, 113 + 2 * k, 111)
        for c in range(8):
            p.I(f'v_mov_b32 v{124 + c}, 0')
        for k in range(n):
            for d in range(4):
                p.I(f'v_dot2c_f32_bf16 v{124 + 2 * d}, v{data + 4 * k + d}, v{112 + 2 * k}\n'
                    f'v_dot2c_f32_bf16 v{125 + 2 * d}, v{data + 4 * k + d}, v{113 + 2 * k}')
        self.merge8(124)
        self.dpp_add((124, 128), 'row_ror:8')
        p.I(f"""v_and_b32 v111, 7, v{vLANE}
v_lshrrev_b32 v112, 4, v{vLANE}
v_lshl_add_u32 v111, v111, 3, v112
v_lshlrev_b32 v111, 2, v111
s_lshl_b32 s{T0}, s{sW}, 8
s_add_u32 s{T0}, s{T0}, {scr}
v_add_u32 v111, s{T0}, v111""")
        p.ds('ds_write_b32 v111, v124')
        p.ds('ds_write_b32 v111, v128 offset:16')
        p.I(f'v_min_u32 v111, 21, v{vLANE}\nv_mul_u32_u24 v112, 12, v111\nv_add_u32 v112, {scr}, v112')

    def gemv_pub(self, soff):
        p = self.p
        for w in range(4):
            p.ds(f'ds_read2_b32 v[{114 + 4 * w}:{115 + 4 * w}], v112 offset0:{64 * w} offset1:{64 * w + 1}')
            t = p.ds(f'ds_read_b32 v{116 + 4 * w}, v112 offset:{256 * w + 8}')
        self.wave0(soff, soff)
        p.I(f'v_lshlrev_b32 v111, 4, v111\nv_mov_b32 v135, s{sTAG}')
        p.wait(ds=t, force=True)
        for d in range(3):
            p.I(f'v_add_f32 v{114 + d}, v{114 + d}, v{118 + d}\nv_add_f32 v{122 + d}, v{122 + d}, v{126 + d}')
        for d in range(3):
            p.I(f'v_add_f32 v{132 + d}, v{114 + d}, v{122 + d}')
        p.I('s_mov_b32 exec_lo, 0x3fffff\ns_mov_b32 exec_hi, 0')
        p.vm(f'buffer_store_dwordx4 v[132:135], v111, {WS}, s{soff} offen sc1')
        p.I('s_mov_b64 exec, -1')

    def trbase16(self, dst, rowbytes, t):
        sh = rowbytes.bit_length() - 1
        self.p.I(f"""v_lshrrev_b32 v{dst}, 4, v{vLANE}
v_bfe_u32 v{t}, v{vLANE}, 2, 2
v_lshl_add_u32 v{dst}, v{dst}, 3, v{t}
v_lshlrev_b32 v{dst}, {sh}, v{dst}
v_and_b32 v{t}, 3, v{vLANE}""")

    def repack5_addr(self, stg):
        p = self.p
        self.trbase16(31, 256, 32)
        p.I(f"""s_lshl_b32 s{T0}, s{sW}, 3
s_add_u32 s{T0}, s{T0}, {stg}
v_lshl_add_u32 v33, v32, 5, v31
v_add_u32 v33, s{T0}, v33
v_lshl_add_u32 v34, v32, 3, v31
v_add_u32 v34, {stg + 128}, v34""")

    def repack5(self, sdst, fr):
        p = self.p
        p.ds(f'ds_read_b64_tr_b16 v[{fr}:{fr + 1}], v33')
        t1 = p.ds(f'ds_read_b64_tr_b16 v[{fr + 2}:{fr + 3}], v33 offset:1024')
        p.ds(f'ds_read_b64_tr_b16 v[{fr + 4}:{fr + 5}], v34')
        t2 = p.ds(f'ds_read_b64_tr_b16 v[{fr + 6}:{fr + 7}], v34 offset:1024')
        p.I(f"""s_lshl_b32 s{T1}, s{sW}, 10
s_add_u32 s{T1}, s{T1}, s{sdst}
s_add_u32 s{T0}, s{sdst}, 4096""")
        self.wave0(T0, T0)
        p.wait(ds=t2, force=True)
        p.vm(f'buffer_store_dwordx4 v[{fr}:{fr + 3}], v{vL16}, {WS}, s{T1} offen sc1')
        return p.vm(f'buffer_store_dwordx4 v[{fr + 4}:{fr + 7}], v{vL16}, {WS}, s{T0} offen sc1')

    def flag_ks(self, base, nvalid):
        self.p.I(f"""s_lshl_b32 s{T0}, s{sJ}, 7
s_lshl_b32 s{T1}, s{sRB}, 2
s_add_u32 s{T0}, s{T0}, s{T1}
s_add_u32 s{T0}, s{T0}, {base}
s_cmp_lt_u32 s{sRB}, {nvalid}
s_cselect_b32 s{T0}, s{T0}, {OOB}""")
        self.wave0(T0, T0)

    def roles(self):
        p = self.p
        p.I(f"""v_bfe_u32 v41, v{vLANE}, 4, 1
v_bfe_u32 v42, v{vLANE}, 1, 1
v_lshl_add_u32 v41, v41, 1, v42
v_lshlrev_b32 v41, 2, v41
v_and_b32 v42, 1, v{vLANE}
v_bfe_u32 v43, v{vLANE}, 2, 2
v_lshrrev_b32 v44, 5, v{vLANE}
s_cmp_lt_u32 s{sI}, 10
s_cbranch_scc0 L_rw1""")
        p.cond = True
        p.wait(vm=self.t_g1)
        self.gemv(5, 136, 156, L_SCR_G1)
        p.I(f's_mul_i32 s{T2}, s{sT9}, 384\ns_add_u32 s{T2}, s{T2}, {MODG}')
        p.wait_lgkm_all()
        p.I('s_barrier')
        self.gemv_pub(T2)
        p.I(f's_mov_b32 s{T6}, {OOB}\ns_mov_b32 s{T7}, {OOB}\ns_branch L_rcommon')
        p.L('L_rw1')
        p.I(f"""v_lshl_add_u32 v35, v44, 3, v43
v_lshlrev_b32 v35, 10, v35
v_mul_u32_u24 v36, 40, v42
s_mul_i32 s{T0}, s{sW}, 80
s_add_u32 s{T0}, s{T0}, {L_STG_W1}
v_add3_u32 v35, v35, v36, s{T0}""")
        for T in range(4):
            p.I(f"""v_add_u32 v36, {16 * T}, v41
v_mul_u32_u24 v37, 13, v36
v_lshrrev_b32 v37, 8, v37
v_mul_u32_u24 v37, 280, v37
v_lshl_add_u32 v37, v36, 1, v37
v_add_u32 v{16 + T}, v37, v35""")
        self.repack5_addr(L_STG_WO)
        p.I(f"""s_and_b32 s{T0}, s{sT9}, 3
s_lshl_b32 s{T6}, s{T0}, 8
s_lshl_b32 s{T0}, s{T0}, 2
s_add_u32 s{T0}, s{T0}, s{sW}
s_lshr_b32 s{T1}, s{sT9}, 2
s_mul_i32 s{T2}, s{T0}, 0x1e000
s_mul_i32 s{T3}, s{T1}, 3072
s_add_u32 s{T2}, s{T2}, s{T3}
s_add_u32 s{T2}, s{T2}, {W1M}
s_add_u32 s{T2}, s{T2}, s{sT10}
s_mul_i32 s{T3}, s{T0}, 0xa000
s_lshl_b32 s{T4}, s{T1}, 10
s_add_u32 s{T3}, s{T3}, s{T4}
s_add_u32 s{T3}, s{T3}, {W1T}
s_add_u32 s{T3}, s{T3}, s{sT10}
s_lshl_b32 s{T1}, s{T1}, 2
s_add_u32 s{T6}, s{T6}, s{T1}
s_add_u32 s{T6}, s{T6}, {F_W1}
s_add_u32 s{T6}, s{T6}, s{sT10}
s_and_b32 s{T0}, s{sT9}, 7
s_lshr_b32 s{T1}, s{sT9}, 3
s_mul_i32 s{T4}, s{T0}, 0x19000
s_mul_i32 s{T5}, s{T1}, 5120
s_add_u32 s{T4}, s{T4}, s{T5}
s_add_u32 s{T4}, s{T4}, {WOF}
s_add_u32 s{T4}, s{T4}, s{sT10}
s_lshl_b32 s{T7}, s{T0}, 7
s_lshl_b32 s{T1}, s{T1}, 2
s_add_u32 s{T7}, s{T7}, s{T1}
s_add_u32 s{T7}, s{T7}, {F_WO}
s_add_u32 s{T7}, s{T7}, s{sT10}""")
        p.wait(vm=self.t_raw)
        p.I('s_barrier')
        for T in range(4):
            p.ds(f'ds_read_b64_tr_b16 v[{180 + 4 * T}:{181 + 4 * T}], v{16 + T}')
            t = p.ds(f'ds_read_b64_tr_b16 v[{182 + 4 * T}:{183 + 4 * T}], v{16 + T} offset:4096')
        p.wait(ds=t, force=True)
        for T in range(3):
            p.vm(f'buffer_store_dwordx4 v[{180 + 4 * T}:{183 + 4 * T}], v{vL16}, {WS}, s{T2} offen offset:{1024 * T} sc1')
        p.vm(f'buffer_store_dwordx4 v[192:195], v{vL16}, {WS}, s{T3} offen sc1')
        self.t_rp = self.repack5(T4, 196)
        p.cond = False
        p.L('L_rcommon')
        self.stamp('role_done')
        ws_ = self.srd(SA, P_WSP, 2048 * 4096)
        p.I(f"""v_and_b32 v31, 31, v{vLANE}
v_xor_b32 v31, v31, v44
v_lshlrev_b32 v31, 4, v31
v_lshl_add_u32 v31, v44, 12, v31
s_lshl_b32 s{T0}, s{sRB}, 18
s_lshl_b32 s{T1}, s{sJ}, 9
s_add_u32 s{T0}, s{T0}, s{T1}
s_lshl_b32 s{T1}, s{sW}, 16
s_add_u32 s{T0}, s{T0}, s{T1}
s_lshl_b32 s{T1}, s{sW}, 13
s_add_u32 s{T1}, s{T1}, {L_STG_WS}""")
        for n in range(8):
            p.I(f's_mov_b32 m0, s{T1}')
            if n:
                p.I(f'v_xor_b32 v{32 + (n & 1)}, {32 * n}, v31')
            p.vm(f'buffer_load_dwordx4 v{32 + (n & 1) if n else 31}, {ws_}, s{T0} offen{self.o.nt} lds')
            if n < 7:
                p.I(f's_add_u32 s{T0}, s{T0}, 8192\ns_add_u32 s{T1}, s{T1}, 1024')
        p.I(f"""v_lshlrev_b32 v12, 9, v9
v_lshl_add_u32 v12, v8, 4, v12
s_lshr_b32 s{T3}, s{sROLE}, 2
s_mul_i32 s{T3}, s{T3}, 40960
s_and_b32 s{T4}, s{sROLE}, 3
s_lshl_b32 s{T4}, s{T4}, 7
s_add_u32 s{T3}, s{T3}, s{T4}
s_add_u32 s{T3}, s{T3}, {HF}
s_add_u32 s{T4}, s{T3}, 16384
s_add_u32 s{T5}, s{T3}, 32768
s_cmp_lt_u32 s{sW}, 2
s_cselect_b32 s{T5}, s{T5}, {OOB}""")
        if self.o.local:
            for so in (T3, T4, T5):
                p.vm(f'buffer_load_dword v63, v12, {WS}, s{so} offen sc1')
            p.I(f"""v_lshrrev_b32 v31, 4, v{vLANE}
v_lshlrev_b32 v31, 12, v31
v_mov_b32 v32, s{sRB}
v_lshl_add_u32 v32, v32, 7, v31
v_mov_b32 v33, s{sR}
v_lshlrev_b32 v34, 7, v33
v_lshl_add_u32 v33, v33, 8, v31
v_lshl_add_u32 v33, v42, 7, v33
v_cmp_gt_u32 vcc, 32, v{vLANE}
v_cndmask_b32 v32, v32, v33, vcc
v_cmp_gt_u32 vcc, 16, v{vLANE}
v_cndmask_b32 v32, v32, v34, vcc
s_mov_b32 s{T0}, {F_H}""")
            p.vm(f'buffer_load_dword v63, v32, {WS}, s{T0} offen sc1')

    def ln_stats(self):
        p = self.p
        p.wait(vm=self.t_x)
        p.I('v_mov_b32 v16, 0\nv_mov_b32 v17, 0\nv_mov_b32 v18, 0x3f803f80')
        for k in range(12):
            p.I(f'v_dot2c_f32_bf16 v16, v{48 + k}, v18\nv_dot2c_f32_bf16 v17, v{48 + k}, v{48 + k}')
        self.dpp_add((16, 17), 'row_ror:8')
        p.I(f"""v_permlane16_swap_b32 v16, v17
v_add_f32 v16, v16, v17
v_mov_b32 v17, v16
v_permlane32_swap_b32 v16, v17
v_add_f32 v16, v16, v17
v_bfe_u32 v18, v{vLANE}, 4, 1
v_lshlrev_b32 v18, 5, v18
v_lshl_add_u32 v18, v8, 2, v18
s_lshl_b32 s{T0}, s{sW}, 6
s_add_u32 s{T0}, s{T0}, {L_SCR_LN}
v_add_u32 v18, s{T0}, v18""")
        p.ds('ds_write_b32 v18, v16')
        p.I(f"""v_mul_u32_u24 v36, 800, v42
v_mul_u32_u24 v37, 40, v43
v_add_u32 v36, v36, v37
v_lshl_add_u32 v36, v41, 1, v36
v_add_u32 v36, {L_WPH}, v36
v_mov_b32 v39, {L_ZERO}
v_cmp_eq_u32 vcc, v42, v44
v_cndmask_b32 v37, v39, v36, vcc
v_add_u32 v38, 32, v37
v_cmp_eq_u32 vcc, 0, v41
v_cndmask_b32 v38, v39, v38, vcc""")
        self.wave0(T6, T6)
        self.wave0(T7, T7)
        self.unpack(96, 48, 12)
        p.wait(vm=self.t_rp)
        p.wait_lgkm_all()
        p.I('s_barrier')
        self.flag(T6, 46, False)
        self.flag(T7, 46, False)
        self.stamp('w1_pub')
        p.I(f'v_lshlrev_b32 v18, 2, v8\nv_add_u32 v18, {L_SCR_LN}, v18')
        for w in range(4):
            t = p.ds(f'ds_read2_b32 v[{20 + 2 * w}:{21 + 2 * w}], v18 offset0:{16 * w} offset1:{16 * w + 8}')
        for mt in range(2):
            for kap in range(3):
                fr = 232 + 12 * mt + 4 * kap
                p.ds(f'ds_read_b64_tr_b16 v[{fr}:{fr + 1}], v{37 + mt} offset:{320 * kap}')
                if kap < 2:
                    p.ds(f'ds_read_b64_tr_b16 v[{fr + 2}:{fr + 3}], v{37 + mt} offset:{320 * kap + 160}')
                else:
                    p.I(f'v_mov_b32 v{fr + 2}, 0\nv_mov_b32 v{fr + 3}, 0')
        p.wait(ds=t)
        p.I("""v_add_f32 v20, v20, v22
v_add_f32 v21, v21, v23
v_add_f32 v24, v24, v26
v_add_f32 v25, v25, v27
v_add_f32 v16, v20, v24
v_add_f32 v17, v21, v25""")
        self.rstd(16, 17, 640)
        for e in range(24):
            p.I(f'v_fma_f32 v{96 + e}, v{96 + e}, v17, v16')
        for e in range(24):
            if e % 2 == 0:
                p.I(f'v_cvt_pk_bf16_f32 v{64 + e}, v{96 + e}, 0')
            else:
                p.I(f'v_cvt_pk_bf16_f32 v{64 + e}, 0, v{96 + e}')
        self.stamp('ln_done')

    def pretouch(self, texts):
        if self.o.local:
            for t in texts:
                self.p.vm(t)

    def mod_finish(self, data, nset, npart, vdelta, vlds):
        p = self.p
        for s_ in range(nset):
            b = data + 4 * npart * s_
            for k in range(1, npart):
                for d in range(3):
                    p.I(f'v_add_f32 v{b + d}, v{b + d}, v{b + 4 * k + d}')
            p.I(f"""v_cvt_pk_bf16_f32 v{b + 4}, v{b}, v{b + 1}
v_cvt_pk_bf16_f32 v{b + 5}, v{b + 2}, v{b + 2}
v_lshlrev_b32 v{b}, 16, v{b + 4}
v_and_b32 v{b + 1}, 0xffff0000, v{b + 4}
v_lshlrev_b32 v{b + 2}, 16, v{b + 5}
v_add_f32 v{b}, v{b}, v{vdelta + s_}
v_add_f32 v{b + 1}, v{b + 1}, v{vdelta + s_}
v_add_f32 v{b + 2}, v{b + 2}, v{vdelta + s_}
v_cvt_pk_bf16_f32 v{b + 4}, v{b}, v{b + 1}
v_cvt_pk_bf16_f32 v{b + 5}, v{b + 2}, v{b + 2}""")
            p.ds(f'ds_write_b16 v{vlds + s_}, v{b + 4}')
            p.ds(f'ds_write_b16_d16_hi v{vlds + s_}, v{b + 4} offset:2')
            p.ds(f'ds_write_b16 v{vlds + s_}, v{b + 5} offset:4')

    def make_h(self):
        p = self.p
        for s_ in range(2):
            p.I(f"""v_add_u32 v31, {256 * s_}, v0
v_min_u32 v31, 439, v31
v_mul_u32_u24 v32, 2979, v31
v_lshrrev_b32 v32, 16, v32
v_mul_u32_u24 v33, 22, v32
v_sub_u32 v33, v31, v33
v_mul_u32_u24 v34, 1536, v32
v_lshl_add_u32 v{20 + s_}, v33, 4, v34
v_mul_u32_u24 v34, 144, v32
v_mul_u32_u24 v33, 6, v33
v_add3_u32 v{22 + s_}, v33, v34, s{T2}
v_cmp_lt_u32 vcc, 9, v32
v_cndmask_b32 v{24 + s_}, 0, 1.0, vcc""".replace('v_mul_u32_u24 v34, 144, v32', f's_mov_b32 s{T2}, {L_MOD}\nv_mul_u32_u24 v34, 144, v32'))
        p.I(f"""v_min_u32 v26, 39, v{vLANE}
v_lshlrev_b32 v26, 2, v26
v_and_b32 v27, 31, v{vLANE}
v_lshlrev_b32 v27, 2, v27
v_lshrrev_b32 v13, 3, v9
v_mul_u32_u24 v13, 144, v13
v_and_b32 v28, 7, v9
v_lshl_add_u32 v13, v28, 4, v13
v_add_u32 v13, {L_MOD}, v13
s_mov_b32 s{T0}, {MODG}
s_lshr_b32 s{T1}, s{sC}, 2
s_lshl_b32 s{T1}, s{T1}, 8
s_add_u32 s{T1}, s{T1}, {F_W1}
s_lshl_b32 s{T2}, s{sX}, 7
s_add_u32 s{T2}, s{T2}, {F_HELLO}
s_add_u32 s{T6}, s{sTAG}, 1
v_mov_b32 v29, s{sTAG}""")
        loop, done = p.newlabel('mg'), p.newlabel('mgd')
        p.L(loop)
        for s_ in range(2):
            for k in range(4):
                r = 96 + 16 * s_ + 4 * k
                p.vm(f'buffer_load_dwordx4 v[{r}:{r + 3}], v{20 + s_}, {WS}, s{T0} offen offset:{384 * k} sc1')
        p.vm(f'buffer_load_dword v30, v26, {WS}, s{T1} offen sc1')
        if self.o.local:
            p.vm(f'buffer_load_dword v31, v27, {WS}, s{T2} offen sc1')
        p.wait_vm_all()
        p.I('v_xor_b32 v30, v30, v29')
        for n in range(8):
            p.I(f'v_bitop3_b32 v30, v30, v{99 + 4 * n}, v29 bitop3:0xf6')
        if self.o.local:
            p.I(f'v_subrev_u32 v32, s{T6}, v31\nv_lshrrev_b32 v32, 4, v32\nv_or_b32 v30, v30, v32')
        p.I(f'v_cmp_ne_u32 vcc, 0, v30\ns_cmp_eq_u64 vcc, 0\ns_cbranch_scc1 {done}')
        self.spin_tail(loop, done)
        self.stamp('mod_in')
        self.mod_finish(96, 2, 4, 24, 22)
        if self.o.local:
            p.I(f'v_cmp_ne_u32 vcc, s{sCA}, v31\ns_cmp_eq_u64 vcc, 0\ns_cselect_b32 s{sMODE}, 1, 0')
        p.wait_lgkm_all()
        p.I('s_barrier')
        toks = []
        for k in range(3):
            p.ds(f'ds_read_b128 v[{96 + 8 * k}:{99 + 8 * k}], v13 offset:{576 * k}')
            toks.append(p.ds(f'ds_read_b128 v[{100 + 8 * k}:{103 + 8 * k}], v13 offset:{576 * k + 1440}'))
        for k in range(3):
            p.wait(ds=toks[k])
            self.unpack(144 + 8 * k, 96 + 8 * k, 4)
            for e in range(8):
                p.I(f'v_dot2c_f32_bf16 v{144 + 8 * k + e}, v{64 + 8 * k + e}, v{100 + 8 * k + (e >> 1)}')
        for k in range(3):
            for d in range(4):
                p.I(f'v_cvt_pk_bf16_f32 v{168 + 4 * k + d}, v{144 + 8 * k + 2 * d}, v{145 + 8 * k + 2 * d}')
        t = self.lstores([f'buffer_store_dwordx4 v[{168 + 4 * k}:{171 + 4 * k}], v12, {WS}, s{so} offen'
                          for k, so in enumerate((T3, T4, T5))])
        p.I(f"""s_and_b32 s{sT10}, s{sR}, 1
s_mul_i32 s{T7}, s{sC}, 0x1e000
s_mul_i32 s{T8}, s{sW}, 3072
s_add_u32 s{T7}, s{T7}, s{T8}
s_mul_i32 s{T0}, s{sT10}, 61440
s_add_u32 s{T7}, s{T7}, s{T0}
s_add_u32 s{T7}, s{T7}, {W1M}""")
        self.chunk_tok = []
        for _ in range(self.LA_C):
            self.issue_chunk()
        p.I(f"""v_and_b32 v31, 31, v{vLANE}
v_and_b32 v32, 15, v{vLANE}
s_lshl_b32 s{T0}, s{sW}, 3
v_add_u32 v33, s{T0}, v44
v_xor_b32 v33, v33, v32
v_lshlrev_b32 v33, 4, v33
v_lshl_add_u32 v33, v31, 9, v33
v_add_u32 v33, {L_STG_WS}, v33""")
        for ks in range(4):
            if ks:
                p.I(f'v_xor_b32 v{33 + ks}, {32 * ks}, v33')
            for tt in range(2):
                r = 212 + 8 * ks + 4 * tt
                p.ds(f'ds_read_b128 a[{r}:{r + 3}], v{33 + ks} offset:{16384 * tt}')
        p.I(f"""s_lshl_b32 s{T0}, s{sR}, 7
s_lshl_b32 s{T1}, s{sC}, 2
s_add_u32 s{T0}, s{T0}, s{T1}
s_add_u32 s{T0}, s{T0}, {F_H}""")
        self.wave0(T0, T0)
        p.wait(vm=t)
        p.wait_lgkm_all()
        p.I('s_barrier')
        self.flag(T0, 46, True)
        self.stamp('h_pub')

    LA_C = 3

    def issue_chunk(self):
        p = self.p
        self.chunk_tok.append(self.dma(T7, T8, 3))
        p.I(f's_add_u32 s{T7}, s{T7}, 12288\ns_add_u32 s{T8}, s{T8}, 12288')
        if len(self.chunk_tok) == 5:
            p.I(f's_mul_i32 s{T0}, s{sT10}, 122880\ns_sub_u32 s{T7}, s{T7}, s{T0}')

    def raw_loads(self):
        p = self.p
        nt = self.o.nt
        wi = self.srd(SA, P_WIN, 640 * 3072)
        p.I(f"""v_and_b32 v4, 31, v{vLANE}
v_min_u32 v4, 23, v4
v_lshlrev_b32 v5, 4, v4
v_add_u32 v6, 1536, v5
v_subrev_u32 v5, 192, v5
v_cmp_gt_u32 vcc, 12, v4
v_cndmask_b32 v5, v5, v6, vcc
v_lshrrev_b32 v6, 5, v0
v_mul_u32_u24 v6, 3072, v6
v_add_u32 v5, v5, v6
s_mul_i32 s{T0}, s{sRB}, {32 * 3072}
s_mul_i32 s{T1}, s{sJ}, 192
s_add_u32 s{T0}, s{T0}, s{T1}
s_cmp_lt_u32 s{sRB}, 20
s_cselect_b32 s{T0}, s{T0}, {OOB}""")
        for k in range(4):
            p.vm(f'buffer_load_dwordx4 a[{160 + 4 * k}:{163 + 4 * k}], v5, {wi}, s{T0} offen{nt}')
            if k < 3:
                p.I(f's_add_u32 s{T0}, s{T0}, {8 * 3072}')
        wm = self.srd(SB, P_WMOD, 640 * 7680)
        p.I(f"""v_lshrrev_b32 v7, 3, v0
v_lshlrev_b32 v8, 1, v7
v_mul_u32_u24 v7, 7680, v7
v_and_b32 v4, 7, v0
v_lshl_add_u32 v7, v4, 4, v7
s_mul_i32 s{sT9}, s{sX}, 25
s_add_u32 s{sT9}, s{sT9}, s{sI}
s_mul_i32 s{T0}, s{sT9}, 205
s_lshr_b32 s{T0}, s{T0}, 10
s_mul_i32 s{T1}, s{T0}, 5
s_sub_u32 s{T1}, s{sT9}, s{T1}
s_lshl_b32 s{T2}, s{T1}, 8
s_mul_i32 s{T1}, s{T1}, {128 * 7680}
s_lshl_b32 s{T0}, s{T0}, 7
s_add_u32 s{T0}, s{T0}, s{T1}
s_add_u32 s{T0}, s{T0}, 2560
s_cmp_lt_u32 s{sI}, 25
s_cselect_b32 s{T0}, s{T0}, {OOB}""")
        for k in range(4):
            p.vm(f'buffer_load_dwordx4 a[{184 + 4 * k}:{187 + 4 * k}], v7, {wm}, s{T0} offen{nt}')
            if k < 3:
                p.I(f's_add_u32 s{T0}, s{T0}, {32 * 7680}')
        cs = self.srd(SA, P_C, 1280)
        for k in range(4):
            p.vm(f'buffer_load_ushort a{200 + k}, v8, {cs}, s{T2} offen offset:{64 * k}')
        wu = self.srd(SB, P_WOUT, 768 * 1280)
        p.I(f"""v_and_b32 v4, 15, v{vLANE}
v_min_u32 v4, 9, v4
v_lshrrev_b32 v6, 4, v0
v_mul_u32_u24 v6, 1280, v6
v_lshl_add_u32 v6, v4, 4, v6
s_mul_i32 s{T0}, s{sRB}, {32 * 1280}
s_mul_i32 s{T1}, s{sJ}, 160
s_add_u32 s{T0}, s{T0}, s{T1}
s_cmp_lt_u32 s{sRB}, 24
s_cselect_b32 s{T0}, s{T0}, {OOB}
s_add_u32 s{T1}, s{T0}, {16 * 1280}""")
        for k in range(2):
            self.t_rawp1 = p.vm(f'buffer_load_dwordx4 a[{176 + 4 * k}:{179 + 4 * k}], v6, {wu}, s{T0 + k} offen{nt}')

    def check_flags(self, tok, vval, vaddr, soff):
        p = self.p
        loop, done = p.newlabel('cf'), p.newlabel('cfd')
        p.wait(vm=tok)
        p.I(f'v_cmp_ne_u32 vcc, s{sTAG}, v{vval}\ns_cmp_eq_u64 vcc, 0\ns_cbranch_scc1 {done}')
        p.L(loop)
        p.vm(f'buffer_load_dword v{vval}, v{vaddr}, {WS}, s{soff} offen sc1', count=False)
        p.I(f's_waitcnt vmcnt(0)\nv_cmp_ne_u32 vcc, s{sTAG}, v{vval}\ns_cmp_eq_u64 vcc, 0\ns_cbranch_scc1 {done}')
        self.spin_tail(loop, done)

    def dma_rot(self, ssrc, n0, per, lds0, stride=None):
        p = self.p
        tok = None
        p.I(f's_mul_i32 s{T2}, s{sW}, {4 * per * 1024}')
        for g in range(4):
            p.I(f"""s_add_u32 s{T0}, s{sRB}, {g}
s_and_b32 s{T0}, s{T0}, 3
s_mul_i32 s{T0}, s{T0}, {per * 1024}
s_add_u32 s{T0}, s{T0}, s{T2}
s_add_u32 s{T8}, s{T0}, {lds0}
s_add_u32 s{T7}, s{T0}, s{ssrc}""")
            if n0:
                p.I(f's_add_u32 s{T7}, s{T7}, {n0 * 1024}')
            left = per
            while left:
                n = min(left, 4)
                tok = self.dma(T7, T8, n)
                left -= n
                if left:
                    p.I(f's_add_u32 s{T7}, s{T7}, 4096\ns_add_u32 s{T8}, s{T8}, 4096')
        return tok

    def p1_main(self):
        p = self.p
        LA_H = 6
        p.I(f"""v_and_b32 v10, 3, v{vLANE}
v_lshlrev_b32 v10, 2, v10
s_lshl_b32 s{T0}, s{sR}, 7
s_lshl_b32 s{T1}, s{sW}, 4
s_add_u32 s{T0}, s{T0}, s{T1}
s_add_u32 s{T0}, s{T0}, {F_H}
s_lshl_b32 s{T6}, s{sR}, 2
s_add_u32 s{T6}, s{T6}, s{sW}
s_mul_i32 s{T6}, s{T6}, 40960
s_mul_i32 s{T1}, s{sT10}, 20480
s_add_u32 s{T6}, s{T6}, s{T1}
s_add_u32 s{T6}, s{T6}, {HF}
v_add_u32 v11, 0x10000, v{vL16}
v_min_u32 v14, 19, v{vLANE}
v_lshlrev_b32 v14, 2, v14
s_lshl_b32 s{T5}, s{sJ}, 7
s_add_u32 s{T5}, s{T5}, {F_WO}""")
        self.vpoll(10, 63, T0)
        self.stamp('h_in')
        htok = []

        def issue_h():
            ks = len(htok)
            htok.append(p.vm(f'buffer_load_dwordx4 a[{4 * ks}:{4 * ks + 3}], v{vL16}, {WS}, s{T6} offen offset:{1024 * (ks & 3)} sc1'))
            if ks & 3 == 3:
                p.I(f's_add_u32 s{T6}, s{T6}, 4096')
            if ks == 19:
                p.I(f's_mul_i32 s{T0}, s{sT10}, 40960\ns_sub_u32 s{T6}, s{T6}, s{T0}')
        for _ in range(LA_H):
            issue_h()

        def rd(ks, T):
            off = (ks * 3 + T) * 1024
            b, off = (vL16, off) if off < 65536 else (11, off - 65536)
            r = 128 + 12 * (ks % 3) + 4 * T
            return p.ds(f'ds_read_b128 v[{r}:{r + 3}], v{b} offset:{off}')
        p.I('s_barrier')
        rt = {}
        for ks in range(2):
            for T in range(3):
                rt[ks] = rd(ks, T)
        for ks in range(40):
            if ks + 2 < 40 and (ks + 2) % 4 == 0 and (ks + 2) // 4 >= self.LA_C:
                p.wait(vm=self.chunk_tok[(ks + 2) // 4])
                p.I('s_barrier')
            if ks % 4 == 0 and len(self.chunk_tok) < 10:
                self.issue_chunk()
            if len(htok) < 40:
                issue_h()
            if ks == 35:
                tf = p.vm(f'buffer_load_dword v15, v14, {WS}, s{T5} offen sc1')
            p.wait(vm=htok[ks], ds=rt[ks])
            for T in range(3):
                r = 128 + 12 * (ks % 3) + 4 * T
                acc = vr(64 + 16 * T, 16)
                p.I(f'v_mfma_f32_32x32x16_bf16 {acc}, v[{r}:{r + 3}], a[{4 * ks}:{4 * ks + 3}], {acc if ks else 0}')
                if ks + 2 < 40:
                    rt[ks + 2] = rd(ks + 2, T)
        self.stamp('p1_main')
        p.I(f"""s_barrier
s_lshl_b32 s{T0}, s{sT10}, 1
s_add_u32 s{T0}, s{T0}, s{sW}
s_and_b32 s{T0}, s{T0}, 3
s_mul_i32 s{T7}, s{T0}, 10240
s_mul_i32 s{T0}, s{sC}, 0xa000
s_add_u32 s{T7}, s{T7}, s{T0}
s_add_u32 s{T7}, s{T7}, {W1T}
s_mul_i32 s{T8}, s{sW}, 10240""")
        for n in (4, 4, 2):
            self.t_t3 = self.dma(T7, T8, n)
            p.I(f's_add_u32 s{T7}, s{T7}, 4096\ns_add_u32 s{T8}, s{T8}, 4096')
        self.check_flags(tf, 15, 14, T5)
        p.I(f's_mul_i32 s{T6}, s{sJ}, 0x19000\ns_add_u32 s{T6}, s{T6}, {WOF}')
        self.dma_rot(T6, 0, 5, 40960)

    def chain_softmax(self, src, out):
        p = self.p
        for k in range(10):
            p.I(f'v_cvt_pk_bf16_f32 v{164 + k}, v{src + 2 * k}, v{src + 2 * k + 1}')
        p.I('v_mov_b32 v174, 0\nv_mov_b32 v175, 0')
        for kap in range(3):
            for mt in range(2):
                acc = vr(176 + 16 * mt, 16)
                fr = 232 + 12 * mt + 4 * kap
                p.I(f'v_mfma_f32_32x32x16_bf16 {acc}, v[{fr}:{fr + 3}], v[{164 + 4 * kap}:{167 + 4 * kap}], {acc if kap else 0}')
        P = 176
        p.I(f's_mov_b32 s{sCA}, {hex(f2u(LOG2E))}\ns_mov_b32 s{sCA + 1}, s{sCA}')
        p.I(f'v_max3_f32 v196, v{P}, v{P + 1}, v{P + 2}\nv_min3_f32 v198, v{P}, v{P + 1}, v{P + 2}')
        for k in range(3, 19, 2):
            p.I(f'v_max3_f32 v196, v196, v{P + k}, v{P + k + 1}\nv_min3_f32 v198, v198, v{P + k}, v{P + k + 1}')
        p.I(f'''v_max_f32 v196, v196, v{P + 19}
v_min_f32 v198, v198, v{P + 19}
v_mul_f32 v196, {hex(f2u(-LOG2E))}, v196
v_mul_f32 v198, {hex(f2u(LOG2E))}, v198''')
        E = 128
        ca = f's[{sCA}:{sCA + 1}]'
        for k in range(10):
            p.I(f'v_pk_fma_f32 v[{E + 2 * k}:{E + 2 * k + 1}], v[{P + 2 * k}:{P + 2 * k + 1}], {ca}, v[196:197] op_sel_hi:[1,1,0]')
            p.I(f'v_pk_fma_f32 v[{P + 2 * k}:{P + 2 * k + 1}], v[{P + 2 * k}:{P + 2 * k + 1}], {ca}, v[198:199] op_sel_hi:[1,1,0] neg_lo:[1,0,0] neg_hi:[1,0,0]')
        for k in range(20):
            p.I(f'v_exp_f32 v{E + k}, v{E + k}\nv_exp_f32 v{P + k}, v{P + k}')
        p.I(f'v_pk_add_f32 v[200:201], v[{E}:{E + 1}], v[{E + 2}:{E + 3}]\nv_pk_add_f32 v[202:203], v[{P}:{P + 1}], v[{P + 2}:{P + 3}]')
        for k in range(2, 10):
            p.I(f'v_pk_add_f32 v[200:201], v[200:201], v[{E + 2 * k}:{E + 2 * k + 1}]\n'
                f'v_pk_add_f32 v[202:203], v[202:203], v[{P + 2 * k}:{P + 2 * k + 1}]')
        p.I('v_add_f32 v200, v200, v201\nv_add_f32 v202, v202, v203\nv_rcp_f32 v200, v200\nv_rcp_f32 v202, v202')
        for k in range(10):
            p.I(f'v_pk_mul_f32 v[{E + 2 * k}:{E + 2 * k + 1}], v[{E + 2 * k}:{E + 2 * k + 1}], v[200:201] op_sel_hi:[1,0]')
            p.I(f'v_pk_mul_f32 v[{P + 2 * k}:{P + 2 * k + 1}], v[{P + 2 * k}:{P + 2 * k + 1}], v[202:203] op_sel_hi:[1,0]')
        for k in range(10):
            p.I(f'v_cvt_pk_bf16_f32 v{out + k}, v{E + 2 * k}, v{E + 2 * k + 1}\n'
                f'v_cvt_pk_bf16_f32 v{out + 10 + k}, v{P + 2 * k}, v{P + 2 * k + 1}')

    def p1_kv(self):
        p = self.p
        for k in range(10):
            p.I(f'v_cvt_pk_bf16_f32 v{152 + k}, v{84 + 2 * k}, v{85 + 2 * k}')
        p.I('v_mov_b32 v162, 0x3f80\nv_mov_b32 v163, 0')
        self.chain_softmax(64, 208)
        p.I(f'''v_and_b32 v4, 31, v{vLANE}
v_lshrrev_b32 v5, 5, v{vLANE}
v_lshlrev_b32 v5, 14, v5
v_lshl_add_u32 v5, v4, 7, v5
s_lshl_b32 s{T0}, s{sW}, 12
s_add_u32 s{T0}, s{T0}, {L_PHS}
v_add_u32 v5, s{T0}, v5
v_bfe_u32 v6, v{vLANE}, 1, 1
v_bfe_u32 v7, v{vLANE}, 2, 1
v_lshl_add_u32 v6, v6, 1, v7
v_and_b32 v7, 1, v{vLANE}
v_lshl_add_u32 v6, v6, 1, v7
v_lshl_add_u32 v5, v6, 4, v5''')
        for ch in range(8):
            src = 208 + 4 * ch if ch < 5 else 152 + 4 * (ch - 5)
            if ch:
                p.I(f'v_xor_b32 v{6 + (ch & 1)}, {16 * ch}, v5')
            p.ds(f'ds_write_b128 v{6 + (ch & 1) if ch else 5}, v[{src}:{src + 3}]')
        p.I(f'''v_bfe_u32 v4, v{vLANE}, 2, 2
v_lshrrev_b32 v5, 5, v{vLANE}
v_lshl_add_u32 v5, v5, 3, v4
v_lshlrev_b32 v5, 7, v5
s_lshr_b32 s{T0}, s{sW}, 1
s_lshl_b32 s{T0}, s{T0}, 14
s_add_u32 s{T0}, s{T0}, {L_PHS}
v_add_u32 v5, s{T0}, v5
v_lshrrev_b32 v6, 1, v4
v_and_b32 v7, 1, v4
v_lshl_add_u32 v6, v6, 2, v7
v_bfe_u32 v7, v{vLANE}, 4, 1
v_and_b32 v8, 1, v{vLANE}
v_bfe_u32 v9, v{vLANE}, 1, 1
v_lshl_add_u32 v10, v7, 1, v8
s_and_b32 s{T1}, s{sW}, 1
s_lshl_b32 s{T1}, s{T1}, 2
v_add_u32 v10, s{T1}, v10
v_xor_b32 v10, v10, v6
v_lshlrev_b32 v10, 4, v10
v_lshl_add_u32 v10, v9, 3, v10
v_add_u32 v12, v5, v10
v_xor_b32 v10, 32, v10
v_add3_u32 v13, v5, v10, s{T2}
v_lshl_add_u32 v10, v7, 1, v9
v_add_u32 v10, 5, v10
v_min_u32 v10, 7, v10
v_xor_b32 v10, v10, v6
v_lshlrev_b32 v10, 4, v10
v_lshl_add_u32 v10, v8, 3, v10
v_add_u32 v14, v5, v10
v_xor_b32 v10, 32, v10
v_add3_u32 v15, v5, v10, s{T2}'''.replace(f'v_add_u32 v12, v5, v10', f's_mov_b32 s{T2}, 512\nv_add_u32 v12, v5, v10'))
        p.wait_lgkm_all()
        p.I('s_barrier')
        toks = []
        for ks in range(8):
            a, b = 128 + 8 * (ks & 3), 132 + 8 * (ks & 3)
            if ks >= 4:
                self.kv_mfma(ks - 4, toks)
            p.ds(f'ds_read_b64_tr_b16 v[{a}:{a + 1}], v12 offset:{2048 * ks}')
            p.ds(f'ds_read_b64_tr_b16 v[{a + 2}:{a + 3}], v13 offset:{2048 * ks}')
            p.ds(f'ds_read_b64_tr_b16 v[{b}:{b + 1}], v14 offset:{2048 * ks}')
            toks.append(p.ds(f'ds_read_b64_tr_b16 v[{b + 2}:{b + 3}], v15 offset:{2048 * ks}'))
        for ks in range(4, 8):
            self.kv_mfma(ks, toks)
        p.I(f'''v_and_b32 v4, 31, v{vLANE}
s_and_b32 s{T1}, s{sW}, 1
s_lshl_b32 s{T2}, s{T1}, 5
v_and_b32 v5, s{T2}, v{vLANE}
v_add_u32 v4, v4, v5
v_mov_b32 v5, {OOB}
v_cmp_lt_u32 vcc, 20, v4
v_cndmask_b32 v4, v{vL16}, v5, vcc
s_lshl_b32 s{T0}, s{sC}, 4
s_add_u32 s{T0}, s{T0}, s{sR}
s_mul_i32 s{T0}, s{T0}, 5120
s_lshr_b32 s{T2}, s{sW}, 1
s_mul_i32 s{T2}, s{T2}, 2560
s_add_u32 s{T0}, s{T0}, s{T2}
s_lshl_b32 s{T2}, s{T1}, 11
s_add_u32 s{T0}, s{T0}, s{T2}
s_add_u32 s{T0}, s{T0}, {KVP}
s_cmp_eq_u32 s{T1}, 0
s_cselect_b32 s{T1}, s{T0}, {OOB}''')
        for k in range(8):
            p.I(f'v_cvt_pk_bf16_f32 v{128 + k}, v{176 + 2 * k}, v{177 + 2 * k}')
        p.vm(f'buffer_store_dwordx4 v[128:131], v4, {WS}, s{T0} offen sc1')
        p.vm(f'buffer_store_dwordx4 v[132:135], v4, {WS}, s{T1} offen offset:1024 sc1')
        p.I(f'''s_lshl_b32 s{T0}, s{sRB}, 18
s_lshl_b32 s{T1}, s{sJ}, 15
s_add_u32 s{T0}, s{T0}, s{T1}
s_lshl_b32 s{T1}, s{sW}, 13
s_add_u32 s{T0}, s{T0}, s{T1}
s_add_u32 s{T0}, s{T0}, {WSF}
s_add_u32 s{T1}, s{T0}, 4096
s_lshl_b32 s{T2}, s{sC}, 7
s_lshl_b32 s{T3}, s{sR}, 2
s_add_u32 s{T2}, s{T2}, s{T3}
s_add_u32 s{T2}, s{T2}, {F_KV}''')
        self.wave0(T2, T2)
        p.wait_vm_all()
        p.I('s_barrier')
        self.flag(T2, 46, False)
        self.stamp('kv_pub')
        for n in range(8):
            p.vm(f'buffer_store_dwordx4 a[{212 + 4 * n}:{215 + 4 * n}], v{vL16}, {WS}, s{T0 if n < 4 else T1} offen offset:{1024 * (n & 3)} sc1')
        self.raw_loads()
        self.dma_range(T6, 80, 100, 40960 + 81920)

    def kv_mfma(self, ks, toks):
        p = self.p
        a, b = 128 + 8 * (ks & 3), 132 + 8 * (ks & 3)
        p.wait(ds=toks[ks])
        p.I(f'v_mfma_f32_32x32x16_bf16 v[176:191], v[{a}:{a + 3}], v[{b}:{b + 3}], {"v[176:191]" if ks else 0}')

    def p1_q(self):
        p = self.p

        def rd(ks):
            r = 128 + 4 * (ks & 3)
            return p.ds(f'ds_read_b128 v[{r}:{r + 3}], v{vL16} offset:{1024 * ks}')
        toks = [rd(0), rd(1), rd(2)]
        for ks in range(40):
            if ks + 3 < 40:
                toks.append(rd(ks + 3))
            p.wait(ds=toks[ks])
            r = 128 + 4 * (ks & 3)
            p.I(f'v_mfma_f32_32x32x16_bf16 v[112:127], v[{r}:{r + 3}], a[{4 * ks}:{4 * ks + 3}], {"v[112:127]" if ks else 0}')
        self.stamp('t3_done')
        self.chain_softmax(104, 208)
        self.stamp('q_done')

    def repack_mid(self):
        p = self.p
        p.I('s_barrier\nv_lshlrev_b32 v4, 4, v0')
        p.wait(vm=self.t_rawp1)
        for k in range(4):
            p.ds(f'ds_write_b128 v4, a[{160 + 4 * k}:{163 + 4 * k}] offset:{4096 * k}')
        for k in range(2):
            p.ds(f'ds_write_b128 v4, a[{176 + 4 * k}:{179 + 4 * k}] offset:{16384 + 4096 * k}')
        for k in range(20):
            p.I(f'v_accvgpr_read_b32 v{64 + k}, a{184 + k}')
        self.gemv(4, 64, 80, L_SCR_G2)
        self.trbase16(35, 512, 36)
        p.I(f"""s_lshr_b32 s{T2}, s{sW}, 1
s_and_b32 s{T3}, s{sW}, 1
s_cmp_eq_u32 s{T2}, 0
s_cselect_b32 s{T4}, 8, 48
s_cselect_b32 s{T5}, 32, 8
s_cselect_b32 s{T6}, 0, 192
s_mul_i32 s{T1}, s{T5}, 3
s_mul_i32 s{T1}, s{T1}, s{T3}
s_add_u32 s{T6}, s{T6}, s{T1}
v_mul_lo_u32 v37, v36, s{T4}
v_add3_u32 v37, v37, v35, s{T6}
v_add_u32 v38, s{T5}, v37
v_add_u32 v39, s{T5}, v38
s_mul_i32 s{T0}, s{sJ}, 0x3c000
s_mul_i32 s{T1}, s{T2}, 0x1e000
s_add_u32 s{T0}, s{T0}, s{T1}
s_mul_i32 s{T1}, s{sRB}, 6144
s_add_u32 s{T0}, s{T0}, s{T1}
s_mul_i32 s{T1}, s{T3}, 3072
s_add_u32 s{T0}, s{T0}, s{T1}
s_add_u32 s{T0}, s{T0}, {W2F}
s_cmp_lt_u32 s{sRB}, 20
s_cselect_b32 s{T2}, s{T0}, {OOB}
s_mul_i32 s{T3}, s{sT9}, 384
s_add_u32 s{T3}, s{T3}, {M2}
s_cmp_lt_u32 s{sI}, 25
s_cselect_b32 s{T3}, s{T3}, {OOB}
s_mul_i32 s{T4}, s{sJ}, 0x1e000
s_mul_i32 s{T1}, s{sRB}, 5120
s_add_u32 s{T4}, s{T4}, s{T1}
s_add_u32 s{T4}, s{T4}, {WOUTF}
s_cmp_lt_u32 s{sRB}, 24
s_cselect_b32 s{T4}, s{T4}, {OOB}""")
        self.repack5_addr(16384)
        p.wait_lgkm_all()
        p.I('s_barrier')
        self.gemv_pub(T3)
        for k in range(3):
            p.ds(f'ds_read_b64_tr_b16 v[{64 + 4 * k}:{65 + 4 * k}], v{37 + k}')
            t = p.ds(f'ds_read_b64_tr_b16 v[{66 + 4 * k}:{67 + 4 * k}], v{37 + k} offset:2048')
        p.wait(ds=t)
        for k in range(3):
            p.vm(f'buffer_store_dwordx4 v[{64 + 4 * k}:{67 + 4 * k}], v{vL16}, {WS}, s{T2} offen offset:{1024 * k} sc1')
        self.repack5(T4, 76)
        self.stamp('rp_done')

    def repack_flags(self):
        p = self.p
        self.flag_ks(F_WIN, 20)
        self.flag(T0, 46, False)
        self.flag_ks(F_WOUT, 24)
        self.flag(T0, 46, False)
        p.I(f"""s_lshl_b32 s{T0}, s{sROLE}, 2
s_add_u32 s{T0}, s{T0}, {F_WS}""")
        self.wave0(T0, T0)
        self.flag(T0, 46, False)

    def p1_o(self):
        p = self.p
        p.I(f'''v_mul_u32_u24 v4, 3121, v0
v_lshrrev_b32 v4, 16, v4
v_mul_u32_u24 v5, 21, v4
v_sub_u32 v5, v0, v5
v_lshlrev_b32 v5, 4, v5
v_lshl_add_u32 v6, v4, 9, v5
v_mul_u32_u24 v4, 384, v4
v_add3_u32 v7, v4, v5, s{T2}
v_mov_b32 v4, {OOB}
v_mov_b32 v5, {L_ZERO + 2048}
v_cmp_gt_u32 vcc, 210, v0
v_cndmask_b32 v6, v4, v6, vcc
v_cndmask_b32 v7, v5, v7, vcc
v_bfe_u32 v4, v{vLANE}, 3, 2
v_and_b32 v5, 3, v{vLANE}
v_lshl_add_u32 v4, v4, 2, v5
v_bfe_u32 v5, v{vLANE}, 2, 1
v_mul_u32_u24 v8, 1920, v5
v_lshl_add_u32 v8, v4, 4, v8
v_add_u32 v8, {L_KVR}, v8
v_lshrrev_b32 v9, 5, v{vLANE}
v_mov_b32 v10, {L_ZERO}
v_cmp_eq_u32 vcc, v5, v9
v_cndmask_b32 v8, v10, v8, vcc
v_add_u32 v11, 256, v8
v_cmp_ge_u32 vcc, 4, v4
v_cndmask_b32 v11, v10, v11, vcc
v_bfe_u32 v4, v{vLANE}, 4, 1
v_mul_u32_u24 v4, 20480, v4
v_and_b32 v5, 15, v{vLANE}
v_lshl_add_u32 v4, v5, 4, v4
v_lshl_add_u32 v12, v9, 9, v4
v_lshl_add_u32 v13, v9, 3, v4
s_lshl_b32 s{T5}, s{sR}, 2
s_add_u32 s{T5}, s{T5}, s{sW}
s_mul_i32 s{T5}, s{T5}, 40960
s_mul_i32 s{T1}, s{sC}, 1280
s_add_u32 s{T5}, s{T5}, s{T1}
s_add_u32 s{T5}, s{T5}, {OF}
s_mul_i32 s{T6}, s{sC}, {16 * 5120}
s_add_u32 s{T6}, s{T6}, {KVP}
s_lshl_b32 s{T0}, s{sC}, 7
s_add_u32 s{T0}, s{T0}, {F_KV}'''.replace('v_mul_u32_u24 v4, 384, v4', f's_mov_b32 s{T2}, {L_KVR}\nv_mul_u32_u24 v4, 384, v4'))
        self.pretouch([f'buffer_load_dword v63, v12, {WS}, s{T5} offen sc1',
                       f'buffer_load_dword v63, v12, {WS}, s{T5} offen offset:256 sc1',
                       f'buffer_load_dword v63, v13, {WS}, s{T5} offen offset:1024 sc1'])
        self.spoll_n(T0, 16)
        self.stamp('kv_in')
        toks = []
        for r in range(16):
            toks.append(p.vm(f'buffer_load_dwordx4 v[{64 + 4 * r}:{67 + 4 * r}], v6, {WS}, s{T6} offen sc1'))
            if r < 15:
                p.I(f's_add_u32 s{T6}, s{T6}, 5120')
        p.I('v_mov_b32 v38, 0x3f80\nv_mov_b32 v39, 1.0')
        for n in range(8):
            p.I(f'v_mov_b32 v{40 + n}, 0')
        for r in range(16):
            p.wait(vm=toks[r])
            for d in range(4):
                p.I(f'v_dot2c_f32_bf16 v{40 + 2 * d}, v{64 + 4 * r + d}, v38\nv_dot2c_f32_bf16 v{41 + 2 * d}, v{64 + 4 * r + d}, v39')
        for d in range(4):
            p.I(f'v_cvt_pk_bf16_f32 v{48 + d}, v{40 + 2 * d}, v{41 + 2 * d}')
        p.ds('ds_write_b128 v7, v[48:51]')
        p.wait_lgkm_all()
        p.I('s_barrier')
        toks = []
        for ks in range(5):
            p.ds(f'ds_read_b128 v[{64 + 8 * ks}:{67 + 8 * ks}], v8 offset:{384 * ks}')
            toks.append(p.ds(f'ds_read_b128 v[{68 + 8 * ks}:{71 + 8 * ks}], v11 offset:{384 * ks}'))
        self.repack_flags()
        for ks in range(5):
            p.wait(ds=toks[ks])
            for tp in range(2):
                acc = vr(128 + 16 * tp, 16)
                r = 64 + 8 * ks + 4 * tp
                p.I(f'v_mfma_f32_32x32x16_bf16 {acc}, v[{r}:{r + 3}], v[{208 + 4 * ks}:{211 + 4 * ks}], {acc if ks else 0}')
        p.I(f'''s_lshl_b32 s{T0}, s{sR}, 8
s_lshl_b32 s{T1}, s{sW}, 6
s_add_u32 s{T0}, s{T0}, s{T1}
s_lshl_b32 s{T1}, s{sC}, 2
s_add_u32 s{T0}, s{T0}, s{T1}
s_add_u32 s{T0}, s{T0}, {F_O}
v_add_f32 v148, {hex(f2u(1e-6))}, v148
v_rcp_f32 v148, v148''')
        for k in range(10):
            p.I(f'v_pk_mul_f32 v[{128 + 2 * k}:{129 + 2 * k}], v[{128 + 2 * k}:{129 + 2 * k}], v[148:149] op_sel_hi:[1,0]')
        for k in range(10):
            p.I(f'v_cvt_pk_bf16_f32 v{152 + k}, v{128 + 2 * k}, v{129 + 2 * k}')
        t = self.lstores([f'buffer_store_dwordx4 v[152:155], v12, {WS}, s{T5} offen',
                          f'buffer_store_dwordx4 v[156:159], v12, {WS}, s{T5} offen offset:256',
                          f'buffer_store_dwordx2 v[160:161], v13, {WS}, s{T5} offen offset:1024'])
        p.wait(vm=t)
        self.flag(T0, 46, True)
        self.stamp('o_pub')

    def wsp_load(self, n):
        p = self.p
        for _ in range(n):
            if self.nws >= 64:
                return
            k = self.nws
            if k % 16 == 0:
                p.I(f"""s_add_u32 s{sT10}, s{sRB}, {k // 16}
s_and_b32 s{sT10}, s{sT10}, 3
s_lshl_b32 s{sT10}, s{sT10}, 14
s_lshl_b32 s3, s{sRB}, 2
s_add_u32 s3, s3, s{sW}
s_lshl_b32 s3, s3, 16
s_add_u32 s{sT10}, s{sT10}, s3
s_add_u32 s{sT10}, s{sT10}, {WSF}""")
            self.t_ws = p.vm(f'buffer_load_dwordx4 a[{4 * k}:{4 * k + 3}], v{vL16}, {WS}, s{sT10} offen offset:{1024 * (k & 3)} sc1')
            if k & 3 == 3 and k % 16 != 15:
                p.I(f's_add_u32 s{sT10}, s{sT10}, 4096')
            self.nws += 1

    def dma_range(self, src0, n0, n1, lds0):
        p = self.p
        per = (n1 - n0) // 4
        assert per * 4 == n1 - n0
        p.I(f'''s_mul_i32 s{T8}, s{sW}, {per * 1024}
s_add_u32 s{T7}, s{T8}, s{src0}
s_add_u32 s{T7}, s{T7}, {n0 * 1024}
s_add_u32 s{T8}, s{T8}, {lds0}''')
        tok = None
        while per:
            n = min(per, 4)
            tok = self.dma(T7, T8, n)
            per -= n
            if per:
                p.I(f's_add_u32 s{T7}, s{T7}, 4096\ns_add_u32 s{T8}, s{T8}, 4096')
        return tok

    def lds_frag(self, r, addr):
        b = (vL16, 5, 6)[addr >> 16]
        return self.p.ds(f'ds_read_b128 v[{r}:{r + 3}], v{b} offset:{addr & 0xffff}')

    def gemm16(self, nks, nt, btok, breg, addr_of, abuf, acc, swap=False, hook=None, pre=None):
        p = self.p
        buf = lambda ks, n: abuf + 4 * nt * (ks % 3) + 4 * n
        rt = {}
        for ks in range(2):
            if pre:
                pre(ks)
            for n in range(nt):
                rt[ks] = self.lds_frag(buf(ks, n), addr_of(ks, n))
        for ks in range(nks):
            if pre and ks + 2 < nks:
                pre(ks + 2)
            if hook:
                hook(ks)
            p.wait(vm=btok[ks] if btok else None, ds=rt[ks])
            for n in range(nt):
                w = vr(buf(ks, n), 4)
                x = vr(breg + 4 * ks, 4)
                d = vr(acc + 4 * n, 4)
                a, b = (x, w) if swap else (w, x)
                p.I(f'v_mfma_f32_16x16x32_bf16 {d}, {a}, {b}, {d if ks else 0}')
                if ks + 2 < nks:
                    rt[ks + 2] = self.lds_frag(buf(ks + 2, n), addr_of(ks + 2, n))

    def tile_addr(self):
        self.p.I(f"""v_lshrrev_b32 v4, 4, v{vLANE}
v_and_b32 v11, 15, v{vLANE}
v_lshlrev_b32 v9, 5, v4
v_lshlrev_b32 v10, 3, v4
v_add_u32 v10, 128, v10
v_mul_u32_u24 v8, 1280, v11
v_add_u32 v7, v8, v9
v_add_u32 v8, v8, v10
s_and_b32 s{T0}, s{sJ}, 3
s_lshl_b32 s{T0}, s{T0}, 5
v_add_u32 v9, s{T0}, v9
v_lshrrev_b32 v4, 7, v9
v_lshl_add_u32 v9, v4, 4, v9
v_add_u32 v9, {L_M2}, v9
s_add_u32 s{T0}, s{T0}, {L_M2 + 16}
v_add_u32 v10, s{T0}, v10""")

    def load_vec(self, dst, vec):
        p = self.p
        p.ds(f'ds_read_b128 v[{dst}:{dst + 3}], v9 offset:{288 * vec}')
        p.ds(f'ds_read_b128 v[{dst + 4}:{dst + 7}], v9 offset:{288 * vec + 16}')
        return p.ds(f'ds_read_b64 v[{dst + 8}:{dst + 9}], v10 offset:{288 * vec}')

    def rstd(self, s, q, n):
        self.p.I(f'''s_mov_b32 s{T2}, {hex(f2u(1 / n))}
v_mul_f32 v{s}, s{T2}, v{s}
v_mul_f32 v4, v{s}, v{s}
v_fma_f32 v{q}, v{q}, s{T2}, -v4
v_max_f32 v{q}, 0, v{q}
v_add_f32 v{q}, {hex(f2u(1e-5))}, v{q}
v_rsq_f32 v{q}, v{q}
v_mul_f32 v{s}, -v{s}, v{q}''')

    def p2a(self):
        p = self.p
        X1, GA, A2, SBv, ACC = 232, 16, 76, 96, 204
        PA2, PSB = 36, 46
        p.I(f'v_add_u32 v5, 0x10000, v{vL16}\nv_add_u32 v6, 0x20000, v{vL16}')
        self.tile_addr()
        xs = self.srd(SA, P_X, 2048 * 1280)
        p.I(f"""s_lshl_b32 s{T6}, s{sRB}, 2
s_add_u32 s{T6}, s{T6}, s{sW}
s_mul_i32 s{T1}, s{T6}, {16 * 1280}
s_mul_i32 s{T2}, s{sJ}, 160
s_add_u32 s{sT9}, s{T1}, s{T2}""")
        p.vm(f'buffer_load_dwordx4 v[64:67], v7, {xs}, s{sT9} offen')
        p.vm(f'buffer_load_dwordx4 v[68:71], v7, {xs}, s{sT9} offen offset:16')
        p.vm(f'buffer_load_dwordx2 v[72:73], v8, {xs}, s{sT9} offen')
        p.I(f"""v_lshlrev_b32 v12, 4, v11
v_lshrrev_b32 v4, 4, v{vLANE}
v_lshl_add_u32 v13, v4, 9, v12
v_lshrrev_b32 v14, 1, v4
v_lshl_add_u32 v14, v14, 8, v12
v_and_b32 v15, 1, v4
v_lshl_add_u32 v14, v15, 3, v14
v_lshl_add_u32 v15, v4, 10, v12
s_mul_i32 s{T5}, s{T6}, 20480
s_mul_i32 s{T1}, s{sJ}, 2560
s_add_u32 s{T4}, s{T5}, s{T1}
s_add_u32 s{T4}, s{T4}, {H2F}
s_add_u32 s{T5}, s{T5}, {OF}
s_lshl_b32 s{T3}, s{sRB}, 13
s_lshl_b32 s{T1}, s{sW}, 8
s_add_u32 s{T3}, s{T3}, s{T1}
s_add_u32 s{T3}, s{T3}, {ST2}
s_lshl_b32 s{T1}, s{sJ}, 10
s_add_u32 s{T6}, s{T3}, s{T1}""")
        self.pretouch([f'buffer_load_dword v63, v13, {WS}, s{T4} offen sc1',
                       f'buffer_load_dword v63, v13, {WS}, s{T4} offen offset:256 sc1',
                       f'buffer_load_dword v63, v14, {WS}, s{T4} offen offset:2048 sc1',
                       f'buffer_load_dword v63, v12, {WS}, s{T6} offen sc1'])
        p.I(f"""v_min_u32 v56, 175, v0
v_mul_u32_u24 v57, 2979, v56
v_lshrrev_b32 v57, 16, v57
v_mul_u32_u24 v58, 22, v57
v_sub_u32 v58, v56, v58
v_lshrrev_b32 v59, 1, v57
v_mul_u32_u24 v60, 10, v59
v_and_b32 v61, 1, v57
s_mul_i32 s{T0}, s{sJ}, 5
s_lshr_b32 s{T0}, s{T0}, 2
v_add3_u32 v60, v60, v61, s{T0}
v_mul_u32_u24 v60, 1920, v60
v_lshl_add_u32 v60, v58, 4, v60
v_mul_u32_u24 v57, 144, v57
v_mul_u32_u24 v58, 6, v58
s_mov_b32 s{T0}, {L_M2}
v_add3_u32 v61, v57, v58, s{T0}
v_cmp_eq_u32 vcc, 2, v59
v_cndmask_b32 v62, 0, 1.0, vcc
s_mov_b32 s{T0}, {M2}
v_mov_b32 v57, s{sTAG}""")
        loop, done = p.newlabel('m2'), p.newlabel('m2d')
        p.L(loop)
        for k in range(5):
            p.vm(f'buffer_load_dwordx4 v[{76 + 4 * k}:{79 + 4 * k}], v60, {WS}, s{T0} offen offset:{384 * k} sc1')
        p.wait_vm_all()
        p.I('v_xor_b32 v56, v79, v57')
        for k in range(1, 5):
            p.I(f'v_bitop3_b32 v56, v56, v{79 + 4 * k}, v57 bitop3:0xf6')
        p.I(f'v_cmp_ne_u32 vcc, 0, v56\ns_cmp_eq_u64 vcc, 0\ns_cbranch_scc1 {done}')
        self.spin_tail(loop, done)
        self.mod_finish(76, 1, 5, 62, 61)
        self.unpack(X1, 64, 10)
        p.I(f"""v_min_u32 v56, 51, v{vLANE}
v_lshlrev_b32 v56, 2, v56
s_lshl_b32 s{T0}, s{sJ}, 7
s_add_u32 s{T1}, s{T0}, {F_WIN}
s_add_u32 s{T0}, s{T0}, {F_WOUT - 80}
s_lshl_b32 s{T2}, s{sRB}, 5
s_add_u32 s{T2}, s{T2}, {F_WS - 176}
v_mov_b32 v57, s{T1}
v_mov_b32 v58, s{T0}
v_cmp_lt_u32 vcc, 19, v{vLANE}
v_cndmask_b32 v57, v57, v58, vcc
v_mov_b32 v58, s{T2}
v_cmp_lt_u32 vcc, 43, v{vLANE}
v_cndmask_b32 v57, v57, v58, vcc
v_add_u32 v61, v56, v57
v_lshlrev_b32 v4, 2, v11
s_lshl_b32 s{T0}, s{sR}, 8
s_and_b32 s{T1}, s{sRB}, 1
s_lshl_b32 s{T1}, s{T1}, 1
s_lshr_b32 s{T2}, s{sW}, 1
s_add_u32 s{T1}, s{T1}, s{T2}
s_lshl_b32 s{T1}, s{T1}, 6
s_add_u32 s{T0}, s{T0}, s{T1}
s_add_u32 s{T0}, s{T0}, {F_O}
s_mul_i32 s{sCA}, s{sJ}, 0x3c000
s_add_u32 s{sCA}, s{sCA}, {W2F}
s_mov_b32 s{sCA + 1}, 0""")
        self.stamp('p2a_prep')
        self.vpoll(4, 63, T0)
        self.stamp('o_in')
        bt = []
        for ks in range(20):
            bt.append(p.vm(f'buffer_load_dwordx4 v[{64 + 4 * ks}:{67 + 4 * ks}], v{vL16}, {WS}, s{T5} offen offset:{1024 * (ks & 3)} sc1'))
            if ks & 3 == 3:
                p.I(f's_add_u32 s{T5}, s{T5}, 4096')
        tf = p.vm(f'buffer_load_dword v62, v61, {WS}, s{sCA + 1} offen sc1')
        p.wait_lgkm_all()
        p.I('s_barrier')
        self.load_vec(PA2, 2)
        self.load_vec(PSB, 1)
        self.nws = 0

        def hook(ks):
            if ks == 19:
                self.check_flags(tf, 62, 61, sCA + 1)
                self.dma_range(sCA, 0, 36, 0)
        self.gemm16(20, 5, bt, 64, lambda ks, n: 40960 + (ks * 5 + n) * 1024, 144, ACC, hook=hook)
        tg = self.load_vec(64, 0)
        p.wait(ds=tg)
        self.unpack(GA, 64, 10)
        p.I('s_barrier')
        self.stamp('p2a_mm')
        for k in range(10):
            p.I(f'v_pk_fma_f32 v[{X1 + 2 * k}:{X1 + 2 * k + 1}], v[{GA + 2 * k}:{GA + 2 * k + 1}], v[{ACC + 2 * k}:{ACC + 2 * k + 1}], v[{X1 + 2 * k}:{X1 + 2 * k + 1}]')
        p.I(f'v_pk_add_f32 v[56:57], v[{X1}:{X1 + 1}], v[{X1 + 2}:{X1 + 3}]\nv_pk_mul_f32 v[58:59], v[{X1}:{X1 + 1}], v[{X1}:{X1 + 1}]')
        for k in range(1, 10):
            x = f'v[{X1 + 2 * k}:{X1 + 2 * k + 1}]'
            if k > 1:
                p.I(f'v_pk_add_f32 v[56:57], v[56:57], {x}')
            p.I(f'v_pk_fma_f32 v[58:59], {x}, {x}, v[58:59]')
        p.I('v_add_f32 v56, v56, v57\nv_add_f32 v58, v58, v59')
        self.xreduce_sq(56, 58, 57)
        p.I(f'v_mov_b32 v58, s{sTAG}\nv_mov_b32 v59, 0\ns_mov_b64 exec, 0xffff')
        self.lstores([f'buffer_store_dwordx4 v[56:59], v12, {WS}, s{T6} offen'])
        p.I(f's_mov_b64 exec, -1\ns_add_u32 s{T1}, s{T3}, 4096')
        self.unpack(A2, PA2, 10)
        self.unpack(SBv, PSB, 10)
        loop, done = p.newlabel('s2'), p.newlabel('s2d')
        p.L(loop)
        p.vm(f'buffer_load_dwordx4 v[64:67], v15, {WS}, s{T3} offen sc1')
        p.vm(f'buffer_load_dwordx4 v[68:71], v15, {WS}, s{T1} offen sc1')
        p.wait_vm_all()
        p.I(f'''v_cmp_ne_u32 vcc, s{sTAG}, v66
v_cmp_ne_u32 s[{sM}:{sM + 1}], s{sTAG}, v70
s_or_b64 vcc, vcc, s[{sM}:{sM + 1}]
s_cmp_eq_u64 vcc, 0
s_cbranch_scc1 {done}''')
        self.spin_tail(loop, done)
        self.stamp('st2_in')
        p.I('v_add_f32 v56, v64, v68\nv_add_f32 v60, v65, v69')
        self.xreduce_sq(56, 60, 58)
        self.rstd(56, 58, 640)
        for k in range(10):
            p.I(f'v_pk_fma_f32 v[{ACC + 2 * k}:{ACC + 2 * k + 1}], v[{X1 + 2 * k}:{X1 + 2 * k + 1}], v[58:59], v[56:57] op_sel_hi:[1,0,0]')
        for k in range(10):
            p.I(f'v_pk_fma_f32 v[{ACC + 2 * k}:{ACC + 2 * k + 1}], v[{ACC + 2 * k}:{ACC + 2 * k + 1}], v[{A2 + 2 * k}:{A2 + 2 * k + 1}], v[{SBv + 2 * k}:{SBv + 2 * k + 1}]')
        for k in range(10):
            p.I(f'v_cvt_pk_bf16_f32 v{64 + k}, v{ACC + 2 * k}, v{ACC + 2 * k + 1}')
        t = self.lstores([f'buffer_store_dwordx4 v[64:67], v13, {WS}, s{T4} offen',
                          f'buffer_store_dwordx4 v[68:71], v13, {WS}, s{T4} offen offset:256',
                          f'buffer_store_dwordx2 v[72:73], v14, {WS}, s{T4} offen offset:2048'])
        p.I(f'''s_lshl_b32 s{T6}, s{sRB}, 7
s_lshl_b32 s{T1}, s{sW}, 5
s_add_u32 s{T6}, s{T6}, s{T1}
s_add_u32 s{T6}, s{T6}, {F_H2}
s_lshl_b32 s{T1}, s{sJ}, 2
s_add_u32 s{T0}, s{T6}, s{T1}''')
        p.wait(vm=t)
        self.flag(T0, 60, True)
        self.stamp('h2_pub')

    def gelu(self, x, n, t):
        p = self.p
        k0 = 0.7978845608028654
        A = -2 * LOG2E * k0
        B = A * 0.044715
        p.I(f's_mov_b32 s{sM}, {hex(f2u(B))}\ns_mov_b32 s{sM + 1}, s{sM}\nv_mov_b32 v56, {hex(f2u(A))}')
        pr = lambda b, k: f'v[{b + 2 * k}:{b + 2 * k + 1}]'
        for k in range(n // 2):
            p.I(f'v_pk_mul_f32 {pr(t, k)}, {pr(x, k)}, {pr(x, k)}')
        for k in range(n // 2):
            p.I(f'v_pk_fma_f32 {pr(t, k)}, {pr(t, k)}, s[{sM}:{sM + 1}], v[56:57] op_sel_hi:[1,1,0]')
        for k in range(n // 2):
            p.I(f'v_pk_mul_f32 {pr(t, k)}, {pr(t, k)}, {pr(x, k)}')
        for k in range(n):
            p.I(f'v_exp_f32 v{t + k}, v{t + k}')
        for k in range(n // 2):
            p.I(f'v_pk_add_f32 {pr(t, k)}, {pr(t, k)}, 1.0 op_sel_hi:[1,0]')
        for k in range(n):
            p.I(f'v_rcp_f32 v{t + k}, v{t + k}')
        for k in range(n // 2):
            p.I(f'v_pk_mul_f32 {pr(x, k)}, {pr(x, k)}, {pr(t, k)}')

    def p2b(self):
        p = self.p
        ACC, Z1, TMP = 16, 16, 144
        ta = self.dma_range(sCA, 36, 76, 40960)
        p.I(f'''v_and_b32 v4, 7, v{vLANE}
v_lshlrev_b32 v4, 2, v4
s_lshl_b32 s{T5}, s{sRB}, 2
s_add_u32 s{T5}, s{T5}, s{sW}
s_mul_i32 s{T5}, s{T5}, 20480
s_add_u32 s{T5}, s{T5}, {H2F}
v_lshrrev_b32 v12, 4, v{vLANE}
v_lshlrev_b32 v12, 6, v12
v_and_b32 v13, 3, v{vLANE}
v_lshl_add_u32 v13, v13, 4, v12
v_bfe_u32 v14, v{vLANE}, 3, 1
v_lshl_add_u32 v14, v14, 4, v12
v_and_b32 v15, 7, v{vLANE}
v_lshl_add_u32 v14, v15, 10, v14
s_lshl_b32 s{T3}, s{sRB}, 13
s_lshl_b32 s{T1}, s{sW}, 8
s_add_u32 s{T3}, s{T3}, s{T1}
s_add_u32 s{T3}, s{T3}, {ST3}
s_lshl_b32 s{T1}, s{sJ}, 10
s_add_u32 s{T4}, s{T3}, s{T1}''')
        self.pretouch([f'buffer_load_dword v63, v13, {WS}, s{T4} offen sc1'])
        self.vpoll(4, 63, T6)
        self.stamp('h2_in')
        bt = []
        for ks in range(20):
            bt.append(p.vm(f'buffer_load_dwordx4 v[{64 + 4 * ks}:{67 + 4 * ks}], v{vL16}, {WS}, s{T5} offen offset:{1024 * (ks & 3)} sc1'))
            if ks & 3 == 3:
                p.I(f's_add_u32 s{T5}, s{T5}, 4096')
        tb = self.dma_range(sCA, 76, 120, 40960 + 40 * 1024)
        p.I('s_barrier')
        z2addr = lambda n: n * 1024 if n < 36 else 40960 + (n - 36) * 1024

        def pre(ks):
            if ks == 12:
                p.wait(vm=tb)
                p.I('s_barrier')
        st = {}

        def hook(ks):
            if ks == 12:
                p.I(f's_add_u32 s{sCA}, s{sCA}, 0x1e000')
                st['c'] = self.dma_range(sCA, 0, 24, 40960 + 84 * 1024)
        self.gemm16(20, 6, bt, 64, lambda ks, n: z2addr(ks * 6 + n), TMP, ACC, swap=True, pre=pre, hook=hook)
        p.I('s_barrier')
        self.stamp('z2_mm')
        td = self.dma_range(sCA, 24, 64, 0)
        self.gelu(ACC, 24, TMP)
        pr = lambda b: f'v[{b}:{b + 1}]'
        p.I(f'v_pk_add_f32 v[40:41], {pr(ACC)}, {pr(ACC + 4)}\nv_pk_add_f32 v[42:43], {pr(ACC + 2)}, {pr(ACC + 6)}')
        p.I(f'v_pk_mul_f32 v[44:45], {pr(ACC)}, {pr(ACC)}\nv_pk_mul_f32 v[46:47], {pr(ACC + 2)}, {pr(ACC + 2)}')
        for ft in range(1, 6):
            a, b = pr(ACC + 4 * ft), pr(ACC + 4 * ft + 2)
            if ft > 1:
                p.I(f'v_pk_add_f32 v[40:41], v[40:41], {a}\nv_pk_add_f32 v[42:43], v[42:43], {b}')
            p.I(f'v_pk_fma_f32 v[44:45], {a}, {a}, v[44:45]\nv_pk_fma_f32 v[46:47], {b}, {b}, v[46:47]')
        for c in ('row_ror:8', 'row_ror:4', 'row_ror:2', 'row_ror:1'):
            self.dpp_add(range(40, 48), c)
        p.I(f'''s_mov_b32 vcc_lo, 0xaaaaaaaa
s_mov_b32 vcc_hi, 0xaaaaaaaa
v_cndmask_b32 v40, v40, v41, vcc
v_cndmask_b32 v42, v42, v43, vcc
v_cndmask_b32 v44, v44, v45, vcc
v_cndmask_b32 v46, v46, v47, vcc
s_mov_b32 vcc_lo, 0xcccccccc
s_mov_b32 vcc_hi, 0xcccccccc
v_cndmask_b32 v48, v40, v42, vcc
v_cndmask_b32 v49, v44, v46, vcc
v_mov_b32 v50, s{sTAG}
v_mov_b32 v51, 0
s_mov_b32 exec_lo, 0x000f000f
s_mov_b32 exec_hi, 0x000f000f''')
        self.lstores([f'buffer_store_dwordx4 v[48:51], v13, {WS}, s{T4} offen'])
        p.I('s_mov_b64 exec, -1')
        loop, done = p.newlabel('s3'), p.newlabel('s3d')
        p.L(loop)
        p.vm(f'buffer_load_dwordx4 v[40:43], v14, {WS}, s{T3} offen sc1')
        p.vm(f'buffer_load_dwordx4 v[44:47], v14, {WS}, s{T3} offen offset:32 sc1')
        p.wait_vm_all()
        p.I(f'''v_cmp_ne_u32 vcc, s{sTAG}, v42
v_cmp_ne_u32 s[{sM}:{sM + 1}], s{sTAG}, v46
s_or_b64 vcc, vcc, s[{sM}:{sM + 1}]
s_cmp_eq_u64 vcc, 0
s_cbranch_scc1 {done}''')
        self.spin_tail(loop, done)
        self.stamp('st3_in')
        for c in ('quad_perm:[1,0,3,2]', 'quad_perm:[2,3,0,1]', 'row_half_mirror'):
            self.dpp_add((40, 41, 44, 45), c)
        self.rstd(40, 41, 768)
        self.rstd(44, 45, 768)
        for dst, src in ((48, 41), (50, 45), (52, 40), (54, 44)):
            p.I(f'v_mov_b32_dpp v{dst}, v{src} row_newbcast:0 row_mask:0xf bank_mask:0xf\n'
                f'v_mov_b32_dpp v{dst + 1}, v{src} row_newbcast:8 row_mask:0xf bank_mask:0xf')
        for ft in range(6):
            for h in range(2):
                x = pr(ACC + 4 * ft + 2 * h)
                p.I(f'v_pk_fma_f32 {x}, {x}, {pr(48 + 2 * h)}, {pr(52 + 2 * h)}')
        for k in range(12):
            p.I(f'v_cvt_pk_bf16_f32 v{TMP + k}, v{ACC + 2 * k}, v{ACC + 2 * k + 1}')
        for F in range(3):
            p.I(f'v_permlane16_swap_b32 v{TMP + 4 * F}, v{TMP + 4 * F + 2}\nv_permlane16_swap_b32 v{TMP + 4 * F + 1}, v{TMP + 4 * F + 3}')
        p.I(f'''s_mul_i32 s{T5}, s{sJ}, {128 * 3072}
s_add_u32 s{T5}, s{T5}, {Z2F}
s_lshl_b32 s{T0}, s{sRB}, 2
s_add_u32 s{T0}, s{T0}, s{sW}
s_mul_i32 s{T0}, s{T0}, 3072
s_add_u32 s{T0}, s{T0}, s{T5}''')
        for F in range(3):
            p.vm(f'buffer_store_dwordx4 v[{TMP + 4 * F}:{TMP + 4 * F + 3}], v{vL16}, {WS}, s{T0} offen offset:{1024 * F} sc1')
        p.I(f'''s_lshl_b32 s{T6}, s{sJ}, 7
s_add_u32 s{T6}, s{T6}, {F_Z2}
s_lshl_b32 s{T1}, s{sRB}, 2
s_add_u32 s{T0}, s{T6}, s{T1}''')
        self.wave0(T0, T0)
        p.wait_vm_all()
        p.I('s_barrier')
        self.flag(T0, 60, False)
        self.stamp('z2_pub')
        te = self.dma_range(sCA, 64, 120, 40960)
        z1addr = lambda n: 40960 + (84 + n) * 1024 if n < 24 else (n - 24) * 1024 if n < 64 else 40960 + (n - 64) * 1024

        def pre1(ks):
            if ks == 10:
                p.wait(vm=te)
                p.I('s_barrier')
        self.gemm16(20, 6, None, 64, lambda ks, n: z1addr(ks * 6 + n), TMP, Z1, pre=pre1,
                    hook=lambda ks: self.wsp_load(4))
        self.wsp_load(64)
        bs = self.srd(SA, P_BSP, 4096)
        p.I(f'''s_lshl_b32 s{T0}, s{sRB}, 7
s_lshl_b32 s{T1}, s{sW}, 5
s_add_u32 s{T0}, s{T0}, s{T1}
v_lshlrev_b32 v4, 1, v11''')
        self.t_b = p.vm(f'buffer_load_ushort v40, v4, {bs}, s{T0} offen')
        self.gelu(Z1, 24, TMP)
        self.stamp('z1_done')

    def p3a(self):
        p = self.p
        ACC, RING, D, Z1 = 136, 44, 6, 16
        p.I(f"""s_lshl_b32 s{T1}, s{sW}, 5
s_add_u32 s{T0}, s{T6}, s{T1}
s_mul_i32 s{T1}, s{sW}, {32 * 3072}
s_add_u32 s{T6}, s{T5}, s{T1}
v_lshrrev_b32 v4, 4, v{vLANE}
v_mul_u32_u24 v12, 768, v4
v_lshl_add_u32 v12, v11, 4, v12
s_lshl_b32 s{T4}, s{sRB}, 2
s_add_u32 s{T4}, s{T4}, s{sW}
s_mul_i32 s{T4}, s{T4}, 24576
s_add_u32 s{T4}, s{T4}, {UF}
s_mul_i32 s{T1}, s{sJ}, 3072
s_add_u32 s{T3}, s{T4}, s{T1}""")
        self.spoll_n(T0, 8)
        self.stamp('z2_in')
        toks = []

        def issue():
            s = len(toks)
            if s % 8 == 0:
                p.I(f"""s_add_u32 s{T5}, s{sRB}, {s // 8}
s_and_b32 s{T5}, s{T5}, 3
s_mul_i32 s{T5}, s{T5}, {8 * 3072}
s_add_u32 s{T5}, s{T5}, s{T6}""")
            for F in range(3):
                r = RING + 12 * (s % D) + 4 * F
                t = p.vm(f'buffer_load_dwordx4 v[{r}:{r + 3}], v{vL16}, {WS}, s{T5} offen offset:{1024 * F} sc1')
            if s % 8 != 7:
                p.I(f's_add_u32 s{T5}, s{T5}, 3072')
            toks.append(t)
        for _ in range(D - 1):
            issue()
        for s in range(32):
            if len(toks) < 32:
                issue()
            if s == 33 - D:
                self.pretouch([f'buffer_load_dword v41, v12, {WS}, s{T3} offen offset:{256 * m} sc1' for m in range(3)])
                p.I(f's_mul_i32 s{sCA}, s{sJ}, 0x1e000\ns_add_u32 s{sCA}, s{sCA}, {WOUTF}\ns_barrier')
                self.dma_rot(sCA, 0, 3, 102400)
            p.wait(vm=toks[s])
            for F in range(3):
                for tt in range(2):
                    r = RING + 12 * (s % D) + 4 * F
                    acc = vr(ACC + 16 * (2 * F + tt), 16)
                    b = 4 * (2 * s + tt)
                    p.I(f'v_mfma_f32_32x32x16_bf16 {acc}, v[{r}:{r + 3}], a[{b}:{b + 3}], {acc if s else 0}')
        self.stamp('p3a_mm')
        p.I(f'''v_and_b32 v4, 31, v{vLANE}
v_mul_u32_u24 v13, 400, v4
v_lshrrev_b32 v4, 5, v{vLANE}
v_lshl_add_u32 v13, v4, 4, v13
s_mul_i32 s{T0}, s{sW}, 25600
v_add_u32 v13, s{T0}, v13
v_lshrrev_b32 v4, 4, v{vLANE}
v_mul_u32_u24 v14, 96, v4
v_mul_u32_u24 v4, 400, v11
s_mul_i32 s{T0}, s{sW}, 6400
v_add3_u32 v14, v14, v4, s{T0}
v_add_u32 v15, 51200, v14''')
        for F in range(3):
            for tt in range(2):
                for q in range(4):
                    r = ACC + 16 * (2 * F + tt) + 4 * q
                    p.ds(f'ds_write_b128 v13, v[{r}:{r + 3}] offset:{tt * 12800 + F * 128 + q * 32}')
        p.wait_lgkm_all()
        p.I('s_barrier')
        G = 44
        toks = []
        for m in range(6):
            for pp in range(4):
                r = G + 24 * pp + 4 * m
                t = p.ds(f'ds_read_b128 v[{r}:{r + 3}], v{14 + (pp >> 1)} offset:{25600 * (pp & 1) + 16 * m}')
            toks.append(t)
        p.wait(vm=self.t_b)
        p.I('v_lshlrev_b32 v42, 16, v40')
        pr = lambda b: f'v[{b}:{b + 1}]'
        for m in range(6):
            p.wait(ds=toks[m])
            for h in range(2):
                r = G + 4 * m + 2 * h
                p.I(f'v_pk_add_f32 {pr(r)}, {pr(r)}, {pr(r + 24)}\nv_pk_add_f32 {pr(r + 48)}, {pr(r + 48)}, {pr(r + 72)}')
            for h in range(2):
                r = G + 4 * m + 2 * h
                p.I(f'v_pk_add_f32 {pr(r)}, {pr(r)}, v[42:43] op_sel_hi:[1,0]')
            for h in range(2):
                r = G + 4 * m + 2 * h
                p.I(f'v_pk_add_f32 {pr(r)}, {pr(r)}, {pr(r + 48)}')
            for h in range(2):
                r = G + 4 * m + 2 * h
                p.I(f'v_pk_mul_f32 {pr(r)}, {pr(r)}, {pr(Z1 + 4 * m + 2 * h)}')
        for k in range(12):
            p.I(f'v_cvt_pk_bf16_f32 v{140 + k}, v{G + 2 * k}, v{G + 2 * k + 1}')
        t = self.lstores([f'buffer_store_dwordx4 v[{140 + 4 * m}:{143 + 4 * m}], v12, {WS}, s{T3} offen offset:{256 * m}'
                          for m in range(3)])
        p.I(f'''s_lshl_b32 s{T6}, s{sRB}, 7
s_lshl_b32 s{T1}, s{sW}, 5
s_add_u32 s{T6}, s{T6}, s{T1}
s_add_u32 s{T6}, s{T6}, {F_U}
s_lshl_b32 s{T1}, s{sJ}, 2
s_add_u32 s{T0}, s{T6}, s{T1}''')
        p.wait(vm=t)
        self.flag(T0, 60, True)
        self.stamp('u_pub')

    def p3b(self):
        p = self.p
        X1, ACC, GB = 232, 36, 16
        p.I('s_barrier')
        t = self.load_vec(40, 3)
        tb = self.dma_range(sCA, 48, 84, 0)
        p.I(f'v_and_b32 v4, 7, v{vLANE}\nv_lshlrev_b32 v4, 2, v4')
        p.wait(ds=t)
        self.unpack(GB, 40, 10)
        self.vpoll(4, 63, T6)
        self.stamp('u_in')
        bt = []
        for ks in range(24):
            bt.append(p.vm(f'buffer_load_dwordx4 v[{64 + 4 * ks}:{67 + 4 * ks}], v{vL16}, {WS}, s{T4} offen offset:{1024 * (ks & 3)} sc1'))
            if ks & 3 == 3:
                p.I(f's_add_u32 s{T4}, s{T4}, 4096')
            if ks == 11:
                tc = self.dma_range(sCA, 84, 120, 36 * 1024)
        p.I('s_barrier')
        addr = lambda n: 102400 + n * 1024 if n < 48 else (n - 48) * 1024

        def pre(ks):
            if ks == 16:
                p.wait(vm=tc)
                p.I('s_barrier')
        self.gemm16(24, 5, bt, 64, lambda ks, n: addr(ks * 5 + n), 160, ACC, pre=pre)
        os_ = self.srd(SA, P_OUT, 2048 * 1280)
        self.stamp('p3b_mm')
        for k in range(10):
            p.I(f'v_pk_fma_f32 v[{X1 + 2 * k}:{X1 + 2 * k + 1}], v[{GB + 2 * k}:{GB + 2 * k + 1}], v[{ACC + 2 * k}:{ACC + 2 * k + 1}], v[{X1 + 2 * k}:{X1 + 2 * k + 1}]')
        for k in range(10):
            p.I(f'v_cvt_pk_bf16_f32 v{64 + k}, v{X1 + 2 * k}, v{X1 + 2 * k + 1}')
        p.vm(f'buffer_store_dwordx4 v[64:67], v7, {os_}, s{sT9} offen')
        p.vm(f'buffer_store_dwordx4 v[68:71], v7, {os_}, s{sT9} offen offset:16')
        p.vm(f'buffer_store_dwordx2 v[72:73], v8, {os_}, s{sT9} offen')

    def build(self):
        p = self.p
        p.L(KNAME)
        stages = [('entry', self.entry), ('roles', self.roles), ('ln', self.ln_stats),
                  ('h', self.make_h), ('p1main', self.p1_main), ('kv', self.p1_kv), ('q', self.p1_q),
                  ('repack1', self.repack_mid), ('o', self.p1_o), ('p2a', self.p2a), ('p2b', self.p2b),
                  ('p3a', self.p3a), ('p3b', self.p3b)]
        for name, fn in stages:
            p.C(f'======== {name}')
            fn()
            if self.o.stop == name:
                break
        p.L('L_fin')
        if self.o.stop is None:
            p.I(f's_or_b32 s{T0}, s{sROLE}, s{sW}\ns_cmp_eq_u32 s{T0}, 0\ns_cselect_b32 s{T0}, {WS_EPOCH}, {OOB}')
            self.flag(T0, 60, False)
        if self.o.stamps:
            self.stamp('end')
            p.I(f'''s_lshl_b32 s{T0}, s{sROLE}, 2
s_add_u32 s{T0}, s{T0}, s{sW}
s_lshl_b32 s{T0}, s{T0}, 8
s_add_u32 s{T0}, s{T0}, {STAMPS}
v_lshlrev_b32 v4, 2, v{vLANE}''')
            p.vm(f'buffer_store_dword v{vSTAMP}, v4, {WS}, s{T0} offen')
            if self.o.dbgrole is not None:
                d = self.srd(SA, P_DBG, 256)
                p.I(f'''v_readlane_b32 s{T1}, v{vSTAMP}, 0
v_subrev_u32 v5, s{T1}, v{vSTAMP}
v_lshlrev_b32 v4, 1, v{vLANE}
s_lshl_b32 s{T0}, s{sROLE}, 2
s_add_u32 s{T0}, s{T0}, s{sW}
s_cmp_eq_u32 s{T0}, {4 * self.o.dbgrole}
s_cselect_b32 s{T0}, 0, {OOB}''')
                p.vm(f'buffer_store_short v5, v4, {d}, s{T0} offen')
        p.I('s_endpgm')
        for lg, lb, texts in self.ool:
            p.L(lg)
            for t in texts:
                p.vm(t, count=False)
            p.I(f's_branch {lb}')
        p.L('L_end')
        p.I('s_endpgm')
        head = open('adaLN_cond__linear_kernel_hedgehog__mixer_gmlp__prompt.s.ref').read().split('\n')
        hdr = [l for l in head if l.startswith(';') and '@launch' not in l and 'Override' not in l and 'grid=ceil' not in l]
        txt = '\n'.join(hdr) + f'\n; @launch grid=(256,1,1) block=(256,1,1) lds={LDS_BYTES}\n'
        txt += f'.amdgcn_target "amdgcn-amd-amdhsa--gfx950"\n.text\n.globl {KNAME}\n.p2align 8\n.type {KNAME},@function\n'
        txt += p.render()
        txt += f'''.section .rodata,"a"
.p2align 6
.amdhsa_kernel {KNAME}
  .amdhsa_next_free_vgpr 512
  .amdhsa_next_free_sgpr 102
  .amdhsa_accum_offset 256
  .amdhsa_group_segment_fixed_size 0
  .amdhsa_kernarg_size 112
  .amdhsa_user_sgpr_count 2
  .amdhsa_user_sgpr_kernarg_segment_ptr 1
  .amdhsa_system_sgpr_workgroup_id_x 1
  .amdhsa_float_denorm_mode_32 3
.end_amdhsa_kernel
'''
        return txt


if __name__ == '__main__':
    import argparse
    ap = argparse.ArgumentParser()
    ap.add_argument('-o', default='mk.s')
    ap.add_argument('--stamps', action='store_true')
    ap.add_argument('--nolocal', action='store_true')
    ap.add_argument('--stop')
    ap.add_argument('--dbgrole', type=int)
    ap.add_argument('--nont', action='store_true')
    a = ap.parse_args()
    o = Opt()
    o.stamps, o.local, o.stop = a.stamps, not a.nolocal, a.stop
    o.nt = '' if a.nont else ' nt'
    o.dbgrole = a.dbgrole
    g = Gen(o)
    s = g.build()
    open(a.o, 'w').write(s)
    open(a.o + '.stamps', 'w').write('\n'.join(g.stamp_names))
    for w in g.p.warn: print('WARN', w)
    print('instructions', sum(1 for k, _ in g.p.items if k == 'i'), 'nops', g.p.nnop)
```

```python
import sys
sys.path.insert(0, 'gen')
from asmlib import *
from layout import *

KNAME = 'adaLN_cond__linear_kernel_hedgehog__mixer_gmlp__prompt_kernel'


class Opt:
    local = True
    stamps = False
    nt = ' nt'
    dbgrole = None
    pad = 0
    stop = None


S_WS = 4
SA, SB = 8, 12
P_X, P_WQKV, P_WPHI, P_WO, P_WIN, P_WSP, P_BSP = 16, 18, 20, 22, 26, 28, 30
P_WOUT, P_C, P_WMOD, P_OUT, P_DBG, P_WS = 32, 34, 36, 38, 40, 42
sTAG, sROLE, sW, sX, sI, sR, sC, sRB, sJ, sMODE = 44, 46, 47, 48, 49, 50, 51, 52, 53, 54
T0, T1, T2, T3, T4, T5, T6, T7, T8 = 55, 56, 57, 58, 59, 60, 61, 62, 63
PB = 64
sK2, sT9, sSPIN, sT10 = 96, 97, 100, 101
sCA = 24
sM = 98

WS = f's[{S_WS}:{S_WS + 3}]'
vL16, vLANE, vSTAMP = 1, 2, 3

LOG2E = 1.4426950408889634


def f2u(x):
    import struct
    return struct.unpack('<I', struct.pack('<f', x))[0]


class Gen:
    def __init__(self, opt):
        self.o = opt
        self.p = Prog()
        self.ool = []
        self.nstamp = 0
        self.stamp_names = []

    def srd(self, q, ptr, nbytes):
        self.p.I(f's_mov_b32 s{q}, s{ptr}\ns_mov_b32 s{q + 1}, s{ptr + 1}\ns_mov_b32 s{q + 2}, {nbytes}\n'
                 f's_mov_b32 s{q + 3}, s{sK2}')
        return f's[{q}:{q + 3}]'

    def stamp(self, name):
        if not self.o.stamps:
            return
        p = self.p
        p.sm(f's_memrealtime s[{sM}:{sM + 1}]')
        p.wait_lgkm_all()
        p.I(f'v_writelane_b32 v{vSTAMP}, s{sM}, {self.nstamp}')
        if name in ('role_iss', 'end'):
            p.sm(f's_memtime s[{sM}:{sM + 1}]')
            p.wait_lgkm_all()
            p.I(f'v_writelane_b32 v{vSTAMP}, s{sM}, {62 if name == "role_iss" else 63}')
        self.stamp_names.append(name)
        self.nstamp += 1

    def spin_tail(self, loop, done):
        p = self.p
        p.I(f's_sub_u32 s{sSPIN}, s{sSPIN}, 1\ns_cbranch_scc0 {loop}\ns_mov_b32 s{sSPIN}, 0')
        p.L(done)

    def spoll(self, soff, loads, pairs, singles=()):
        p = self.p
        loop, done = p.newlabel('sp'), p.newlabel('spd')
        p.I(f's_add_u32 s{sM}, s{P_WS}, s{soff}\ns_addc_u32 s{sM + 1}, s{P_WS + 1}, 0')
        p.L(loop)
        for nd, dst, imm in loads:
            p.sm(f's_load_dwordx{nd} s[{dst}:{dst + nd - 1}], s[{sM}:{sM + 1}], {imm} glc')
        p.wait_lgkm_all()
        first = pairs[0]
        p.I(f's_xor_b64 s[{first}:{first + 1}], s[{first}:{first + 1}], s[{sTAG}:{sTAG + 1}]')
        for q in pairs[1:]:
            p.I(f's_xor_b64 s[{q}:{q + 1}], s[{q}:{q + 1}], s[{sTAG}:{sTAG + 1}]\n'
                f's_or_b64 s[{first}:{first + 1}], s[{first}:{first + 1}], s[{q}:{q + 1}]')
        for q in singles:
            p.I(f's_xor_b32 s{q}, s{q}, s{sTAG}\ns_or_b32 s{first}, s{first}, s{q}')
        p.I(f's_cmp_eq_u64 s[{first}:{first + 1}], 0\ns_cbranch_scc1 {done}')
        self.spin_tail(loop, done)

    def spoll_n(self, soff, n):
        loads, got = [], 0
        while got < n:
            nd = 16 if n - got > 8 else 8 if n - got > 4 else 4
            loads.append((nd, PB + got, got * 4))
            got += nd
        self.spoll(soff, loads, [PB + 2 * k for k in range(n // 2)])

    def vpoll(self, vaddr, vtmp, soff):
        p = self.p
        loop, done = p.newlabel('vp'), p.newlabel('vpd')
        p.L(loop)
        p.vm(f'buffer_load_dword v{vtmp}, v{vaddr}, {WS}, s{soff} offen sc1')
        p.wait_vm_all()
        p.I(f'v_cmp_ne_u32 vcc, s{sTAG}, v{vtmp}\ns_cmp_eq_u64 vcc, 0\ns_cbranch_scc1 {done}')
        self.spin_tail(loop, done)

    def lstores(self, texts):
        p = self.p
        if not self.o.local:
            return [p.vm(t + ' sc1') for t in texts][-1]
        lg, lb = p.newlabel('glob'), p.newlabel('back')
        p.I(f's_cmp_eq_u32 s{sMODE}, 0\ns_cbranch_scc1 {lg}')
        tok = [p.vm(t) for t in texts][-1]
        p.L(lb)
        self.ool.append((lg, lb, [t + ' sc1' for t in texts]))
        return tok

    def flag(self, soff, vtmp, local):
        p = self.p
        p.I(f'v_mov_b32 v{vtmp}, s{sTAG}\nv_mov_b32 v{vtmp + 1}, 0\ns_mov_b64 exec, 1')
        t = f'buffer_store_dword v{vtmp}, v{vtmp + 1}, {WS}, s{soff} offen'
        if local:
            self.lstores([t])
        else:
            p.vm(t + ' sc1')
        p.I('s_mov_b64 exec, -1')

    def wave0(self, dst, src):
        self.p.I(f's_cmp_eq_u32 s{sW}, 0\ns_cselect_b32 s{dst}, s{src}, {OOB}')

    def dma(self, soff, lds, n, extra=' sc1'):
        p = self.p
        p.I(f's_mov_b32 m0, s{lds}')
        tok = None
        for k in range(n):
            tok = p.vm(f'buffer_load_dwordx4 v{vL16}, {WS}, s{soff} offen offset:{1024 * k}{extra} lds')
        return tok

    def xreduce_sq(self, s, q, t):
        self.p.I(f'''v_permlane16_swap_b32 v{s}, v{q}
v_add_f32 v{s}, v{s}, v{q}
v_mov_b32 v{q}, v{s}
v_permlane32_swap_b32 v{s}, v{q}
v_add_f32 v{s}, v{s}, v{q}
v_mov_b32 v{t}, v{s}
v_permlane16_swap_b32 v{s}, v{t}''')

    def silu_pack(self, src, lo, hi, t):
        self.p.I(f'''v_lshlrev_b32 v{src}, 16, v{src}
v_mul_f32 v{t}, {hex(f2u(-LOG2E))}, v{src}
v_exp_f32 v{t}, v{t}
v_add_f32 v{t}, 1.0, v{t}
v_rcp_f32 v{t}, v{t}
v_mul_f32 v{t}, v{src}, v{t}
v_cvt_pk_bf16_f32 v{lo}, v{t}, 0
v_lshlrev_b32 v{hi}, 16, v{lo}''')

    def merge8(self, a):
        p = self.p
        for b in (a, a + 4):
            p.I(f'v_permlane32_swap_b32 v{b}, v{b + 2}\nv_permlane32_swap_b32 v{b + 1}, v{b + 3}')
        for b in (a, a + 4):
            p.I(f'v_add_f32 v{b}, v{b}, v{b + 2}\nv_add_f32 v{b + 1}, v{b + 1}, v{b + 3}')
        for b in (a, a + 4):
            p.I(f'v_permlane16_swap_b32 v{b}, v{b + 1}')
        for b in (a, a + 4):
            p.I(f'v_add_f32 v{b}, v{b}, v{b + 1}')

    def dpp_add(self, regs, ctrl):
        for r in regs:
            self.p.I(f'v_add_f32_dpp v{r}, v{r}, v{r} {ctrl} row_mask:0xf bank_mask:0xf')

    def unpack(self, dst, src, n):
        for k in range(n):
            self.p.I(f'v_lshlrev_b32 v{dst + 2 * k}, 16, v{src + k}\nv_and_b32 v{dst + 2 * k + 1}, 0xffff0000, v{src + k}')

    def round_add_round(self, a, sdelta, out):
        p = self.p
        p.I(f'v_cvt_pk_bf16_f32 v{out}, v{a}, v{a + 1}\nv_cvt_pk_bf16_f32 v{out + 1}, v{a + 2}, v{a + 3}')
        self.unpack(a, out, 2)
        for k in range(4):
            p.I(f'v_add_f32 v{a + k}, s{sdelta}, v{a + k}')
        p.I(f'v_cvt_pk_bf16_f32 v{out}, v{a}, v{a + 1}\nv_cvt_pk_bf16_f32 v{out + 1}, v{a + 2}, v{a + 3}')

    def stop_here(self, name):
        if self.o.stop == name:
            self.p.I('s_branch L_fin')
            return True
        return False

    def entry(self):
        p = self.p
        nt = self.o.nt
        p.I('s_cmp_ge_u32 s2, 256\ns_cbranch_scc1 L_end')
        if self.o.stamps:
            p.sm('s_memrealtime s[94:95]')
        p.sm(f's_load_dwordx4 s[{P_DBG}:{P_DBG + 3}], s[0:1], 96')
        p.sm(f's_load_dwordx8 s[{P_WOUT}:{P_WOUT + 7}], s[0:1], 64')
        p.sm(f's_load_dwordx16 s[{P_X}:{P_X + 15}], s[0:1], 0')
        p.I(f"""s_and_b32 s{sX}, s2, 7
s_lshr_b32 s{sI}, s2, 3
s_lshl_b32 s3, s{sX}, 5
s_add_u32 s{sROLE}, s3, s{sI}
v_and_b32 v{vLANE}, 63, v0
v_lshrrev_b32 v4, 6, v0
v_lshlrev_b32 v{vL16}, 4, v{vLANE}
v_readfirstlane_b32 s{sW}, v4
s_mov_b32 s{sK2}, 0x20000
s_lshr_b32 s{sR}, s{sROLE}, 4
s_and_b32 s{sC}, s{sROLE}, 15
s_lshr_b32 s{sRB}, s{sROLE}, 3
s_and_b32 s{sJ}, s{sROLE}, 7
s_mov_b32 s{sSPIN}, 400000
v_and_b32 v8, 7, v{vLANE}
v_lshrrev_b32 v9, 3, v0
v_mul_u32_u24 v10, 1280, v8
v_lshl_add_u32 v10, v9, 4, v10
s_cmp_lt_u32 s{sI}, 10
s_cbranch_scc0 L_iw1""")
        p.cond = True
        p.I(f"""s_mul_i32 s{sT9}, s{sX}, 10
s_add_u32 s{sT9}, s{sT9}, s{sI}
s_and_b32 s{T0}, s{sT9}, 3
s_mul_i32 s{T1}, s{T0}, {160 * 7680}
s_mul_i32 s{T2}, s{T0}, 320
s_lshr_b32 s{T0}, s{sT9}, 2
s_lshl_b32 s{T0}, s{T0}, 7
s_add_u32 s{T1}, s{T1}, s{T0}
v_mul_u32_u24 v5, 7680, v9
v_lshl_add_u32 v5, v8, 4, v5
v_lshlrev_b32 v6, 1, v9""")
        p.wait_lgkm_all()
        a = self.srd(SA, P_WMOD, 640 * 7680)
        for k in range(5):
            p.vm(f'buffer_load_dwordx4 v[{136 + 4 * k}:{139 + 4 * k}], v5, {a}, s{T1} offen{nt}')
            if k < 4:
                p.I(f's_add_u32 s{T1}, s{T1}, {32 * 7680}')
        b = self.srd(SB, P_C, 1280)
        for k in range(5):
            self.t_g1 = p.vm(f'buffer_load_ushort v{156 + k}, v6, {b}, s{T2} offen offset:{64 * k}')
        p.I('s_branch L_icommon')
        p.L('L_iw1')
        p.I(f"""s_mul_i32 s{sT9}, s{sX}, 20
s_add_u32 s{sT9}, s{sT9}, s{sI}
s_sub_u32 s{sT9}, s{sT9}, 12
v_min_u32 v12, 59, v{vLANE}
v_mul_u32_u24 v13, 13, v12
v_lshrrev_b32 v13, 8, v13
v_mul_u32_u24 v14, 960, v13
v_lshl_add_u32 v14, v12, 4, v14
v_add_u32 v14, 1280, v14
v_subrev_u32 v15, 3840, v14
v_cmp_eq_u32 vcc, 2, v13
v_cndmask_b32 v14, v14, v15, vcc
s_lshr_b32 s{T0}, s{sT9}, 2
s_lshl_b32 s{T0}, s{T0}, 4
s_add_u32 s{T0}, s{T0}, s{sW}
s_mul_i32 s{T0}, s{T0}, 3840
s_and_b32 s{T1}, s{sT9}, 3
s_mul_i32 s{T1}, s{T1}, 320
s_add_u32 s{T0}, s{T0}, s{T1}
s_cmp_ge_u32 s{sI}, 12
s_cselect_b32 s{T0}, s{T0}, {OOB}
s_cselect_b32 s{sT10}, 0, {OOB}
s_lshl_b32 s{T1}, s{sW}, 10
s_add_u32 s{T1}, s{T1}, {L_STG_W1}""")
        p.wait_lgkm_all()
        wq = self.srd(SA, P_WQKV, 640 * 3840)
        for k in range(4):
            p.I(f's_mov_b32 m0, s{T1}')
            p.vm(f'buffer_load_dwordx4 v14, {wq}, s{T0} offen{nt} lds')
            if k < 3:
                p.I(f's_add_u32 s{T0}, s{T0}, {4 * 3840}\ns_add_u32 s{T1}, s{T1}, 4096')
        wo = self.srd(SB, P_WO, 640 * 1280)
        p.I(f"""v_and_b32 v11, 15, v{vLANE}
v_min_u32 v12, 9, v11
v_lshlrev_b32 v12, 4, v12
v_lshrrev_b32 v13, 4, v0
v_and_b32 v15, 7, v13
v_lshrrev_b32 v13, 3, v13
s_lshr_b32 s{T0}, s{sT9}, 3
s_lshl_b32 s{T0}, s{T0}, 2
s_and_b32 s{T2}, s{sT9}, 7
s_mul_i32 s{T2}, s{T2}, 160
s_add_u32 s{T2}, s{T2}, s{sT10}
s_lshl_b32 s{T1}, s{sW}, 10
s_add_u32 s{T1}, s{T1}, {L_STG_WO}""")
        for k in range(2):
            p.I(f"""v_add_u32 v31, s{T0}, v13
v_mul_u32_u24 v32, 205, v31
v_lshrrev_b32 v32, 10, v32
v_mul_u32_u24 v33, 5, v32
v_sub_u32 v33, v31, v33
v_lshl_add_u32 v34, v33, 3, v15
v_add_u32 v35, 4, v34
v_cmp_lt_u32 vcc, 1, v33
v_cndmask_b32 v34, v34, v35, vcc
v_add_u32 v35, 16, v15
v_add_u32 v36, 32, v15
v_cmp_lt_u32 vcc, 3, v15
v_cndmask_b32 v35, v35, v36, vcc
v_cmp_eq_u32 vcc, 4, v33
v_cndmask_b32 v34, v34, v35, vcc
v_mul_u32_u24 v32, 40, v32
v_add_u32 v34, v34, v32
v_mul_u32_u24 v34, 1280, v34
v_add_u32 v34, v34, v12
s_mov_b32 m0, s{T1}""")
            self.t_raw = p.vm(f'buffer_load_dwordx4 v34, {wo}, s{T2} offen{nt} lds')
            if k == 0:
                p.I(f's_add_u32 s{T0}, s{T0}, 2\ns_add_u32 s{T1}, s{T1}, 4096')
        p.cond = False
        p.L('L_icommon')
        p.wait_lgkm_all()
        if self.o.stamps:
            p.I(f'v_mov_b32 v{vSTAMP}, 0\nv_writelane_b32 v{vSTAMP}, s94, 0')
            self.stamp_names.append('entry')
            self.nstamp = 1
            self.stamp('role_iss')
        p.sm(f's_load_dword s{sTAG}, s[{P_WS}:{P_WS + 1}], {WS_EPOCH}')
        xs = self.srd(SA, P_X, 2048 * 1280)
        p.I(f"""s_mul_i32 s{T0}, s{sROLE}, {8 * 1280}
s_cmp_lt_u32 s{sW}, 2
s_cselect_b32 s{T1}, s{T0}, {OOB}""")
        for k in range(3):
            self.t_x = p.vm(f'buffer_load_dwordx4 v[{48 + 4 * k}:{51 + 4 * k}], v10, {xs}, s{T0 if k < 2 else T1} offen offset:{512 * k}')
        p.I(f"""s_getpc_b64 s[{sM}:{sM + 1}]
s_lshl_b32 s{T0}, s{sI}, 2
s_add_u32 s{T0}, s{T0}, s{sW}
s_lshl_b32 s{T0}, s{T0}, 9
v_and_b32 v7, 3, v{vLANE}
v_lshlrev_b32 v7, 7, v7
v_add_u32 v7, s{T0}, v7
v_min_u32 v7, (L_end-L_pc0), v7""")
        p.L('L_pc0')
        p.vm(f'global_load_dword v63, v7, s[{sM}:{sM + 1}]')
        self.srd(S_WS, P_WS, WS_USED)
        wp = self.srd(SB, P_WPHI, 32 * 800)
        p.I(f"""v_lshlrev_b32 v31, 4, v0
v_min_u32 v31, 1584, v31
s_mul_i32 s{T0}, s{sC}, 1600
s_lshl_b32 s{T1}, s{sW}, 10
s_cmp_lt_u32 s{sW}, 2
s_cselect_b32 s{T1}, s{T1}, {(L_DUMMY - L_WPH) & 0xffffffff}
s_add_u32 s{T1}, s{T1}, {L_WPH}
s_mov_b32 m0, s{T1}""")
        p.vm(f'buffer_load_dwordx4 v31, {wp}, s{T0} offen lds')
        p.I(f"""v_mov_b32 v46, 0
v_mov_b32 v47, 0
v_lshlrev_b32 v45, 3, v0
v_add_u32 v45, {L_ZERO}, v45""")
        p.ds('ds_write_b64 v45, v[46:47]')
        p.wait_lgkm_all()
        p.I(f"""s_mul_i32 s{sTAG}, s{sTAG}, 0x2c1b3c6d
s_add_u32 s{sTAG}, s{sTAG}, 0x297a2d39
s_mov_b32 s{sTAG + 1}, s{sTAG}
s_mov_b32 s{sMODE}, 0""")
        if self.o.local:
            p.I(f"""s_getreg_b32 s{T0}, hwreg(HW_REG_XCC_ID, 0, 4)
s_lshl_b32 s{T1}, s{sROLE}, 2
s_add_u32 s{T1}, s{T1}, {F_HELLO}
s_add_u32 s{sCA}, s{T0}, s{sTAG}
s_add_u32 s{sCA}, s{sCA}, 1""")
            self.wave0(T1, T1)
            p.I(f'v_mov_b32 v45, s{sCA}\ns_mov_b64 exec, 1')
            p.vm(f'buffer_store_dword v45, v46, {WS}, s{T1} offen sc1')
            p.I('s_mov_b64 exec, -1')
        self.stamp('issued')

    def gemv(self, n, data, cval, scr):
        p = self.p
        for k in range(n):
            self.silu_pack(cval + k, 112 + 2 * k, 113 + 2 * k, 111)
        for c in range(8):
            p.I(f'v_mov_b32 v{124 + c}, 0')
        for k in range(n):
            for d in range(4):
                p.I(f'v_dot2c_f32_bf16 v{124 + 2 * d}, v{data + 4 * k + d}, v{112 + 2 * k}\n'
                    f'v_dot2c_f32_bf16 v{125 + 2 * d}, v{data + 4 * k + d}, v{113 + 2 * k}')
        self.merge8(124)
        self.dpp_add((124, 128), 'row_ror:8')
        p.I(f"""v_and_b32 v111, 7, v{vLANE}
v_lshrrev_b32 v112, 4, v{vLANE}
v_lshl_add_u32 v111, v111, 3, v112
v_lshlrev_b32 v111, 2, v111
s_lshl_b32 s{T0}, s{sW}, 8
s_add_u32 s{T0}, s{T0}, {scr}
v_add_u32 v111, s{T0}, v111""")
        p.ds('ds_write_b32 v111, v124')
        p.ds('ds_write_b32 v111, v128 offset:16')
        p.I(f'v_min_u32 v111, 21, v{vLANE}\nv_mul_u32_u24 v112, 12, v111\nv_add_u32 v112, {scr}, v112')

    def gemv_pub(self, soff):
        p = self.p
        for w in range(4):
            p.ds(f'ds_read2_b32 v[{114 + 4 * w}:{115 + 4 * w}], v112 offset0:{64 * w} offset1:{64 * w + 1}')
            t = p.ds(f'ds_read_b32 v{116 + 4 * w}, v112 offset:{256 * w + 8}')
        self.wave0(soff, soff)
        p.I(f'v_lshlrev_b32 v111, 4, v111\nv_mov_b32 v135, s{sTAG}')
        p.wait(ds=t, force=True)
        for d in range(3):
            p.I(f'v_add_f32 v{114 + d}, v{114 + d}, v{118 + d}\nv_add_f32 v{122 + d}, v{122 + d}, v{126 + d}')
        for d in range(3):
            p.I(f'v_add_f32 v{132 + d}, v{114 + d}, v{122 + d}')
        p.I('s_mov_b32 exec_lo, 0x3fffff\ns_mov_b32 exec_hi, 0')
        p.vm(f'buffer_store_dwordx4 v[132:135], v111, {WS}, s{soff} offen sc1')
        p.I('s_mov_b64 exec, -1')

    def trbase16(self, dst, rowbytes, t):
        sh = rowbytes.bit_length() - 1
        self.p.I(f"""v_lshrrev_b32 v{dst}, 4, v{vLANE}
v_bfe_u32 v{t}, v{vLANE}, 2, 2
v_lshl_add_u32 v{dst}, v{dst}, 3, v{t}
v_lshlrev_b32 v{dst}, {sh}, v{dst}
v_and_b32 v{t}, 3, v{vLANE}""")

    def repack5_addr(self, stg):
        p = self.p
        self.trbase16(31, 256, 32)
        p.I(f"""s_lshl_b32 s{T0}, s{sW}, 3
s_add_u32 s{T0}, s{T0}, {stg}
v_lshl_add_u32 v33, v32, 5, v31
v_add_u32 v33, s{T0}, v33
v_lshl_add_u32 v34, v32, 3, v31
v_add_u32 v34, {stg + 128}, v34""")

    def repack5(self, sdst, fr):
        p = self.p
        p.ds(f'ds_read_b64_tr_b16 v[{fr}:{fr + 1}], v33')
        t1 = p.ds(f'ds_read_b64_tr_b16 v[{fr + 2}:{fr + 3}], v33 offset:1024')
        p.ds(f'ds_read_b64_tr_b16 v[{fr + 4}:{fr + 5}], v34')
        t2 = p.ds(f'ds_read_b64_tr_b16 v[{fr + 6}:{fr + 7}], v34 offset:1024')
        p.I(f"""s_lshl_b32 s{T1}, s{sW}, 10
s_add_u32 s{T1}, s{T1}, s{sdst}
s_add_u32 s{T0}, s{sdst}, 4096""")
        self.wave0(T0, T0)
        p.wait(ds=t2, force=True)
        p.vm(f'buffer_store_dwordx4 v[{fr}:{fr + 3}], v{vL16}, {WS}, s{T1} offen sc1')
        return p.vm(f'buffer_store_dwordx4 v[{fr + 4}:{fr + 7}], v{vL16}, {WS}, s{T0} offen sc1')

    def flag_ks(self, base, nvalid):
        self.p.I(f"""s_lshl_b32 s{T0}, s{sJ}, 7
s_lshl_b32 s{T1}, s{sRB}, 2
s_add_u32 s{T0}, s{T0}, s{T1}
s_add_u32 s{T0}, s{T0}, {base}
s_cmp_lt_u32 s{sRB}, {nvalid}
s_cselect_b32 s{T0}, s{T0}, {OOB}""")
        self.wave0(T0, T0)

    def roles(self):
        p = self.p
        p.I(f"""v_bfe_u32 v41, v{vLANE}, 4, 1
v_bfe_u32 v42, v{vLANE}, 1, 1
v_lshl_add_u32 v41, v41, 1, v42
v_lshlrev_b32 v41, 2, v41
v_and_b32 v42, 1, v{vLANE}
v_bfe_u32 v43, v{vLANE}, 2, 2
v_lshrrev_b32 v44, 5, v{vLANE}
s_cmp_lt_u32 s{sI}, 10
s_cbranch_scc0 L_rw1""")
        p.cond = True
        p.wait(vm=self.t_g1)
        self.gemv(5, 136, 156, L_SCR_G1)
        p.I(f's_mul_i32 s{T2}, s{sT9}, 384\ns_add_u32 s{T2}, s{T2}, {MODG}')
        p.wait_lgkm_all()
        p.I('s_barrier')
        self.gemv_pub(T2)
        p.I(f's_mov_b32 s{T6}, {OOB}\ns_mov_b32 s{T7}, {OOB}\ns_branch L_rcommon')
        p.L('L_rw1')
        p.I(f"""v_lshl_add_u32 v35, v44, 3, v43
v_lshlrev_b32 v35, 10, v35
v_mul_u32_u24 v36, 40, v42
s_mul_i32 s{T0}, s{sW}, 80
s_add_u32 s{T0}, s{T0}, {L_STG_W1}
v_add3_u32 v35, v35, v36, s{T0}""")
        for T in range(4):
            p.I(f"""v_add_u32 v36, {16 * T}, v41
v_mul_u32_u24 v37, 13, v36
v_lshrrev_b32 v37, 8, v37
v_mul_u32_u24 v37, 280, v37
v_lshl_add_u32 v37, v36, 1, v37
v_add_u32 v{16 + T}, v37, v35""")
        self.repack5_addr(L_STG_WO)
        p.I(f"""s_and_b32 s{T0}, s{sT9}, 3
s_lshl_b32 s{T6}, s{T0}, 8
s_lshl_b32 s{T0}, s{T0}, 2
s_add_u32 s{T0}, s{T0}, s{sW}
s_lshr_b32 s{T1}, s{sT9}, 2
s_mul_i32 s{T2}, s{T0}, 0x1e000
s_mul_i32 s{T3}, s{T1}, 3072
s_add_u32 s{T2}, s{T2}, s{T3}
s_add_u32 s{T2}, s{T2}, {W1M}
s_add_u32 s{T2}, s{T2}, s{sT10}
s_mul_i32 s{T3}, s{T0}, 0xa000
s_lshl_b32 s{T4}, s{T1}, 10
s_add_u32 s{T3}, s{T3}, s{T4}
s_add_u32 s{T3}, s{T3}, {W1T}
s_add_u32 s{T3}, s{T3}, s{sT10}
s_lshl_b32 s{T1}, s{T1}, 2
s_add_u32 s{T6}, s{T6}, s{T1}
s_add_u32 s{T6}, s{T6}, {F_W1}
s_add_u32 s{T6}, s{T6}, s{sT10}
s_and_b32 s{T0}, s{sT9}, 7
s_lshr_b32 s{T1}, s{sT9}, 3
s_mul_i32 s{T4}, s{T0}, 0x19000
s_mul_i32 s{T5}, s{T1}, 5120
s_add_u32 s{T4}, s{T4}, s{T5}
s_add_u32 s{T4}, s{T4}, {WOF}
s_add_u32 s{T4}, s{T4}, s{sT10}
s_lshl_b32 s{T7}, s{T0}, 7
s_lshl_b32 s{T1}, s{T1}, 2
s_add_u32 s{T7}, s{T7}, s{T1}
s_add_u32 s{T7}, s{T7}, {F_WO}
s_add_u32 s{T7}, s{T7}, s{sT10}""")
        p.wait(vm=self.t_raw)
        p.I('s_barrier')
        for T in range(4):
            p.ds(f'ds_read_b64_tr_b16 v[{180 + 4 * T}:{181 + 4 * T}], v{16 + T}')
            t = p.ds(f'ds_read_b64_tr_b16 v[{182 + 4 * T}:{183 + 4 * T}], v{16 + T} offset:4096')
        p.wait(ds=t, force=True)
        for T in range(3):
            p.vm(f'buffer_store_dwordx4 v[{180 + 4 * T}:{183 + 4 * T}], v{vL16}, {WS}, s{T2} offen offset:{1024 * T} sc1')
        p.vm(f'buffer_store_dwordx4 v[192:195], v{vL16}, {WS}, s{T3} offen sc1')
        self.t_rp = self.repack5(T4, 196)
        p.cond = False
        p.L('L_rcommon')
        self.stamp('role_done')
        ws_ = self.srd(SA, P_WSP, 2048 * 4096)
        p.I(f"""v_and_b32 v31, 31, v{vLANE}
v_xor_b32 v31, v31, v44
v_lshlrev_b32 v31, 4, v31
v_lshl_add_u32 v31, v44, 12, v31
s_lshl_b32 s{T0}, s{sRB}, 18
s_lshl_b32 s{T1}, s{sJ}, 9
s_add_u32 s{T0}, s{T0}, s{T1}
s_lshl_b32 s{T1}, s{sW}, 16
s_add_u32 s{T0}, s{T0}, s{T1}
s_lshl_b32 s{T1}, s{sW}, 13
s_add_u32 s{T1}, s{T1}, {L_STG_WS}""")
        for n in range(8):
            p.I(f's_mov_b32 m0, s{T1}')
            if n:
                p.I(f'v_xor_b32 v{32 + (n & 1)}, {32 * n}, v31')
            p.vm(f'buffer_load_dwordx4 v{32 + (n & 1) if n else 31}, {ws_}, s{T0} offen{self.o.nt} lds')
            if n < 7:
                p.I(f's_add_u32 s{T0}, s{T0}, 8192\ns_add_u32 s{T1}, s{T1}, 1024')
        p.I(f"""v_lshlrev_b32 v12, 9, v9
v_lshl_add_u32 v12, v8, 4, v12
s_lshr_b32 s{T3}, s{sROLE}, 2
s_mul_i32 s{T3}, s{T3}, 40960
s_and_b32 s{T4}, s{sROLE}, 3
s_lshl_b32 s{T4}, s{T4}, 7
s_add_u32 s{T3}, s{T3}, s{T4}
s_add_u32 s{T3}, s{T3}, {HF}
s_add_u32 s{T4}, s{T3}, 16384
s_add_u32 s{T5}, s{T3}, 32768
s_cmp_lt_u32 s{sW}, 2
s_cselect_b32 s{T5}, s{T5}, {OOB}""")
        if self.o.local:
            for so in (T3, T4, T5):
                p.vm(f'buffer_load_dword v63, v12, {WS}, s{so} offen sc1')
            p.I(f"""v_lshrrev_b32 v31, 4, v{vLANE}
v_lshlrev_b32 v31, 12, v31
v_mov_b32 v32, s{sRB}
v_lshl_add_u32 v32, v32, 7, v31
v_mov_b32 v33, s{sR}
v_lshlrev_b32 v34, 7, v33
v_lshl_add_u32 v33, v33, 8, v31
v_lshl_add_u32 v33, v42, 7, v33
v_cmp_gt_u32 vcc, 32, v{vLANE}
v_cndmask_b32 v32, v32, v33, vcc
v_cmp_gt_u32 vcc, 16, v{vLANE}
v_cndmask_b32 v32, v32, v34, vcc
s_mov_b32 s{T0}, {F_H}""")
            p.vm(f'buffer_load_dword v63, v32, {WS}, s{T0} offen sc1')

    def ln_stats(self):
        p = self.p
        p.wait(vm=self.t_x)
        p.I('v_mov_b32 v16, 0\nv_mov_b32 v17, 0\nv_mov_b32 v18, 0x3f803f80')
        for k in range(12):
            p.I(f'v_dot2c_f32_bf16 v16, v{48 + k}, v18\nv_dot2c_f32_bf16 v17, v{48 + k}, v{48 + k}')
        self.dpp_add((16, 17), 'row_ror:8')
        p.I(f"""v_permlane16_swap_b32 v16, v17
v_add_f32 v16, v16, v17
v_mov_b32 v17, v16
v_permlane32_swap_b32 v16, v17
v_add_f32 v16, v16, v17
v_bfe_u32 v18, v{vLANE}, 4, 1
v_lshlrev_b32 v18, 5, v18
v_lshl_add_u32 v18, v8, 2, v18
s_lshl_b32 s{T0}, s{sW}, 6
s_add_u32 s{T0}, s{T0}, {L_SCR_LN}
v_add_u32 v18, s{T0}, v18""")
        p.ds('ds_write_b32 v18, v16')
        p.I(f"""v_mul_u32_u24 v36, 800, v42
v_mul_u32_u24 v37, 40, v43
v_add_u32 v36, v36, v37
v_lshl_add_u32 v36, v41, 1, v36
v_add_u32 v36, {L_WPH}, v36
v_mov_b32 v39, {L_ZERO}
v_cmp_eq_u32 vcc, v42, v44
v_cndmask_b32 v37, v39, v36, vcc
v_add_u32 v38, 32, v37
v_cmp_eq_u32 vcc, 0, v41
v_cndmask_b32 v38, v39, v38, vcc""")
        self.wave0(T6, T6)
        self.wave0(T7, T7)
        self.unpack(96, 48, 12)
        p.wait(vm=self.t_rp)
        p.wait_lgkm_all()
        p.I('s_barrier')
        self.flag(T6, 46, False)
        self.flag(T7, 46, False)
        self.stamp('w1_pub')
        p.I(f'v_lshlrev_b32 v18, 2, v8\nv_add_u32 v18, {L_SCR_LN}, v18')
        for w in range(4):
            t = p.ds(f'ds_read2_b32 v[{20 + 2 * w}:{21 + 2 * w}], v18 offset0:{16 * w} offset1:{16 * w + 8}')
        for mt in range(2):
            for kap in range(3):
                fr = 232 + 12 * mt + 4 * kap
                p.ds(f'ds_read_b64_tr_b16 v[{fr}:{fr + 1}], v{37 + mt} offset:{320 * kap}')
                if kap < 2:
                    p.ds(f'ds_read_b64_tr_b16 v[{fr + 2}:{fr + 3}], v{37 + mt} offset:{320 * kap + 160}')
                else:
                    p.I(f'v_mov_b32 v{fr + 2}, 0\nv_mov_b32 v{fr + 3}, 0')
        p.wait(ds=t)
        p.I("""v_add_f32 v20, v20, v22
v_add_f32 v21, v21, v23
v_add_f32 v24, v24, v26
v_add_f32 v25, v25, v27
v_add_f32 v16, v20, v24
v_add_f32 v17, v21, v25""")
        self.rstd(16, 17, 640)
        for e in range(24):
            p.I(f'v_fma_f32 v{96 + e}, v{96 + e}, v17, v16')
        for e in range(24):
            if e % 2 == 0:
                p.I(f'v_cvt_pk_bf16_f32 v{64 + e}, v{96 + e}, 0')
            else:
                p.I(f'v_cvt_pk_bf16_f32 v{64 + e}, 0, v{96 + e}')
        self.stamp('ln_done')

    def pretouch(self, texts):
        if self.o.local:
            for t in texts:
                self.p.vm(t)

    def mod_finish(self, data, nset, npart, vdelta, vlds):
        p = self.p
        for s_ in range(nset):
            b = data + 4 * npart * s_
            for k in range(1, npart):
                for d in range(3):
                    p.I(f'v_add_f32 v{b + d}, v{b + d}, v{b + 4 * k + d}')
            p.I(f"""v_cvt_pk_bf16_f32 v{b + 4}, v{b}, v{b + 1}
v_cvt_pk_bf16_f32 v{b + 5}, v{b + 2}, v{b + 2}
v_lshlrev_b32 v{b}, 16, v{b + 4}
v_and_b32 v{b + 1}, 0xffff0000, v{b + 4}
v_lshlrev_b32 v{b + 2}, 16, v{b + 5}
v_add_f32 v{b}, v{b}, v{vdelta + s_}
v_add_f32 v{b + 1}, v{b + 1}, v{vdelta + s_}
v_add_f32 v{b + 2}, v{b + 2}, v{vdelta + s_}
v_cvt_pk_bf16_f32 v{b + 4}, v{b}, v{b + 1}
v_cvt_pk_bf16_f32 v{b + 5}, v{b + 2}, v{b + 2}""")
            p.ds(f'ds_write_b16 v{vlds + s_}, v{b + 4}')
            p.ds(f'ds_write_b16_d16_hi v{vlds + s_}, v{b + 4} offset:2')
            p.ds(f'ds_write_b16 v{vlds + s_}, v{b + 5} offset:4')

    def make_h(self):
        p = self.p
        for s_ in range(2):
            p.I(f"""v_add_u32 v31, {256 * s_}, v0
v_min_u32 v31, 439, v31
v_mul_u32_u24 v32, 2979, v31
v_lshrrev_b32 v32, 16, v32
v_mul_u32_u24 v33, 22, v32
v_sub_u32 v33, v31, v33
v_mul_u32_u24 v34, 1536, v32
v_lshl_add_u32 v{20 + s_}, v33, 4, v34
v_mul_u32_u24 v34, 144, v32
v_mul_u32_u24 v33, 6, v33
v_add3_u32 v{22 + s_}, v33, v34, s{T2}
v_cmp_lt_u32 vcc, 9, v32
v_cndmask_b32 v{24 + s_}, 0, 1.0, vcc""".replace('v_mul_u32_u24 v34, 144, v32', f's_mov_b32 s{T2}, {L_MOD}\nv_mul_u32_u24 v34, 144, v32'))
        p.I(f"""v_min_u32 v26, 39, v{vLANE}
v_lshlrev_b32 v26, 2, v26
v_and_b32 v27, 31, v{vLANE}
v_lshlrev_b32 v27, 2, v27
v_lshrrev_b32 v13, 3, v9
v_mul_u32_u24 v13, 144, v13
v_and_b32 v28, 7, v9
v_lshl_add_u32 v13, v28, 4, v13
v_add_u32 v13, {L_MOD}, v13
s_mov_b32 s{T0}, {MODG}
s_lshr_b32 s{T1}, s{sC}, 2
s_lshl_b32 s{T1}, s{T1}, 8
s_add_u32 s{T1}, s{T1}, {F_W1}
s_lshl_b32 s{T2}, s{sX}, 7
s_add_u32 s{T2}, s{T2}, {F_HELLO}
s_add_u32 s{T6}, s{sTAG}, 1
v_mov_b32 v29, s{sTAG}""")
        loop, done = p.newlabel('mg'), p.newlabel('mgd')
        p.L(loop)
        for s_ in range(2):
            for k in range(4):
                r = 96 + 16 * s_ + 4 * k
                p.vm(f'buffer_load_dwordx4 v[{r}:{r + 3}], v{20 + s_}, {WS}, s{T0} offen offset:{384 * k} sc1')
        p.vm(f'buffer_load_dword v30, v26, {WS}, s{T1} offen sc1')
        if self.o.local:
            p.vm(f'buffer_load_dword v31, v27, {WS}, s{T2} offen sc1')
        p.wait_vm_all()
        p.I('v_xor_b32 v30, v30, v29')
        for n in range(8):
            p.I(f'v_bitop3_b32 v30, v30, v{99 + 4 * n}, v29 bitop3:0xf6')
        if self.o.local:
            p.I(f'v_subrev_u32 v32, s{T6}, v31\nv_lshrrev_b32 v32, 4, v32\nv_or_b32 v30, v30, v32')
        p.I(f'v_cmp_ne_u32 vcc, 0, v30\ns_cmp_eq_u64 vcc, 0\ns_cbranch_scc1 {done}')
        self.spin_tail(loop, done)
        self.stamp('mod_in')
        self.mod_finish(96, 2, 4, 24, 22)
        if self.o.local:
            p.I(f'v_cmp_ne_u32 vcc, s{sCA}, v31\ns_cmp_eq_u64 vcc, 0\ns_cselect_b32 s{sMODE}, 1, 0')
        p.wait_lgkm_all()
        p.I('s_barrier')
        toks = []
        for k in range(3):
            p.ds(f'ds_read_b128 v[{96 + 8 * k}:{99 + 8 * k}], v13 offset:{576 * k}')
            toks.append(p.ds(f'ds_read_b128 v[{100 + 8 * k}:{103 + 8 * k}], v13 offset:{576 * k + 1440}'))
        for k in range(3):
            p.wait(ds=toks[k])
            self.unpack(144 + 8 * k, 96 + 8 * k, 4)
            for e in range(8):
                p.I(f'v_dot2c_f32_bf16 v{144 + 8 * k + e}, v{64 + 8 * k + e}, v{100 + 8 * k + (e >> 1)}')
        for k in range(3):
            for d in range(4):
                p.I(f'v_cvt_pk_bf16_f32 v{168 + 4 * k + d}, v{144 + 8 * k + 2 * d}, v{145 + 8 * k + 2 * d}')
        t = self.lstores([f'buffer_store_dwordx4 v[{168 + 4 * k}:{171 + 4 * k}], v12, {WS}, s{so} offen'
                          for k, so in enumerate((T3, T4, T5))])
        p.I(f"""s_and_b32 s{sT10}, s{sR}, 1
s_mul_i32 s{T7}, s{sC}, 0x1e000
s_mul_i32 s{T8}, s{sW}, 3072
s_add_u32 s{T7}, s{T7}, s{T8}
s_mul_i32 s{T0}, s{sT10}, 61440
s_add_u32 s{T7}, s{T7}, s{T0}
s_add_u32 s{T7}, s{T7}, {W1M}""")
        self.chunk_tok = []
        for _ in range(self.LA_C):
            self.issue_chunk()
        p.I(f"""v_and_b32 v31, 31, v{vLANE}
v_and_b32 v32, 15, v{vLANE}
s_lshl_b32 s{T0}, s{sW}, 3
v_add_u32 v33, s{T0}, v44
v_xor_b32 v33, v33, v32
v_lshlrev_b32 v33, 4, v33
v_lshl_add_u32 v33, v31, 9, v33
v_add_u32 v33, {L_STG_WS}, v33""")
        for ks in range(4):
            if ks:
                p.I(f'v_xor_b32 v{33 + ks}, {32 * ks}, v33')
            for tt in range(2):
                r = 212 + 8 * ks + 4 * tt
                p.ds(f'ds_read_b128 a[{r}:{r + 3}], v{33 + ks} offset:{16384 * tt}')
        p.I(f"""s_lshl_b32 s{T0}, s{sR}, 7
s_lshl_b32 s{T1}, s{sC}, 2
s_add_u32 s{T0}, s{T0}, s{T1}
s_add_u32 s{T0}, s{T0}, {F_H}""")
        self.wave0(T0, T0)
        p.wait(vm=t)
        p.wait_lgkm_all()
        p.I('s_barrier')
        self.flag(T0, 46, True)
        self.stamp('h_pub')

    LA_C = 3

    def issue_chunk(self):
        p = self.p
        self.chunk_tok.append(self.dma(T7, T8, 3))
        p.I(f's_add_u32 s{T7}, s{T7}, 12288\ns_add_u32 s{T8}, s{T8}, 12288')
        if len(self.chunk_tok) == 5:
            p.I(f's_mul_i32 s{T0}, s{sT10}, 122880\ns_sub_u32 s{T7}, s{T7}, s{T0}')

    def raw_loads(self):
        p = self.p
        nt = self.o.nt
        wi = self.srd(SA, P_WIN, 640 * 3072)
        p.I(f"""v_and_b32 v4, 31, v{vLANE}
v_min_u32 v4, 23, v4
v_lshlrev_b32 v5, 4, v4
v_add_u32 v6, 1536, v5
v_subrev_u32 v5, 192, v5
v_cmp_gt_u32 vcc, 12, v4
v_cndmask_b32 v5, v5, v6, vcc
v_lshrrev_b32 v6, 5, v0
v_mul_u32_u24 v6, 3072, v6
v_add_u32 v5, v5, v6
s_mul_i32 s{T0}, s{sRB}, {32 * 3072}
s_mul_i32 s{T1}, s{sJ}, 192
s_add_u32 s{T0}, s{T0}, s{T1}
s_cmp_lt_u32 s{sRB}, 20
s_cselect_b32 s{T0}, s{T0}, {OOB}""")
        for k in range(4):
            p.vm(f'buffer_load_dwordx4 a[{160 + 4 * k}:{163 + 4 * k}], v5, {wi}, s{T0} offen{nt}')
            if k < 3:
                p.I(f's_add_u32 s{T0}, s{T0}, {8 * 3072}')
        wm = self.srd(SB, P_WMOD, 640 * 7680)
        p.I(f"""v_lshrrev_b32 v7, 3, v0
v_lshlrev_b32 v8, 1, v7
v_mul_u32_u24 v7, 7680, v7
v_and_b32 v4, 7, v0
v_lshl_add_u32 v7, v4, 4, v7
s_mul_i32 s{sT9}, s{sX}, 25
s_add_u32 s{sT9}, s{sT9}, s{sI}
s_mul_i32 s{T0}, s{sT9}, 205
s_lshr_b32 s{T0}, s{T0}, 10
s_mul_i32 s{T1}, s{T0}, 5
s_sub_u32 s{T1}, s{sT9}, s{T1}
s_lshl_b32 s{T2}, s{T1}, 8
s_mul_i32 s{T1}, s{T1}, {128 * 7680}
s_lshl_b32 s{T0}, s{T0}, 7
s_add_u32 s{T0}, s{T0}, s{T1}
s_add_u32 s{T0}, s{T0}, 2560
s_cmp_lt_u32 s{sI}, 25
s_cselect_b32 s{T0}, s{T0}, {OOB}""")
        for k in range(4):
            p.vm(f'buffer_load_dwordx4 a[{184 + 4 * k}:{187 + 4 * k}], v7, {wm}, s{T0} offen{nt}')
            if k < 3:
                p.I(f's_add_u32 s{T0}, s{T0}, {32 * 7680}')
        cs = self.srd(SA, P_C, 1280)
        for k in range(4):
            p.vm(f'buffer_load_ushort a{200 + k}, v8, {cs}, s{T2} offen offset:{64 * k}')
        wu = self.srd(SB, P_WOUT, 768 * 1280)
        p.I(f"""v_and_b32 v4, 15, v{vLANE}
v_min_u32 v4, 9, v4
v_lshrrev_b32 v6, 4, v0
v_mul_u32_u24 v6, 1280, v6
v_lshl_add_u32 v6, v4, 4, v6
s_mul_i32 s{T0}, s{sRB}, {32 * 1280}
s_mul_i32 s{T1}, s{sJ}, 160
s_add_u32 s{T0}, s{T0}, s{T1}
s_cmp_lt_u32 s{sRB}, 24
s_cselect_b32 s{T0}, s{T0}, {OOB}
s_add_u32 s{T1}, s{T0}, {16 * 1280}""")
        for k in range(2):
            self.t_rawp1 = p.vm(f'buffer_load_dwordx4 a[{176 + 4 * k}:{179 + 4 * k}], v6, {wu}, s{T0 + k} offen{nt}')

    def check_flags(self, tok, vval, vaddr, soff):
        p = self.p
        loop, done = p.newlabel('cf'), p.newlabel('cfd')
        p.wait(vm=tok)
        p.I(f'v_cmp_ne_u32 vcc, s{sTAG}, v{vval}\ns_cmp_eq_u64 vcc, 0\ns_cbranch_scc1 {done}')
        p.L(loop)
        p.vm(f'buffer_load_dword v{vval}, v{vaddr}, {WS}, s{soff} offen sc1', count=False)
        p.I(f's_waitcnt vmcnt(0)\nv_cmp_ne_u32 vcc, s{sTAG}, v{vval}\ns_cmp_eq_u64 vcc, 0\ns_cbranch_scc1 {done}')
        self.spin_tail(loop, done)

    def dma_rot(self, ssrc, n0, per, lds0, stride=None):
        p = self.p
        tok = None
        p.I(f's_mul_i32 s{T2}, s{sW}, {4 * per * 1024}')
        for g in range(4):
            p.I(f"""s_add_u32 s{T0}, s{sRB}, {g}
s_and_b32 s{T0}, s{T0}, 3
s_mul_i32 s{T0}, s{T0}, {per * 1024}
s_add_u32 s{T0}, s{T0}, s{T2}
s_add_u32 s{T8}, s{T0}, {lds0}
s_add_u32 s{T7}, s{T0}, s{ssrc}""")
            if n0:
                p.I(f's_add_u32 s{T7}, s{T7}, {n0 * 1024}')
            left = per
            while left:
                n = min(left, 4)
                tok = self.dma(T7, T8, n)
                left -= n
                if left:
                    p.I(f's_add_u32 s{T7}, s{T7}, 4096\ns_add_u32 s{T8}, s{T8}, 4096')
        return tok

    def p1_main(self):
        p = self.p
        LA_H = 6
        p.I(f"""v_and_b32 v10, 3, v{vLANE}
v_lshlrev_b32 v10, 2, v10
s_lshl_b32 s{T0}, s{sR}, 7
s_lshl_b32 s{T1}, s{sW}, 4
s_add_u32 s{T0}, s{T0}, s{T1}
s_add_u32 s{T0}, s{T0}, {F_H}
s_lshl_b32 s{T6}, s{sR}, 2
s_add_u32 s{T6}, s{T6}, s{sW}
s_mul_i32 s{T6}, s{T6}, 40960
s_mul_i32 s{T1}, s{sT10}, 20480
s_add_u32 s{T6}, s{T6}, s{T1}
s_add_u32 s{T6}, s{T6}, {HF}
v_add_u32 v11, 0x10000, v{vL16}
v_min_u32 v14, 19, v{vLANE}
v_lshlrev_b32 v14, 2, v14
s_lshl_b32 s{T5}, s{sJ}, 7
s_add_u32 s{T5}, s{T5}, {F_WO}""")
        self.vpoll(10, 63, T0)
        self.stamp('h_in')
        htok = []

        def issue_h():
            ks = len(htok)
            htok.append(p.vm(f'buffer_load_dwordx4 a[{4 * ks}:{4 * ks + 3}], v{vL16}, {WS}, s{T6} offen offset:{1024 * (ks & 3)} sc1'))
            if ks & 3 == 3:
                p.I(f's_add_u32 s{T6}, s{T6}, 4096')
            if ks == 19:
                p.I(f's_mul_i32 s{T0}, s{sT10}, 40960\ns_sub_u32 s{T6}, s{T6}, s{T0}')
        for _ in range(LA_H):
            issue_h()

        def rd(ks, T):
            off = (ks * 3 + T) * 1024
            b, off = (vL16, off) if off < 65536 else (11, off - 65536)
            r = 128 + 12 * (ks % 3) + 4 * T
            return p.ds(f'ds_read_b128 v[{r}:{r + 3}], v{b} offset:{off}')
        p.I('s_barrier')
        rt = {}
        for ks in range(2):
            for T in range(3):
                rt[ks] = rd(ks, T)
        for ks in range(40):
            if ks + 2 < 40 and (ks + 2) % 4 == 0 and (ks + 2) // 4 >= self.LA_C:
                p.wait(vm=self.chunk_tok[(ks + 2) // 4])
                p.I('s_barrier')
            if ks % 4 == 0 and len(self.chunk_tok) < 10:
                self.issue_chunk()
            if len(htok) < 40:
                issue_h()
            if ks == 35:
                tf = p.vm(f'buffer_load_dword v15, v14, {WS}, s{T5} offen sc1')
            p.wait(vm=htok[ks], ds=rt[ks])
            for T in range(3):
                r = 128 + 12 * (ks % 3) + 4 * T
                acc = vr(64 + 16 * T, 16)
                p.I(f'v_mfma_f32_32x32x16_bf16 {acc}, v[{r}:{r + 3}], a[{4 * ks}:{4 * ks + 3}], {acc if ks else 0}')
                if ks + 2 < 40:
                    rt[ks + 2] = rd(ks + 2, T)
        self.stamp('p1_main')
        p.I(f"""s_barrier
s_lshl_b32 s{T0}, s{sT10}, 1
s_add_u32 s{T0}, s{T0}, s{sW}
s_and_b32 s{T0}, s{T0}, 3
s_mul_i32 s{T7}, s{T0}, 10240
s_mul_i32 s{T0}, s{sC}, 0xa000
s_add_u32 s{T7}, s{T7}, s{T0}
s_add_u32 s{T7}, s{T7}, {W1T}
s_mul_i32 s{T8}, s{sW}, 10240""")
        for n in (4, 4, 2):
            self.t_t3 = self.dma(T7, T8, n)
            p.I(f's_add_u32 s{T7}, s{T7}, 4096\ns_add_u32 s{T8}, s{T8}, 4096')
        self.check_flags(tf, 15, 14, T5)
        p.I(f's_mul_i32 s{T6}, s{sJ}, 0x19000\ns_add_u32 s{T6}, s{T6}, {WOF}')
        self.dma_rot(T6, 0, 5, 40960)

    def chain_softmax(self, src, out):
        p = self.p
        for k in range(10):
            p.I(f'v_cvt_pk_bf16_f32 v{164 + k}, v{src + 2 * k}, v{src + 2 * k + 1}')
        p.I('v_mov_b32 v174, 0\nv_mov_b32 v175, 0')
        for kap in range(3):
            for mt in range(2):
                acc = vr(176 + 16 * mt, 16)
                fr = 232 + 12 * mt + 4 * kap
                p.I(f'v_mfma_f32_32x32x16_bf16 {acc}, v[{fr}:{fr + 3}], v[{164 + 4 * kap}:{167 + 4 * kap}], {acc if kap else 0}')
        P = 176
        p.I(f's_mov_b32 s{sCA}, {hex(f2u(LOG2E))}\ns_mov_b32 s{sCA + 1}, s{sCA}')
        p.I(f'v_max3_f32 v196, v{P}, v{P + 1}, v{P + 2}\nv_min3_f32 v198, v{P}, v{P + 1}, v{P + 2}')
        for k in range(3, 19, 2):
            p.I(f'v_max3_f32 v196, v196, v{P + k}, v{P + k + 1}\nv_min3_f32 v198, v198, v{P + k}, v{P + k + 1}')
        p.I(f'''v_max_f32 v196, v196, v{P + 19}
v_min_f32 v198, v198, v{P + 19}
v_mul_f32 v196, {hex(f2u(-LOG2E))}, v196
v_mul_f32 v198, {hex(f2u(LOG2E))}, v198''')
        E = 128
        ca = f's[{sCA}:{sCA + 1}]'
        for k in range(10):
            p.I(f'v_pk_fma_f32 v[{E + 2 * k}:{E + 2 * k + 1}], v[{P + 2 * k}:{P + 2 * k + 1}], {ca}, v[196:197] op_sel_hi:[1,1,0]')
            p.I(f'v_pk_fma_f32 v[{P + 2 * k}:{P + 2 * k + 1}], v[{P + 2 * k}:{P + 2 * k + 1}], {ca}, v[198:199] op_sel_hi:[1,1,0] neg_lo:[1,0,0] neg_hi:[1,0,0]')
        for k in range(20):
            p.I(f'v_exp_f32 v{E + k}, v{E + k}\nv_exp_f32 v{P + k}, v{P + k}')
        p.I(f'v_pk_add_f32 v[200:201], v[{E}:{E + 1}], v[{E + 2}:{E + 3}]\nv_pk_add_f32 v[202:203], v[{P}:{P + 1}], v[{P + 2}:{P + 3}]')
        for k in range(2, 10):
            p.I(f'v_pk_add_f32 v[200:201], v[200:201], v[{E + 2 * k}:{E + 2 * k + 1}]\n'
                f'v_pk_add_f32 v[202:203], v[202:203], v[{P + 2 * k}:{P + 2 * k + 1}]')
        p.I('v_add_f32 v200, v200, v201\nv_add_f32 v202, v202, v203\nv_rcp_f32 v200, v200\nv_rcp_f32 v202, v202')
        for k in range(10):
            p.I(f'v_pk_mul_f32 v[{E + 2 * k}:{E + 2 * k + 1}], v[{E + 2 * k}:{E + 2 * k + 1}], v[200:201] op_sel_hi:[1,0]')
            p.I(f'v_pk_mul_f32 v[{P + 2 * k}:{P + 2 * k + 1}], v[{P + 2 * k}:{P + 2 * k + 1}], v[202:203] op_sel_hi:[1,0]')
        for k in range(10):
            p.I(f'v_cvt_pk_bf16_f32 v{out + k}, v{E + 2 * k}, v{E + 2 * k + 1}\n'
                f'v_cvt_pk_bf16_f32 v{out + 10 + k}, v{P + 2 * k}, v{P + 2 * k + 1}')

    def p1_kv(self):
        p = self.p
        for k in range(10):
            p.I(f'v_cvt_pk_bf16_f32 v{152 + k}, v{84 + 2 * k}, v{85 + 2 * k}')
        p.I('v_mov_b32 v162, 0x3f80\nv_mov_b32 v163, 0')
        self.chain_softmax(64, 208)
        p.I(f'''v_and_b32 v4, 31, v{vLANE}
v_lshrrev_b32 v5, 5, v{vLANE}
v_lshlrev_b32 v5, 14, v5
v_lshl_add_u32 v5, v4, 7, v5
s_lshl_b32 s{T0}, s{sW}, 12
s_add_u32 s{T0}, s{T0}, {L_PHS}
v_add_u32 v5, s{T0}, v5
v_bfe_u32 v6, v{vLANE}, 1, 1
v_bfe_u32 v7, v{vLANE}, 2, 1
v_lshl_add_u32 v6, v6, 1, v7
v_and_b32 v7, 1, v{vLANE}
v_lshl_add_u32 v6, v6, 1, v7
v_lshl_add_u32 v5, v6, 4, v5''')
        for ch in range(8):
            src = 208 + 4 * ch if ch < 5 else 152 + 4 * (ch - 5)
            if ch:
                p.I(f'v_xor_b32 v{6 + (ch & 1)}, {16 * ch}, v5')
            p.ds(f'ds_write_b128 v{6 + (ch & 1) if ch else 5}, v[{src}:{src + 3}]')
        p.I(f'''v_bfe_u32 v4, v{vLANE}, 2, 2
v_lshrrev_b32 v5, 5, v{vLANE}
v_lshl_add_u32 v5, v5, 3, v4
v_lshlrev_b32 v5, 7, v5
s_lshr_b32 s{T0}, s{sW}, 1
s_lshl_b32 s{T0}, s{T0}, 14
s_add_u32 s{T0}, s{T0}, {L_PHS}
v_add_u32 v5, s{T0}, v5
v_lshrrev_b32 v6, 1, v4
v_and_b32 v7, 1, v4
v_lshl_add_u32 v6, v6, 2, v7
v_bfe_u32 v7, v{vLANE}, 4, 1
v_and_b32 v8, 1, v{vLANE}
v_bfe_u32 v9, v{vLANE}, 1, 1
v_lshl_add_u32 v10, v7, 1, v8
s_and_b32 s{T1}, s{sW}, 1
s_lshl_b32 s{T1}, s{T1}, 2
v_add_u32 v10, s{T1}, v10
v_xor_b32 v10, v10, v6
v_lshlrev_b32 v10, 4, v10
v_lshl_add_u32 v10, v9, 3, v10
v_add_u32 v12, v5, v10
v_xor_b32 v10, 32, v10
v_add3_u32 v13, v5, v10, s{T2}
v_lshl_add_u32 v10, v7, 1, v9
v_add_u32 v10, 5, v10
v_min_u32 v10, 7, v10
v_xor_b32 v10, v10, v6
v_lshlrev_b32 v10, 4, v10
v_lshl_add_u32 v10, v8, 3, v10
v_add_u32 v14, v5, v10
v_xor_b32 v10, 32, v10
v_add3_u32 v15, v5, v10, s{T2}'''.replace(f'v_add_u32 v12, v5, v10', f's_mov_b32 s{T2}, 512\nv_add_u32 v12, v5, v10'))
        p.wait_lgkm_all()
        p.I('s_barrier')
        toks = []
        for ks in range(8):
            a, b = 128 + 8 * (ks & 3), 132 + 8 * (ks & 3)
            if ks >= 4:
                self.kv_mfma(ks - 4, toks)
            p.ds(f'ds_read_b64_tr_b16 v[{a}:{a + 1}], v12 offset:{2048 * ks}')
            p.ds(f'ds_read_b64_tr_b16 v[{a + 2}:{a + 3}], v13 offset:{2048 * ks}')
            p.ds(f'ds_read_b64_tr_b16 v[{b}:{b + 1}], v14 offset:{2048 * ks}')
            toks.append(p.ds(f'ds_read_b64_tr_b16 v[{b + 2}:{b + 3}], v15 offset:{2048 * ks}'))
        for ks in range(4, 8):
            self.kv_mfma(ks, toks)
        p.I(f'''v_and_b32 v4, 31, v{vLANE}
s_and_b32 s{T1}, s{sW}, 1
s_lshl_b32 s{T2}, s{T1}, 5
v_and_b32 v5, s{T2}, v{vLANE}
v_add_u32 v4, v4, v5
v_mov_b32 v5, {OOB}
v_cmp_lt_u32 vcc, 20, v4
v_cndmask_b32 v4, v{vL16}, v5, vcc
s_lshl_b32 s{T0}, s{sC}, 4
s_add_u32 s{T0}, s{T0}, s{sR}
s_mul_i32 s{T0}, s{T0}, 5120
s_lshr_b32 s{T2}, s{sW}, 1
s_mul_i32 s{T2}, s{T2}, 2560
s_add_u32 s{T0}, s{T0}, s{T2}
s_lshl_b32 s{T2}, s{T1}, 11
s_add_u32 s{T0}, s{T0}, s{T2}
s_add_u32 s{T0}, s{T0}, {KVP}
s_cmp_eq_u32 s{T1}, 0
s_cselect_b32 s{T1}, s{T0}, {OOB}''')
        for k in range(8):
            p.I(f'v_cvt_pk_bf16_f32 v{128 + k}, v{176 + 2 * k}, v{177 + 2 * k}')
        p.vm(f'buffer_store_dwordx4 v[128:131], v4, {WS}, s{T0} offen sc1')
        p.vm(f'buffer_store_dwordx4 v[132:135], v4, {WS}, s{T1} offen offset:1024 sc1')
        p.I(f'''s_lshl_b32 s{T0}, s{sRB}, 18
s_lshl_b32 s{T1}, s{sJ}, 15
s_add_u32 s{T0}, s{T0}, s{T1}
s_lshl_b32 s{T1}, s{sW}, 13
s_add_u32 s{T0}, s{T0}, s{T1}
s_add_u32 s{T0}, s{T0}, {WSF}
s_add_u32 s{T1}, s{T0}, 4096
s_lshl_b32 s{T2}, s{sC}, 7
s_lshl_b32 s{T3}, s{sR}, 2
s_add_u32 s{T2}, s{T2}, s{T3}
s_add_u32 s{T2}, s{T2}, {F_KV}''')
        self.wave0(T2, T2)
        p.wait_vm_all()
        p.I('s_barrier')
        self.flag(T2, 46, False)
        self.stamp('kv_pub')
        for n in range(8):
            p.vm(f'buffer_store_dwordx4 a[{212 + 4 * n}:{215 + 4 * n}], v{vL16}, {WS}, s{T0 if n < 4 else T1} offen offset:{1024 * (n & 3)} sc1')
        self.raw_loads()
        self.dma_range(T6, 80, 100, 40960 + 81920)

    def kv_mfma(self, ks, toks):
        p = self.p
        a, b = 128 + 8 * (ks & 3), 132 + 8 * (ks & 3)
        p.wait(ds=toks[ks])
        p.I(f'v_mfma_f32_32x32x16_bf16 v[176:191], v[{a}:{a + 3}], v[{b}:{b + 3}], {"v[176:191]" if ks else 0}')

    def p1_q(self):
        p = self.p

        def rd(ks):
            r = 128 + 4 * (ks & 3)
            return p.ds(f'ds_read_b128 v[{r}:{r + 3}], v{vL16} offset:{1024 * ks}')
        toks = [rd(0), rd(1), rd(2)]
        for ks in range(40):
            if ks + 3 < 40:
                toks.append(rd(ks + 3))
            p.wait(ds=toks[ks])
            r = 128 + 4 * (ks & 3)
            p.I(f'v_mfma_f32_32x32x16_bf16 v[112:127], v[{r}:{r + 3}], a[{4 * ks}:{4 * ks + 3}], {"v[112:127]" if ks else 0}')
        self.stamp('t3_done')
        self.chain_softmax(104, 208)
        self.stamp('q_done')

    def repack_mid(self):
        p = self.p
        p.I('s_barrier\nv_lshlrev_b32 v4, 4, v0')
        p.wait(vm=self.t_rawp1)
        for k in range(4):
            p.ds(f'ds_write_b128 v4, a[{160 + 4 * k}:{163 + 4 * k}] offset:{4096 * k}')
        for k in range(2):
            p.ds(f'ds_write_b128 v4, a[{176 + 4 * k}:{179 + 4 * k}] offset:{16384 + 4096 * k}')
        for k in range(20):
            p.I(f'v_accvgpr_read_b32 v{64 + k}, a{184 + k}')
        self.gemv(4, 64, 80, L_SCR_G2)
        self.trbase16(35, 512, 36)
        p.I(f"""s_lshr_b32 s{T2}, s{sW}, 1
s_and_b32 s{T3}, s{sW}, 1
s_cmp_eq_u32 s{T2}, 0
s_cselect_b32 s{T4}, 8, 48
s_cselect_b32 s{T5}, 32, 8
s_cselect_b32 s{T6}, 0, 192
s_mul_i32 s{T1}, s{T5}, 3
s_mul_i32 s{T1}, s{T1}, s{T3}
s_add_u32 s{T6}, s{T6}, s{T1}
v_mul_lo_u32 v37, v36, s{T4}
v_add3_u32 v37, v37, v35, s{T6}
v_add_u32 v38, s{T5}, v37
v_add_u32 v39, s{T5}, v38
s_mul_i32 s{T0}, s{sJ}, 0x3c000
s_mul_i32 s{T1}, s{T2}, 0x1e000
s_add_u32 s{T0}, s{T0}, s{T1}
s_mul_i32 s{T1}, s{sRB}, 6144
s_add_u32 s{T0}, s{T0}, s{T1}
s_mul_i32 s{T1}, s{T3}, 3072
s_add_u32 s{T0}, s{T0}, s{T1}
s_add_u32 s{T0}, s{T0}, {W2F}
s_cmp_lt_u32 s{sRB}, 20
s_cselect_b32 s{T2}, s{T0}, {OOB}
s_mul_i32 s{T3}, s{sT9}, 384
s_add_u32 s{T3}, s{T3}, {M2}
s_cmp_lt_u32 s{sI}, 25
s_cselect_b32 s{T3}, s{T3}, {OOB}
s_mul_i32 s{T4}, s{sJ}, 0x1e000
s_mul_i32 s{T1}, s{sRB}, 5120
s_add_u32 s{T4}, s{T4}, s{T1}
s_add_u32 s{T4}, s{T4}, {WOUTF}
s_cmp_lt_u32 s{sRB}, 24
s_cselect_b32 s{T4}, s{T4}, {OOB}""")
        self.repack5_addr(16384)
        p.wait_lgkm_all()
        p.I('s_barrier')
        self.gemv_pub(T3)
        for k in range(3):
            p.ds(f'ds_read_b64_tr_b16 v[{64 + 4 * k}:{65 + 4 * k}], v{37 + k}')
            t = p.ds(f'ds_read_b64_tr_b16 v[{66 + 4 * k}:{67 + 4 * k}], v{37 + k} offset:2048')
        p.wait(ds=t)
        for k in range(3):
            p.vm(f'buffer_store_dwordx4 v[{64 + 4 * k}:{67 + 4 * k}], v{vL16}, {WS}, s{T2} offen offset:{1024 * k} sc1')
        self.repack5(T4, 76)
        self.stamp('rp_done')

    def repack_flags(self):
        p = self.p
        self.flag_ks(F_WIN, 20)
        self.flag(T0, 46, False)
        self.flag_ks(F_WOUT, 24)
        self.flag(T0, 46, False)
        p.I(f"""s_lshl_b32 s{T0}, s{sROLE}, 2
s_add_u32 s{T0}, s{T0}, {F_WS}""")
        self.wave0(T0, T0)
        self.flag(T0, 46, False)

    def p1_o(self):
        p = self.p
        p.I(f'''v_mul_u32_u24 v4, 3121, v0
v_lshrrev_b32 v4, 16, v4
v_mul_u32_u24 v5, 21, v4
v_sub_u32 v5, v0, v5
v_lshlrev_b32 v5, 4, v5
v_lshl_add_u32 v6, v4, 9, v5
v_mul_u32_u24 v4, 384, v4
v_add3_u32 v7, v4, v5, s{T2}
v_mov_b32 v4, {OOB}
v_mov_b32 v5, {L_ZERO + 2048}
v_cmp_gt_u32 vcc, 210, v0
v_cndmask_b32 v6, v4, v6, vcc
v_cndmask_b32 v7, v5, v7, vcc
v_bfe_u32 v4, v{vLANE}, 3, 2
v_and_b32 v5, 3, v{vLANE}
v_lshl_add_u32 v4, v4, 2, v5
v_bfe_u32 v5, v{vLANE}, 2, 1
v_mul_u32_u24 v8, 1920, v5
v_lshl_add_u32 v8, v4, 4, v8
v_add_u32 v8, {L_KVR}, v8
v_lshrrev_b32 v9, 5, v{vLANE}
v_mov_b32 v10, {L_ZERO}
v_cmp_eq_u32 vcc, v5, v9
v_cndmask_b32 v8, v10, v8, vcc
v_add_u32 v11, 256, v8
v_cmp_ge_u32 vcc, 4, v4
v_cndmask_b32 v11, v10, v11, vcc
v_bfe_u32 v4, v{vLANE}, 4, 1
v_mul_u32_u24 v4, 20480, v4
v_and_b32 v5, 15, v{vLANE}
v_lshl_add_u32 v4, v5, 4, v4
v_lshl_add_u32 v12, v9, 9, v4
v_lshl_add_u32 v13, v9, 3, v4
s_lshl_b32 s{T5}, s{sR}, 2
s_add_u32 s{T5}, s{T5}, s{sW}
s_mul_i32 s{T5}, s{T5}, 40960
s_mul_i32 s{T1}, s{sC}, 1280
s_add_u32 s{T5}, s{T5}, s{T1}
s_add_u32 s{T5}, s{T5}, {OF}
s_mul_i32 s{T6}, s{sC}, {16 * 5120}
s_add_u32 s{T6}, s{T6}, {KVP}
s_lshl_b32 s{T0}, s{sC}, 7
s_add_u32 s{T0}, s{T0}, {F_KV}'''.replace('v_mul_u32_u24 v4, 384, v4', f's_mov_b32 s{T2}, {L_KVR}\nv_mul_u32_u24 v4, 384, v4'))
        self.pretouch([f'buffer_load_dword v63, v12, {WS}, s{T5} offen sc1',
                       f'buffer_load_dword v63, v12, {WS}, s{T5} offen offset:256 sc1',
                       f'buffer_load_dword v63, v13, {WS}, s{T5} offen offset:1024 sc1'])
        self.spoll_n(T0, 16)
        self.stamp('kv_in')
        toks = []
        for r in range(16):
            toks.append(p.vm(f'buffer_load_dwordx4 v[{64 + 4 * r}:{67 + 4 * r}], v6, {WS}, s{T6} offen sc1'))
            if r < 15:
                p.I(f's_add_u32 s{T6}, s{T6}, 5120')
        p.I('v_mov_b32 v38, 0x3f80\nv_mov_b32 v39, 1.0')
        for n in range(8):
            p.I(f'v_mov_b32 v{40 + n}, 0')
        for r in range(16):
            p.wait(vm=toks[r])
            for d in range(4):
                p.I(f'v_dot2c_f32_bf16 v{40 + 2 * d}, v{64 + 4 * r + d}, v38\nv_dot2c_f32_bf16 v{41 + 2 * d}, v{64 + 4 * r + d}, v39')
        for d in range(4):
            p.I(f'v_cvt_pk_bf16_f32 v{48 + d}, v{40 + 2 * d}, v{41 + 2 * d}')
        p.ds('ds_write_b128 v7, v[48:51]')
        p.wait_lgkm_all()
        p.I('s_barrier')
        toks = []
        for ks in range(5):
            p.ds(f'ds_read_b128 v[{64 + 8 * ks}:{67 + 8 * ks}], v8 offset:{384 * ks}')
            toks.append(p.ds(f'ds_read_b128 v[{68 + 8 * ks}:{71 + 8 * ks}], v11 offset:{384 * ks}'))
        self.repack_flags()
        for ks in range(5):
            p.wait(ds=toks[ks])
            for tp in range(2):
                acc = vr(128 + 16 * tp, 16)
                r = 64 + 8 * ks + 4 * tp
                p.I(f'v_mfma_f32_32x32x16_bf16 {acc}, v[{r}:{r + 3}], v[{208 + 4 * ks}:{211 + 4 * ks}], {acc if ks else 0}')
        p.I(f'''s_lshl_b32 s{T0}, s{sR}, 8
s_lshl_b32 s{T1}, s{sW}, 6
s_add_u32 s{T0}, s{T0}, s{T1}
s_lshl_b32 s{T1}, s{sC}, 2
s_add_u32 s{T0}, s{T0}, s{T1}
s_add_u32 s{T0}, s{T0}, {F_O}
v_add_f32 v148, {hex(f2u(1e-6))}, v148
v_rcp_f32 v148, v148''')
        for k in range(10):
            p.I(f'v_pk_mul_f32 v[{128 + 2 * k}:{129 + 2 * k}], v[{128 + 2 * k}:{129 + 2 * k}], v[148:149] op_sel_hi:[1,0]')
        for k in range(10):
            p.I(f'v_cvt_pk_bf16_f32 v{152 + k}, v{128 + 2 * k}, v{129 + 2 * k}')
        t = self.lstores([f'buffer_store_dwordx4 v[152:155], v12, {WS}, s{T5} offen',
                          f'buffer_store_dwordx4 v[156:159], v12, {WS}, s{T5} offen offset:256',
                          f'buffer_store_dwordx2 v[160:161], v13, {WS}, s{T5} offen offset:1024'])
        p.wait(vm=t)
        self.flag(T0, 46, True)
        self.stamp('o_pub')

    def wsp_load(self, n):
        p = self.p
        for _ in range(n):
            if self.nws >= 64:
                return
            k = self.nws
            if k % 16 == 0:
                p.I(f"""s_add_u32 s{sT10}, s{sRB}, {k // 16}
s_and_b32 s{sT10}, s{sT10}, 3
s_lshl_b32 s{sT10}, s{sT10}, 14
s_lshl_b32 s3, s{sRB}, 2
s_add_u32 s3, s3, s{sW}
s_lshl_b32 s3, s3, 16
s_add_u32 s{sT10}, s{sT10}, s3
s_add_u32 s{sT10}, s{sT10}, {WSF}""")
            self.t_ws = p.vm(f'buffer_load_dwordx4 a[{4 * k}:{4 * k + 3}], v{vL16}, {WS}, s{sT10} offen offset:{1024 * (k & 3)} sc1')
            if k & 3 == 3 and k % 16 != 15:
                p.I(f's_add_u32 s{sT10}, s{sT10}, 4096')
            self.nws += 1

    def dma_range(self, src0, n0, n1, lds0):
        p = self.p
        per = (n1 - n0) // 4
        assert per * 4 == n1 - n0
        p.I(f'''s_mul_i32 s{T8}, s{sW}, {per * 1024}
s_add_u32 s{T7}, s{T8}, s{src0}
s_add_u32 s{T7}, s{T7}, {n0 * 1024}
s_add_u32 s{T8}, s{T8}, {lds0}''')
        tok = None
        while per:
            n = min(per, 4)
            tok = self.dma(T7, T8, n)
            per -= n
            if per:
                p.I(f's_add_u32 s{T7}, s{T7}, 4096\ns_add_u32 s{T8}, s{T8}, 4096')
        return tok

    def lds_frag(self, r, addr):
        b = (vL16, 5, 6)[addr >> 16]
        return self.p.ds(f'ds_read_b128 v[{r}:{r + 3}], v{b} offset:{addr & 0xffff}')

    def gemm16(self, nks, nt, btok, breg, addr_of, abuf, acc, swap=False, hook=None, pre=None):
        p = self.p
        buf = lambda ks, n: abuf + 4 * nt * (ks % 3) + 4 * n
        rt = {}
        for ks in range(2):
            if pre:
                pre(ks)
            for n in range(nt):
                rt[ks] = self.lds_frag(buf(ks, n), addr_of(ks, n))
        for ks in range(nks):
            if pre and ks + 2 < nks:
                pre(ks + 2)
            if hook:
                hook(ks)
            p.wait(vm=btok[ks] if btok else None, ds=rt[ks])
            for n in range(nt):
                w = vr(buf(ks, n), 4)
                x = vr(breg + 4 * ks, 4)
                d = vr(acc + 4 * n, 4)
                a, b = (x, w) if swap else (w, x)
                p.I(f'v_mfma_f32_16x16x32_bf16 {d}, {a}, {b}, {d if ks else 0}')
                if ks + 2 < nks:
                    rt[ks + 2] = self.lds_frag(buf(ks + 2, n), addr_of(ks + 2, n))

    def tile_addr(self):
        self.p.I(f"""v_lshrrev_b32 v4, 4, v{vLANE}
v_and_b32 v11, 15, v{vLANE}
v_lshlrev_b32 v9, 5, v4
v_lshlrev_b32 v10, 3, v4
v_add_u32 v10, 128, v10
v_mul_u32_u24 v8, 1280, v11
v_add_u32 v7, v8, v9
v_add_u32 v8, v8, v10
s_and_b32 s{T0}, s{sJ}, 3
s_lshl_b32 s{T0}, s{T0}, 5
v_add_u32 v9, s{T0}, v9
v_lshrrev_b32 v4, 7, v9
v_lshl_add_u32 v9, v4, 4, v9
v_add_u32 v9, {L_M2}, v9
s_add_u32 s{T0}, s{T0}, {L_M2 + 16}
v_add_u32 v10, s{T0}, v10""")

    def load_vec(self, dst, vec):
        p = self.p
        p.ds(f'ds_read_b128 v[{dst}:{dst + 3}], v9 offset:{288 * vec}')
        p.ds(f'ds_read_b128 v[{dst + 4}:{dst + 7}], v9 offset:{288 * vec + 16}')
        return p.ds(f'ds_read_b64 v[{dst + 8}:{dst + 9}], v10 offset:{288 * vec}')

    def rstd(self, s, q, n):
        self.p.I(f'''s_mov_b32 s{T2}, {hex(f2u(1 / n))}
v_mul_f32 v{s}, s{T2}, v{s}
v_mul_f32 v4, v{s}, v{s}
v_fma_f32 v{q}, v{q}, s{T2}, -v4
v_max_f32 v{q}, 0, v{q}
v_add_f32 v{q}, {hex(f2u(1e-5))}, v{q}
v_rsq_f32 v{q}, v{q}
v_mul_f32 v{s}, -v{s}, v{q}''')

    def p2a(self):
        p = self.p
        X1, GA, A2, SBv, ACC = 232, 16, 76, 96, 204
        PA2, PSB = 36, 46
        p.I(f'v_add_u32 v5, 0x10000, v{vL16}\nv_add_u32 v6, 0x20000, v{vL16}')
        self.tile_addr()
        xs = self.srd(SA, P_X, 2048 * 1280)
        p.I(f"""s_lshl_b32 s{T6}, s{sRB}, 2
s_add_u32 s{T6}, s{T6}, s{sW}
s_mul_i32 s{T1}, s{T6}, {16 * 1280}
s_mul_i32 s{T2}, s{sJ}, 160
s_add_u32 s{sT9}, s{T1}, s{T2}""")
        p.vm(f'buffer_load_dwordx4 v[64:67], v7, {xs}, s{sT9} offen')
        p.vm(f'buffer_load_dwordx4 v[68:71], v7, {xs}, s{sT9} offen offset:16')
        p.vm(f'buffer_load_dwordx2 v[72:73], v8, {xs}, s{sT9} offen')
        p.I(f"""v_lshlrev_b32 v12, 4, v11
v_lshrrev_b32 v4, 4, v{vLANE}
v_lshl_add_u32 v13, v4, 9, v12
v_lshrrev_b32 v14, 1, v4
v_lshl_add_u32 v14, v14, 8, v12
v_and_b32 v15, 1, v4
v_lshl_add_u32 v14, v15, 3, v14
v_lshl_add_u32 v15, v4, 10, v12
s_mul_i32 s{T5}, s{T6}, 20480
s_mul_i32 s{T1}, s{sJ}, 2560
s_add_u32 s{T4}, s{T5}, s{T1}
s_add_u32 s{T4}, s{T4}, {H2F}
s_add_u32 s{T5}, s{T5}, {OF}
s_lshl_b32 s{T3}, s{sRB}, 13
s_lshl_b32 s{T1}, s{sW}, 8
s_add_u32 s{T3}, s{T3}, s{T1}
s_add_u32 s{T3}, s{T3}, {ST2}
s_lshl_b32 s{T1}, s{sJ}, 10
s_add_u32 s{T6}, s{T3}, s{T1}""")
        self.pretouch([f'buffer_load_dword v63, v13, {WS}, s{T4} offen sc1',
                       f'buffer_load_dword v63, v13, {WS}, s{T4} offen offset:256 sc1',
                       f'buffer_load_dword v63, v14, {WS}, s{T4} offen offset:2048 sc1',
                       f'buffer_load_dword v63, v12, {WS}, s{T6} offen sc1'])
        p.I(f"""v_min_u32 v56, 175, v0
v_mul_u32_u24 v57, 2979, v56
v_lshrrev_b32 v57, 16, v57
v_mul_u32_u24 v58, 22, v57
v_sub_u32 v58, v56, v58
v_lshrrev_b32 v59, 1, v57
v_mul_u32_u24 v60, 10, v59
v_and_b32 v61, 1, v57
s_mul_i32 s{T0}, s{sJ}, 5
s_lshr_b32 s{T0}, s{T0}, 2
v_add3_u32 v60, v60, v61, s{T0}
v_mul_u32_u24 v60, 1920, v60
v_lshl_add_u32 v60, v58, 4, v60
v_mul_u32_u24 v57, 144, v57
v_mul_u32_u24 v58, 6, v58
s_mov_b32 s{T0}, {L_M2}
v_add3_u32 v61, v57, v58, s{T0}
v_cmp_eq_u32 vcc, 2, v59
v_cndmask_b32 v62, 0, 1.0, vcc
s_mov_b32 s{T0}, {M2}
v_mov_b32 v57, s{sTAG}""")
        loop, done = p.newlabel('m2'), p.newlabel('m2d')
        p.L(loop)
        for k in range(5):
            p.vm(f'buffer_load_dwordx4 v[{76 + 4 * k}:{79 + 4 * k}], v60, {WS}, s{T0} offen offset:{384 * k} sc1')
        p.wait_vm_all()
        p.I('v_xor_b32 v56, v79, v57')
        for k in range(1, 5):
            p.I(f'v_bitop3_b32 v56, v56, v{79 + 4 * k}, v57 bitop3:0xf6')
        p.I(f'v_cmp_ne_u32 vcc, 0, v56\ns_cmp_eq_u64 vcc, 0\ns_cbranch_scc1 {done}')
        self.spin_tail(loop, done)
        self.mod_finish(76, 1, 5, 62, 61)
        self.unpack(X1, 64, 10)
        p.I(f"""v_min_u32 v56, 51, v{vLANE}
v_lshlrev_b32 v56, 2, v56
s_lshl_b32 s{T0}, s{sJ}, 7
s_add_u32 s{T1}, s{T0}, {F_WIN}
s_add_u32 s{T0}, s{T0}, {F_WOUT - 80}
s_lshl_b32 s{T2}, s{sRB}, 5
s_add_u32 s{T2}, s{T2}, {F_WS - 176}
v_mov_b32 v57, s{T1}
v_mov_b32 v58, s{T0}
v_cmp_lt_u32 vcc, 19, v{vLANE}
v_cndmask_b32 v57, v57, v58, vcc
v_mov_b32 v58, s{T2}
v_cmp_lt_u32 vcc, 43, v{vLANE}
v_cndmask_b32 v57, v57, v58, vcc
v_add_u32 v61, v56, v57
v_lshlrev_b32 v4, 2, v11
s_lshl_b32 s{T0}, s{sR}, 8
s_and_b32 s{T1}, s{sRB}, 1
s_lshl_b32 s{T1}, s{T1}, 1
s_lshr_b32 s{T2}, s{sW}, 1
s_add_u32 s{T1}, s{T1}, s{T2}
s_lshl_b32 s{T1}, s{T1}, 6
s_add_u32 s{T0}, s{T0}, s{T1}
s_add_u32 s{T0}, s{T0}, {F_O}
s_mul_i32 s{sCA}, s{sJ}, 0x3c000
s_add_u32 s{sCA}, s{sCA}, {W2F}
s_mov_b32 s{sCA + 1}, 0""")
        self.stamp('p2a_prep')
        self.vpoll(4, 63, T0)
        self.stamp('o_in')
        bt = []
        for ks in range(20):
            bt.append(p.vm(f'buffer_load_dwordx4 v[{64 + 4 * ks}:{67 + 4 * ks}], v{vL16}, {WS}, s{T5} offen offset:{1024 * (ks & 3)} sc1'))
            if ks & 3 == 3:
                p.I(f's_add_u32 s{T5}, s{T5}, 4096')
        tf = p.vm(f'buffer_load_dword v62, v61, {WS}, s{sCA + 1} offen sc1')
        p.wait_lgkm_all()
        p.I('s_barrier')
        self.load_vec(PA2, 2)
        self.load_vec(PSB, 1)
        self.nws = 0

        def hook(ks):
            if ks == 19:
                self.check_flags(tf, 62, 61, sCA + 1)
                self.dma_range(sCA, 0, 36, 0)
        self.gemm16(20, 5, bt, 64, lambda ks, n: 40960 + (ks * 5 + n) * 1024, 144, ACC, hook=hook)
        tg = self.load_vec(64, 0)
        p.wait(ds=tg)
        self.unpack(GA, 64, 10)
        p.I('s_barrier')
        self.stamp('p2a_mm')
        for k in range(10):
            p.I(f'v_pk_fma_f32 v[{X1 + 2 * k}:{X1 + 2 * k + 1}], v[{GA + 2 * k}:{GA + 2 * k + 1}], v[{ACC + 2 * k}:{ACC + 2 * k + 1}], v[{X1 + 2 * k}:{X1 + 2 * k + 1}]')
        p.I(f'v_pk_add_f32 v[56:57], v[{X1}:{X1 + 1}], v[{X1 + 2}:{X1 + 3}]\nv_pk_mul_f32 v[58:59], v[{X1}:{X1 + 1}], v[{X1}:{X1 + 1}]')
        for k in range(1, 10):
            x = f'v[{X1 + 2 * k}:{X1 + 2 * k + 1}]'
            if k > 1:
                p.I(f'v_pk_add_f32 v[56:57], v[56:57], {x}')
            p.I(f'v_pk_fma_f32 v[58:59], {x}, {x}, v[58:59]')
        p.I('v_add_f32 v56, v56, v57\nv_add_f32 v58, v58, v59')
        self.xreduce_sq(56, 58, 57)
        p.I(f'v_mov_b32 v58, s{sTAG}\nv_mov_b32 v59, 0\ns_mov_b64 exec, 0xffff')
        self.lstores([f'buffer_store_dwordx4 v[56:59], v12, {WS}, s{T6} offen'])
        p.I(f's_mov_b64 exec, -1\ns_add_u32 s{T1}, s{T3}, 4096')
        self.unpack(A2, PA2, 10)
        self.unpack(SBv, PSB, 10)
        loop, done = p.newlabel('s2'), p.newlabel('s2d')
        p.L(loop)
        p.vm(f'buffer_load_dwordx4 v[64:67], v15, {WS}, s{T3} offen sc1')
        p.vm(f'buffer_load_dwordx4 v[68:71], v15, {WS}, s{T1} offen sc1')
        p.wait_vm_all()
        p.I(f'''v_cmp_ne_u32 vcc, s{sTAG}, v66
v_cmp_ne_u32 s[{sM}:{sM + 1}], s{sTAG}, v70
s_or_b64 vcc, vcc, s[{sM}:{sM + 1}]
s_cmp_eq_u64 vcc, 0
s_cbranch_scc1 {done}''')
        self.spin_tail(loop, done)
        self.stamp('st2_in')
        p.I('v_add_f32 v56, v64, v68\nv_add_f32 v60, v65, v69')
        self.xreduce_sq(56, 60, 58)
        self.rstd(56, 58, 640)
        for k in range(10):
            p.I(f'v_pk_fma_f32 v[{ACC + 2 * k}:{ACC + 2 * k + 1}], v[{X1 + 2 * k}:{X1 + 2 * k + 1}], v[58:59], v[56:57] op_sel_hi:[1,0,0]')
        for k in range(10):
            p.I(f'v_pk_fma_f32 v[{ACC + 2 * k}:{ACC + 2 * k + 1}], v[{ACC + 2 * k}:{ACC + 2 * k + 1}], v[{A2 + 2 * k}:{A2 + 2 * k + 1}], v[{SBv + 2 * k}:{SBv + 2 * k + 1}]')
        for k in range(10):
            p.I(f'v_cvt_pk_bf16_f32 v{64 + k}, v{ACC + 2 * k}, v{ACC + 2 * k + 1}')
        t = self.lstores([f'buffer_store_dwordx4 v[64:67], v13, {WS}, s{T4} offen',
                          f'buffer_store_dwordx4 v[68:71], v13, {WS}, s{T4} offen offset:256',
                          f'buffer_store_dwordx2 v[72:73], v14, {WS}, s{T4} offen offset:2048'])
        p.I(f'''s_lshl_b32 s{T6}, s{sRB}, 7
s_lshl_b32 s{T1}, s{sW}, 5
s_add_u32 s{T6}, s{T6}, s{T1}
s_add_u32 s{T6}, s{T6}, {F_H2}
s_lshl_b32 s{T1}, s{sJ}, 2
s_add_u32 s{T0}, s{T6}, s{T1}''')
        p.wait(vm=t)
        self.flag(T0, 60, True)
        self.stamp('h2_pub')

    def gelu(self, x, n, t):
        p = self.p
        k0 = 0.7978845608028654
        A = -2 * LOG2E * k0
        B = A * 0.044715
        p.I(f's_mov_b32 s{sM}, {hex(f2u(B))}\ns_mov_b32 s{sM + 1}, s{sM}\nv_mov_b32 v56, {hex(f2u(A))}')
        pr = lambda b, k: f'v[{b + 2 * k}:{b + 2 * k + 1}]'
        for k in range(n // 2):
            p.I(f'v_pk_mul_f32 {pr(t, k)}, {pr(x, k)}, {pr(x, k)}')
        for k in range(n // 2):
            p.I(f'v_pk_fma_f32 {pr(t, k)}, {pr(t, k)}, s[{sM}:{sM + 1}], v[56:57] op_sel_hi:[1,1,0]')
        for k in range(n // 2):
            p.I(f'v_pk_mul_f32 {pr(t, k)}, {pr(t, k)}, {pr(x, k)}')
        for k in range(n):
            p.I(f'v_exp_f32 v{t + k}, v{t + k}')
        for k in range(n // 2):
            p.I(f'v_pk_add_f32 {pr(t, k)}, {pr(t, k)}, 1.0 op_sel_hi:[1,0]')
        for k in range(n):
            p.I(f'v_rcp_f32 v{t + k}, v{t + k}')
        for k in range(n // 2):
            p.I(f'v_pk_mul_f32 {pr(x, k)}, {pr(x, k)}, {pr(t, k)}')

    def p2b(self):
        p = self.p
        ACC, Z1, TMP = 16, 16, 144
        ta = self.dma_range(sCA, 36, 76, 40960)
        p.I(f'''v_and_b32 v4, 7, v{vLANE}
v_lshlrev_b32 v4, 2, v4
s_lshl_b32 s{T5}, s{sRB}, 2
s_add_u32 s{T5}, s{T5}, s{sW}
s_mul_i32 s{T5}, s{T5}, 20480
s_add_u32 s{T5}, s{T5}, {H2F}
v_lshrrev_b32 v12, 4, v{vLANE}
v_lshlrev_b32 v12, 6, v12
v_and_b32 v13, 3, v{vLANE}
v_lshl_add_u32 v13, v13, 4, v12
v_bfe_u32 v14, v{vLANE}, 3, 1
v_lshl_add_u32 v14, v14, 4, v12
v_and_b32 v15, 7, v{vLANE}
v_lshl_add_u32 v14, v15, 10, v14
s_lshl_b32 s{T3}, s{sRB}, 13
s_lshl_b32 s{T1}, s{sW}, 8
s_add_u32 s{T3}, s{T3}, s{T1}
s_add_u32 s{T3}, s{T3}, {ST3}
s_lshl_b32 s{T1}, s{sJ}, 10
s_add_u32 s{T4}, s{T3}, s{T1}''')
        self.pretouch([f'buffer_load_dword v63, v13, {WS}, s{T4} offen sc1'])
        self.vpoll(4, 63, T6)
        self.stamp('h2_in')
        bt = []
        for ks in range(20):
            bt.append(p.vm(f'buffer_load_dwordx4 v[{64 + 4 * ks}:{67 + 4 * ks}], v{vL16}, {WS}, s{T5} offen offset:{1024 * (ks & 3)} sc1'))
            if ks & 3 == 3:
                p.I(f's_add_u32 s{T5}, s{T5}, 4096')
        tb = self.dma_range(sCA, 76, 120, 40960 + 40 * 1024)
        p.I('s_barrier')
        z2addr = lambda n: n * 1024 if n < 36 else 40960 + (n - 36) * 1024

        def pre(ks):
            if ks == 12:
                p.wait(vm=tb)
                p.I('s_barrier')
        st = {}

        def hook(ks):
            if ks == 12:
                p.I(f's_add_u32 s{sCA}, s{sCA}, 0x1e000')
                st['c'] = self.dma_range(sCA, 0, 24, 40960 + 84 * 1024)
        self.gemm16(20, 6, bt, 64, lambda ks, n: z2addr(ks * 6 + n), TMP, ACC, swap=True, pre=pre, hook=hook)
        p.I('s_barrier')
        self.stamp('z2_mm')
        td = self.dma_range(sCA, 24, 64, 0)
        self.gelu(ACC, 24, TMP)
        pr = lambda b: f'v[{b}:{b + 1}]'
        p.I(f'v_pk_add_f32 v[40:41], {pr(ACC)}, {pr(ACC + 4)}\nv_pk_add_f32 v[42:43], {pr(ACC + 2)}, {pr(ACC + 6)}')
        p.I(f'v_pk_mul_f32 v[44:45], {pr(ACC)}, {pr(ACC)}\nv_pk_mul_f32 v[46:47], {pr(ACC + 2)}, {pr(ACC + 2)}')
        for ft in range(1, 6):
            a, b = pr(ACC + 4 * ft), pr(ACC + 4 * ft + 2)
            if ft > 1:
                p.I(f'v_pk_add_f32 v[40:41], v[40:41], {a}\nv_pk_add_f32 v[42:43], v[42:43], {b}')
            p.I(f'v_pk_fma_f32 v[44:45], {a}, {a}, v[44:45]\nv_pk_fma_f32 v[46:47], {b}, {b}, v[46:47]')
        for c in ('row_ror:8', 'row_ror:4', 'row_ror:2', 'row_ror:1'):
            self.dpp_add(range(40, 48), c)
        p.I(f'''s_mov_b32 vcc_lo, 0xaaaaaaaa
s_mov_b32 vcc_hi, 0xaaaaaaaa
v_cndmask_b32 v40, v40, v41, vcc
v_cndmask_b32 v42, v42, v43, vcc
v_cndmask_b32 v44, v44, v45, vcc
v_cndmask_b32 v46, v46, v47, vcc
s_mov_b32 vcc_lo, 0xcccccccc
s_mov_b32 vcc_hi, 0xcccccccc
v_cndmask_b32 v48, v40, v42, vcc
v_cndmask_b32 v49, v44, v46, vcc
v_mov_b32 v50, s{sTAG}
v_mov_b32 v51, 0
s_mov_b32 exec_lo, 0x000f000f
s_mov_b32 exec_hi, 0x000f000f''')
        self.lstores([f'buffer_store_dwordx4 v[48:51], v13, {WS}, s{T4} offen'])
        p.I('s_mov_b64 exec, -1')
        loop, done = p.newlabel('s3'), p.newlabel('s3d')
        p.L(loop)
        p.vm(f'buffer_load_dwordx4 v[40:43], v14, {WS}, s{T3} offen sc1')
        p.vm(f'buffer_load_dwordx4 v[44:47], v14, {WS}, s{T3} offen offset:32 sc1')
        p.wait_vm_all()
        p.I(f'''v_cmp_ne_u32 vcc, s{sTAG}, v42
v_cmp_ne_u32 s[{sM}:{sM + 1}], s{sTAG}, v46
s_or_b64 vcc, vcc, s[{sM}:{sM + 1}]
s_cmp_eq_u64 vcc, 0
s_cbranch_scc1 {done}''')
        self.spin_tail(loop, done)
        self.stamp('st3_in')
        for c in ('quad_perm:[1,0,3,2]', 'quad_perm:[2,3,0,1]', 'row_half_mirror'):
            self.dpp_add((40, 41, 44, 45), c)
        self.rstd(40, 41, 768)
        self.rstd(44, 45, 768)
        for dst, src in ((48, 41), (50, 45), (52, 40), (54, 44)):
            p.I(f'v_mov_b32_dpp v{dst}, v{src} row_newbcast:0 row_mask:0xf bank_mask:0xf\n'
                f'v_mov_b32_dpp v{dst + 1}, v{src} row_newbcast:8 row_mask:0xf bank_mask:0xf')
        for ft in range(6):
            for h in range(2):
                x = pr(ACC + 4 * ft + 2 * h)
                p.I(f'v_pk_fma_f32 {x}, {x}, {pr(48 + 2 * h)}, {pr(52 + 2 * h)}')
        for k in range(12):
            p.I(f'v_cvt_pk_bf16_f32 v{TMP + k}, v{ACC + 2 * k}, v{ACC + 2 * k + 1}')
        for F in range(3):
            p.I(f'v_permlane16_swap_b32 v{TMP + 4 * F}, v{TMP + 4 * F + 2}\nv_permlane16_swap_b32 v{TMP + 4 * F + 1}, v{TMP + 4 * F + 3}')
        p.I(f'''s_mul_i32 s{T5}, s{sJ}, {128 * 3072}
s_add_u32 s{T5}, s{T5}, {Z2F}
s_lshl_b32 s{T0}, s{sRB}, 2
s_add_u32 s{T0}, s{T0}, s{sW}
s_mul_i32 s{T0}, s{T0}, 3072
s_add_u32 s{T0}, s{T0}, s{T5}''')
        for F in range(3):
            p.vm(f'buffer_store_dwordx4 v[{TMP + 4 * F}:{TMP + 4 * F + 3}], v{vL16}, {WS}, s{T0} offen offset:{1024 * F} sc1')
        p.I(f'''s_lshl_b32 s{T6}, s{sJ}, 7
s_add_u32 s{T6}, s{T6}, {F_Z2}
s_lshl_b32 s{T1}, s{sRB}, 2
s_add_u32 s{T0}, s{T6}, s{T1}''')
        self.wave0(T0, T0)
        p.wait_vm_all()
        p.I('s_barrier')
        self.flag(T0, 60, False)
        self.stamp('z2_pub')
        te = self.dma_range(sCA, 64, 120, 40960)
        z1addr = lambda n: 40960 + (84 + n) * 1024 if n < 24 else (n - 24) * 1024 if n < 64 else 40960 + (n - 64) * 1024

        def pre1(ks):
            if ks == 10:
                p.wait(vm=te)
                p.I('s_barrier')
        self.gemm16(20, 6, None, 64, lambda ks, n: z1addr(ks * 6 + n), TMP, Z1, pre=pre1,
                    hook=lambda ks: self.wsp_load(4))
        self.wsp_load(64)
        bs = self.srd(SA, P_BSP, 4096)
        p.I(f'''s_lshl_b32 s{T0}, s{sRB}, 7
s_lshl_b32 s{T1}, s{sW}, 5
s_add_u32 s{T0}, s{T0}, s{T1}
v_lshlrev_b32 v4, 1, v11''')
        self.t_b = p.vm(f'buffer_load_ushort v40, v4, {bs}, s{T0} offen')
        self.gelu(Z1, 24, TMP)
        self.stamp('z1_done')

    def p3a(self):
        p = self.p
        ACC, RING, D, Z1 = 136, 44, 6, 16
        p.I(f"""s_lshl_b32 s{T1}, s{sW}, 5
s_add_u32 s{T0}, s{T6}, s{T1}
s_mul_i32 s{T1}, s{sW}, {32 * 3072}
s_add_u32 s{T6}, s{T5}, s{T1}
v_lshrrev_b32 v4, 4, v{vLANE}
v_mul_u32_u24 v12, 768, v4
v_lshl_add_u32 v12, v11, 4, v12
s_lshl_b32 s{T4}, s{sRB}, 2
s_add_u32 s{T4}, s{T4}, s{sW}
s_mul_i32 s{T4}, s{T4}, 24576
s_add_u32 s{T4}, s{T4}, {UF}
s_mul_i32 s{T1}, s{sJ}, 3072
s_add_u32 s{T3}, s{T4}, s{T1}""")
        self.spoll_n(T0, 8)
        self.stamp('z2_in')
        toks = []

        def issue():
            s = len(toks)
            if s % 8 == 0:
                p.I(f"""s_add_u32 s{T5}, s{sRB}, {s // 8}
s_and_b32 s{T5}, s{T5}, 3
s_mul_i32 s{T5}, s{T5}, {8 * 3072}
s_add_u32 s{T5}, s{T5}, s{T6}""")
            for F in range(3):
                r = RING + 12 * (s % D) + 4 * F
                t = p.vm(f'buffer_load_dwordx4 v[{r}:{r + 3}], v{vL16}, {WS}, s{T5} offen offset:{1024 * F} sc1')
            if s % 8 != 7:
                p.I(f's_add_u32 s{T5}, s{T5}, 3072')
            toks.append(t)
        for _ in range(D - 1):
            issue()
        for s in range(32):
            if len(toks) < 32:
                issue()
            if s == 33 - D:
                self.pretouch([f'buffer_load_dword v41, v12, {WS}, s{T3} offen offset:{256 * m} sc1' for m in range(3)])
                p.I(f's_mul_i32 s{sCA}, s{sJ}, 0x1e000\ns_add_u32 s{sCA}, s{sCA}, {WOUTF}\ns_barrier')
                self.dma_rot(sCA, 0, 3, 102400)
            p.wait(vm=toks[s])
            for F in range(3):
                for tt in range(2):
                    r = RING + 12 * (s % D) + 4 * F
                    acc = vr(ACC + 16 * (2 * F + tt), 16)
                    b = 4 * (2 * s + tt)
                    p.I(f'v_mfma_f32_32x32x16_bf16 {acc}, v[{r}:{r + 3}], a[{b}:{b + 3}], {acc if s else 0}')
        self.stamp('p3a_mm')
        p.I(f'''v_and_b32 v4, 31, v{vLANE}
v_mul_u32_u24 v13, 400, v4
v_lshrrev_b32 v4, 5, v{vLANE}
v_lshl_add_u32 v13, v4, 4, v13
s_mul_i32 s{T0}, s{sW}, 25600
v_add_u32 v13, s{T0}, v13
v_lshrrev_b32 v4, 4, v{vLANE}
v_mul_u32_u24 v14, 96, v4
v_mul_u32_u24 v4, 400, v11
s_mul_i32 s{T0}, s{sW}, 6400
v_add3_u32 v14, v14, v4, s{T0}
v_add_u32 v15, 51200, v14''')
        for F in range(3):
            for tt in range(2):
                for q in range(4):
                    r = ACC + 16 * (2 * F + tt) + 4 * q
                    p.ds(f'ds_write_b128 v13, v[{r}:{r + 3}] offset:{tt * 12800 + F * 128 + q * 32}')
        p.wait_lgkm_all()
        p.I('s_barrier')
        G = 44
        toks = []
        for m in range(6):
            for pp in range(4):
                r = G + 24 * pp + 4 * m
                t = p.ds(f'ds_read_b128 v[{r}:{r + 3}], v{14 + (pp >> 1)} offset:{25600 * (pp & 1) + 16 * m}')
            toks.append(t)
        p.wait(vm=self.t_b)
        p.I('v_lshlrev_b32 v42, 16, v40')
        pr = lambda b: f'v[{b}:{b + 1}]'
        for m in range(6):
            p.wait(ds=toks[m])
            for h in range(2):
                r = G + 4 * m + 2 * h
                p.I(f'v_pk_add_f32 {pr(r)}, {pr(r)}, {pr(r + 24)}\nv_pk_add_f32 {pr(r + 48)}, {pr(r + 48)}, {pr(r + 72)}')
            for h in range(2):
                r = G + 4 * m + 2 * h
                p.I(f'v_pk_add_f32 {pr(r)}, {pr(r)}, v[42:43] op_sel_hi:[1,0]')
            for h in range(2):
                r = G + 4 * m + 2 * h
                p.I(f'v_pk_add_f32 {pr(r)}, {pr(r)}, {pr(r + 48)}')
            for h in range(2):
                r = G + 4 * m + 2 * h
                p.I(f'v_pk_mul_f32 {pr(r)}, {pr(r)}, {pr(Z1 + 4 * m + 2 * h)}')
        for k in range(12):
            p.I(f'v_cvt_pk_bf16_f32 v{140 + k}, v{G + 2 * k}, v{G + 2 * k + 1}')
        t = self.lstores([f'buffer_store_dwordx4 v[{140 + 4 * m}:{143 + 4 * m}], v12, {WS}, s{T3} offen offset:{256 * m}'
                          for m in range(3)])
        p.I(f'''s_lshl_b32 s{T6}, s{sRB}, 7
s_lshl_b32 s{T1}, s{sW}, 5
s_add_u32 s{T6}, s{T6}, s{T1}
s_add_u32 s{T6}, s{T6}, {F_U}
s_lshl_b32 s{T1}, s{sJ}, 2
s_add_u32 s{T0}, s{T6}, s{T1}''')
        p.wait(vm=t)
        self.flag(T0, 60, True)
        self.stamp('u_pub')

    def p3b(self):
        p = self.p
        X1, ACC, GB = 232, 36, 16
        p.I('s_barrier')
        t = self.load_vec(40, 3)
        tb = self.dma_range(sCA, 48, 84, 0)
        p.I(f'v_and_b32 v4, 7, v{vLANE}\nv_lshlrev_b32 v4, 2, v4')
        p.wait(ds=t)
        self.unpack(GB, 40, 10)
        self.vpoll(4, 63, T6)
        self.stamp('u_in')
        bt = []
        for ks in range(24):
            bt.append(p.vm(f'buffer_load_dwordx4 v[{64 + 4 * ks}:{67 + 4 * ks}], v{vL16}, {WS}, s{T4} offen offset:{1024 * (ks & 3)} sc1'))
            if ks & 3 == 3:
                p.I(f's_add_u32 s{T4}, s{T4}, 4096')
            if ks == 11:
                tc = self.dma_range(sCA, 84, 120, 36 * 1024)
        p.I('s_barrier')
        addr = lambda n: 102400 + n * 1024 if n < 48 else (n - 48) * 1024

        def pre(ks):
            if ks == 16:
                p.wait(vm=tc)
                p.I('s_barrier')
        self.gemm16(24, 5, bt, 64, lambda ks, n: addr(ks * 5 + n), 160, ACC, pre=pre)
        os_ = self.srd(SA, P_OUT, 2048 * 1280)
        self.stamp('p3b_mm')
        for k in range(10):
            p.I(f'v_pk_fma_f32 v[{X1 + 2 * k}:{X1 + 2 * k + 1}], v[{GB + 2 * k}:{GB + 2 * k + 1}], v[{ACC + 2 * k}:{ACC + 2 * k + 1}], v[{X1 + 2 * k}:{X1 + 2 * k + 1}]')
        for k in range(10):
            p.I(f'v_cvt_pk_bf16_f32 v{64 + k}, v{X1 + 2 * k}, v{X1 + 2 * k + 1}')
        p.vm(f'buffer_store_dwordx4 v[64:67], v7, {os_}, s{sT9} offen')
        p.vm(f'buffer_store_dwordx4 v[68:71], v7, {os_}, s{sT9} offen offset:16')
        p.vm(f'buffer_store_dwordx2 v[72:73], v8, {os_}, s{sT9} offen')

    def build(self):
        p = self.p
        p.L(KNAME)
        stages = [('entry', self.entry), ('roles', self.roles), ('ln', self.ln_stats),
                  ('h', self.make_h), ('p1main', self.p1_main), ('kv', self.p1_kv), ('q', self.p1_q),
                  ('repack1', self.repack_mid), ('o', self.p1_o), ('p2a', self.p2a), ('p2b', self.p2b),
                  ('p3a', self.p3a), ('p3b', self.p3b)]
        for name, fn in stages:
            p.C(f'======== {name}')
            fn()
            if self.o.stop == name:
                break
        p.L('L_fin')
        if self.o.stop is None:
            p.I(f's_or_b32 s{T0}, s{sROLE}, s{sW}\ns_cmp_eq_u32 s{T0}, 0\ns_cselect_b32 s{T0}, {WS_EPOCH}, {OOB}')
            self.flag(T0, 60, False)
        if self.o.stamps:
            self.stamp('end')
            p.I(f'''s_lshl_b32 s{T0}, s{sROLE}, 2
s_add_u32 s{T0}, s{T0}, s{sW}
s_lshl_b32 s{T0}, s{T0}, 8
s_add_u32 s{T0}, s{T0}, {STAMPS}
v_lshlrev_b32 v4, 2, v{vLANE}''')
            p.vm(f'buffer_store_dword v{vSTAMP}, v4, {WS}, s{T0} offen')
            if self.o.dbgrole is not None:
                d = self.srd(SA, P_DBG, 256)
                p.I(f'''v_readlane_b32 s{T1}, v{vSTAMP}, 0
v_subrev_u32 v5, s{T1}, v{vSTAMP}
v_lshlrev_b32 v4, 1, v{vLANE}
s_lshl_b32 s{T0}, s{sROLE}, 2
s_add_u32 s{T0}, s{T0}, s{sW}
s_cmp_eq_u32 s{T0}, {4 * self.o.dbgrole}
s_cselect_b32 s{T0}, 0, {OOB}''')
                p.vm(f'buffer_store_short v5, v4, {d}, s{T0} offen')
        if self.o.pad:
            p.I(f'v_readlane_b32 s{T1}, v{vSTAMP}, 0')
            p.L('L_pad')
            p.sm(f's_memrealtime s[{sM}:{sM + 1}]')
            p.wait_lgkm_all()
            p.I(f's_sub_u32 s{T0}, s{sM}, s{T1}\ns_cmp_lt_u32 s{T0}, {self.o.pad}\ns_cbranch_scc1 L_pad')
        p.I('s_endpgm')
        for lg, lb, texts in self.ool:
            p.L(lg)
            for t in texts:
                p.vm(t, count=False)
            p.I(f's_branch {lb}')
        p.L('L_end')
        p.I('s_endpgm')
        head = open('adaLN_cond__linear_kernel_hedgehog__mixer_gmlp__prompt.s.ref').read().split('\n')
        hdr = [l for l in head if l.startswith(';') and '@launch' not in l and 'Override' not in l and 'grid=ceil' not in l]
        txt = '\n'.join(hdr) + f'\n; @launch grid=(256,1,1) block=(256,1,1) lds={LDS_BYTES}\n'
        txt += f'.amdgcn_target "amdgcn-amd-amdhsa--gfx950"\n.text\n.globl {KNAME}\n.p2align 8\n.type {KNAME},@function\n'
        txt += p.render()
        txt += f'''.section .rodata,"a"
.p2align 6
.amdhsa_kernel {KNAME}
  .amdhsa_next_free_vgpr 512
  .amdhsa_next_free_sgpr 102
  .amdhsa_accum_offset 256
  .amdhsa_group_segment_fixed_size 0
  .amdhsa_kernarg_size 112
  .amdhsa_user_sgpr_count 2
  .amdhsa_user_sgpr_kernarg_segment_ptr 1
  .amdhsa_system_sgpr_workgroup_id_x 1
  .amdhsa_float_denorm_mode_32 3
.end_amdhsa_kernel
'''
        return txt


if __name__ == '__main__':
    import argparse
    ap = argparse.ArgumentParser()
    ap.add_argument('-o', default='mk.s')
    ap.add_argument('--stamps', action='store_true')
    ap.add_argument('--nolocal', action='store_true')
    ap.add_argument('--stop')
    ap.add_argument('--pad', type=int, default=0)
    ap.add_argument('--dbgrole', type=int)
    ap.add_argument('--nont', action='store_true')
    a = ap.parse_args()
    o = Opt()
    o.stamps, o.local, o.stop = a.stamps, not a.nolocal, a.stop
    o.nt = '' if a.nont else ' nt'
    o.dbgrole = a.dbgrole
    o.pad = a.pad
    g = Gen(o)
    s = g.build()
    open(a.o, 'w').write(s)
    open(a.o + '.stamps', 'w').write('\n'.join(g.stamp_names))
    for w in g.p.warn: print('WARN', w)
    print('instructions', sum(1 for k, _ in g.p.items if k == 'i'), 'nops', g.p.nnop)
```

```python
import sys
sys.path.insert(0, 'gen')
from asmlib import *
from layout import *

KNAME = 'adaLN_cond__linear_kernel_hedgehog__mixer_gmlp__prompt_kernel'


class Opt:
    local = True
    stamps = False
    nt = ' nt'
    dbgrole = None
    pad = 0
    wsbase = 0
    exp = ''
    stop = None


S_WS = 4
SA, SB = 8, 12
P_X, P_WQKV, P_WPHI, P_WO, P_WIN, P_WSP, P_BSP = 16, 18, 20, 22, 26, 28, 30
P_WOUT, P_C, P_WMOD, P_OUT, P_DBG, P_WS = 32, 34, 36, 38, 40, 42
sTAG, sROLE, sW, sX, sI, sR, sC, sRB, sJ, sMODE = 44, 46, 47, 48, 49, 50, 51, 52, 53, 54
T0, T1, T2, T3, T4, T5, T6, T7, T8 = 55, 56, 57, 58, 59, 60, 61, 62, 63
PB = 64
sK2, sT9, sSPIN, sT10 = 96, 97, 100, 101
sCA = 24
sM = 98

WS = f's[{S_WS}:{S_WS + 3}]'
vL16, vLANE, vSTAMP = 1, 2, 3

LOG2E = 1.4426950408889634


def f2u(x):
    import struct
    return struct.unpack('<I', struct.pack('<f', x))[0]


class Gen:
    def __init__(self, opt):
        self.o = opt
        self.p = Prog()
        self.ool = []
        self.nstamp = 0
        self.stamp_names = []

    def srd(self, q, ptr, nbytes):
        self.p.I(f's_mov_b32 s{q}, s{ptr}\ns_mov_b32 s{q + 1}, s{ptr + 1}\ns_mov_b32 s{q + 2}, {nbytes}\n'
                 f's_mov_b32 s{q + 3}, s{sK2}')
        return f's[{q}:{q + 3}]'

    def stamp(self, name):
        if not self.o.stamps:
            return
        p = self.p
        p.sm(f's_memrealtime s[{sM}:{sM + 1}]')
        p.wait_lgkm_all()
        p.I(f'v_writelane_b32 v{vSTAMP}, s{sM}, {self.nstamp}')
        if name in ('role_iss', 'end'):
            p.sm(f's_memtime s[{sM}:{sM + 1}]')
            p.wait_lgkm_all()
            p.I(f'v_writelane_b32 v{vSTAMP}, s{sM}, {62 if name == "role_iss" else 63}')
        self.stamp_names.append(name)
        self.nstamp += 1

    def spin_tail(self, loop, done):
        p = self.p
        p.I(f's_sub_u32 s{sSPIN}, s{sSPIN}, 1\ns_cbranch_scc0 {loop}\ns_mov_b32 s{sSPIN}, 0')
        p.L(done)

    def spoll(self, soff, loads, pairs, singles=()):
        p = self.p
        loop, done = p.newlabel('sp'), p.newlabel('spd')
        p.I(f's_add_u32 s{sM}, s{P_WS}, s{soff}\ns_addc_u32 s{sM + 1}, s{P_WS + 1}, 0')
        p.L(loop)
        for nd, dst, imm in loads:
            p.sm(f's_load_dwordx{nd} s[{dst}:{dst + nd - 1}], s[{sM}:{sM + 1}], {imm} glc')
        p.wait_lgkm_all()
        first = pairs[0]
        p.I(f's_xor_b64 s[{first}:{first + 1}], s[{first}:{first + 1}], s[{sTAG}:{sTAG + 1}]')
        for q in pairs[1:]:
            p.I(f's_xor_b64 s[{q}:{q + 1}], s[{q}:{q + 1}], s[{sTAG}:{sTAG + 1}]\n'
                f's_or_b64 s[{first}:{first + 1}], s[{first}:{first + 1}], s[{q}:{q + 1}]')
        for q in singles:
            p.I(f's_xor_b32 s{q}, s{q}, s{sTAG}\ns_or_b32 s{first}, s{first}, s{q}')
        p.I(f's_cmp_eq_u64 s[{first}:{first + 1}], 0\ns_cbranch_scc1 {done}')
        self.spin_tail(loop, done)

    def spoll_n(self, soff, n):
        loads, got = [], 0
        while got < n:
            nd = 16 if n - got > 8 else 8 if n - got > 4 else 4
            loads.append((nd, PB + got, got * 4))
            got += nd
        self.spoll(soff, loads, [PB + 2 * k for k in range(n // 2)])

    def vpoll(self, vaddr, vtmp, soff):
        p = self.p
        loop, done = p.newlabel('vp'), p.newlabel('vpd')
        p.L(loop)
        p.vm(f'buffer_load_dword v{vtmp}, v{vaddr}, {WS}, s{soff} offen sc1')
        p.wait_vm_all()
        p.I(f'v_cmp_ne_u32 vcc, s{sTAG}, v{vtmp}\ns_cmp_eq_u64 vcc, 0\ns_cbranch_scc1 {done}')
        self.spin_tail(loop, done)

    def lstores(self, texts):
        p = self.p
        if not self.o.local:
            return [p.vm(t + ' sc1') for t in texts][-1]
        lg, lb = p.newlabel('glob'), p.newlabel('back')
        p.I(f's_cmp_eq_u32 s{sMODE}, 0\ns_cbranch_scc1 {lg}')
        tok = [p.vm(t) for t in texts][-1]
        p.L(lb)
        self.ool.append((lg, lb, [t + ' sc1' for t in texts]))
        return tok

    def flag(self, soff, vtmp, local):
        p = self.p
        p.I(f'v_mov_b32 v{vtmp}, s{sTAG}\nv_mov_b32 v{vtmp + 1}, 0\ns_mov_b64 exec, 1')
        t = f'buffer_store_dword v{vtmp}, v{vtmp + 1}, {WS}, s{soff} offen'
        if local:
            self.lstores([t])
        else:
            p.vm(t + ' sc1')
        p.I('s_mov_b64 exec, -1')

    def wave0(self, dst, src):
        self.p.I(f's_cmp_eq_u32 s{sW}, 0\ns_cselect_b32 s{dst}, s{src}, {OOB}')

    def dma(self, soff, lds, n, extra=' sc1'):
        p = self.p
        p.I(f's_mov_b32 m0, s{lds}')
        tok = None
        for k in range(n):
            tok = p.vm(f'buffer_load_dwordx4 v{vL16}, {WS}, s{soff} offen offset:{1024 * k}{extra} lds')
        return tok

    def xreduce_sq(self, s, q, t):
        self.p.I(f'''v_permlane16_swap_b32 v{s}, v{q}
v_add_f32 v{s}, v{s}, v{q}
v_mov_b32 v{q}, v{s}
v_permlane32_swap_b32 v{s}, v{q}
v_add_f32 v{s}, v{s}, v{q}
v_mov_b32 v{t}, v{s}
v_permlane16_swap_b32 v{s}, v{t}''')

    def silu_pack(self, src, lo, hi, t):
        self.p.I(f'''v_lshlrev_b32 v{src}, 16, v{src}
v_mul_f32 v{t}, {hex(f2u(-LOG2E))}, v{src}
v_exp_f32 v{t}, v{t}
v_add_f32 v{t}, 1.0, v{t}
v_rcp_f32 v{t}, v{t}
v_mul_f32 v{t}, v{src}, v{t}
v_cvt_pk_bf16_f32 v{lo}, v{t}, 0
v_lshlrev_b32 v{hi}, 16, v{lo}''')

    def merge8(self, a):
        p = self.p
        for b in (a, a + 4):
            p.I(f'v_permlane32_swap_b32 v{b}, v{b + 2}\nv_permlane32_swap_b32 v{b + 1}, v{b + 3}')
        for b in (a, a + 4):
            p.I(f'v_add_f32 v{b}, v{b}, v{b + 2}\nv_add_f32 v{b + 1}, v{b + 1}, v{b + 3}')
        for b in (a, a + 4):
            p.I(f'v_permlane16_swap_b32 v{b}, v{b + 1}')
        for b in (a, a + 4):
            p.I(f'v_add_f32 v{b}, v{b}, v{b + 1}')

    def dpp_add(self, regs, ctrl):
        for r in regs:
            self.p.I(f'v_add_f32_dpp v{r}, v{r}, v{r} {ctrl} row_mask:0xf bank_mask:0xf')

    def unpack(self, dst, src, n):
        for k in range(n):
            self.p.I(f'v_lshlrev_b32 v{dst + 2 * k}, 16, v{src + k}\nv_and_b32 v{dst + 2 * k + 1}, 0xffff0000, v{src + k}')

    def round_add_round(self, a, sdelta, out):
        p = self.p
        p.I(f'v_cvt_pk_bf16_f32 v{out}, v{a}, v{a + 1}\nv_cvt_pk_bf16_f32 v{out + 1}, v{a + 2}, v{a + 3}')
        self.unpack(a, out, 2)
        for k in range(4):
            p.I(f'v_add_f32 v{a + k}, s{sdelta}, v{a + k}')
        p.I(f'v_cvt_pk_bf16_f32 v{out}, v{a}, v{a + 1}\nv_cvt_pk_bf16_f32 v{out + 1}, v{a + 2}, v{a + 3}')

    def stop_here(self, name):
        if self.o.stop == name:
            self.p.I('s_branch L_fin')
            return True
        return False

    def entry(self):
        p = self.p
        nt = self.o.nt
        p.I('s_cmp_ge_u32 s2, 256\ns_cbranch_scc1 L_end')
        if self.o.stamps:
            p.sm('s_memrealtime s[94:95]')
        p.sm(f's_load_dwordx4 s[{P_DBG}:{P_DBG + 3}], s[0:1], 96')
        p.sm(f's_load_dwordx8 s[{P_WOUT}:{P_WOUT + 7}], s[0:1], 64')
        p.sm(f's_load_dwordx16 s[{P_X}:{P_X + 15}], s[0:1], 0')
        p.I(f"""s_and_b32 s{sX}, s2, 7
s_lshr_b32 s{sI}, s2, 3
s_lshl_b32 s3, s{sX}, 5
s_add_u32 s{sROLE}, s3, s{sI}
v_and_b32 v{vLANE}, 63, v0
v_lshrrev_b32 v4, 6, v0
v_lshlrev_b32 v{vL16}, 4, v{vLANE}
v_readfirstlane_b32 s{sW}, v4
s_mov_b32 s{sK2}, 0x20000
s_lshr_b32 s{sR}, s{sROLE}, 4
s_and_b32 s{sC}, s{sROLE}, 15
s_lshr_b32 s{sRB}, s{sROLE}, 3
s_and_b32 s{sJ}, s{sROLE}, 7
s_mov_b32 s{sSPIN}, 400000
v_and_b32 v8, 7, v{vLANE}
v_lshrrev_b32 v9, 3, v0
v_mul_u32_u24 v10, 1280, v8
v_lshl_add_u32 v10, v9, 4, v10
s_cmp_lt_u32 s{sI}, 10
s_cbranch_scc0 L_iw1""")
        p.cond = True
        p.I(f"""s_mul_i32 s{sT9}, s{sX}, 10
s_add_u32 s{sT9}, s{sT9}, s{sI}
s_and_b32 s{T0}, s{sT9}, 3
s_mul_i32 s{T1}, s{T0}, {160 * 7680}
s_mul_i32 s{T2}, s{T0}, 320
s_lshr_b32 s{T0}, s{sT9}, 2
s_lshl_b32 s{T0}, s{T0}, 7
s_add_u32 s{T1}, s{T1}, s{T0}
v_mul_u32_u24 v5, 7680, v9
v_lshl_add_u32 v5, v8, 4, v5
v_lshlrev_b32 v6, 1, v9""")
        p.wait_lgkm_all()
        a = self.srd(SA, P_WMOD, 640 * 7680)
        for k in range(5):
            p.vm(f'buffer_load_dwordx4 v[{136 + 4 * k}:{139 + 4 * k}], v5, {a}, s{T1} offen{nt}')
            if k < 4:
                p.I(f's_add_u32 s{T1}, s{T1}, {32 * 7680}')
        b = self.srd(SB, P_C, 1280)
        for k in range(5):
            self.t_g1 = p.vm(f'buffer_load_ushort v{156 + k}, v6, {b}, s{T2} offen offset:{64 * k}')
        p.I('s_branch L_icommon')
        p.L('L_iw1')
        p.I(f"""s_mul_i32 s{sT9}, s{sX}, 20
s_add_u32 s{sT9}, s{sT9}, s{sI}
s_sub_u32 s{sT9}, s{sT9}, 12
v_min_u32 v12, 59, v{vLANE}
v_mul_u32_u24 v13, 13, v12
v_lshrrev_b32 v13, 8, v13
v_mul_u32_u24 v14, 960, v13
v_lshl_add_u32 v14, v12, 4, v14
v_add_u32 v14, 1280, v14
v_subrev_u32 v15, 3840, v14
v_cmp_eq_u32 vcc, 2, v13
v_cndmask_b32 v14, v14, v15, vcc
s_lshr_b32 s{T0}, s{sT9}, 2
s_lshl_b32 s{T0}, s{T0}, 4
s_add_u32 s{T0}, s{T0}, s{sW}
s_mul_i32 s{T0}, s{T0}, 3840
s_and_b32 s{T1}, s{sT9}, 3
s_mul_i32 s{T1}, s{T1}, 320
s_add_u32 s{T0}, s{T0}, s{T1}
s_cmp_ge_u32 s{sI}, 12
s_cselect_b32 s{T0}, s{T0}, {OOB}
s_cselect_b32 s{sT10}, 0, {OOB}
s_lshl_b32 s{T1}, s{sW}, 10
s_add_u32 s{T1}, s{T1}, {L_STG_W1}""")
        p.wait_lgkm_all()
        wq = self.srd(SA, P_WQKV, 640 * 3840)
        for k in range(4):
            p.I(f's_mov_b32 m0, s{T1}')
            p.vm(f'buffer_load_dwordx4 v14, {wq}, s{T0} offen{nt} lds')
            if k < 3:
                p.I(f's_add_u32 s{T0}, s{T0}, {4 * 3840}\ns_add_u32 s{T1}, s{T1}, 4096')
        wo = self.srd(SB, P_WO, 640 * 1280)
        p.I(f"""v_and_b32 v11, 15, v{vLANE}
v_min_u32 v12, 9, v11
v_lshlrev_b32 v12, 4, v12
v_lshrrev_b32 v13, 4, v0
v_and_b32 v15, 7, v13
v_lshrrev_b32 v13, 3, v13
s_lshr_b32 s{T0}, s{sT9}, 3
s_lshl_b32 s{T0}, s{T0}, 2
s_and_b32 s{T2}, s{sT9}, 7
s_mul_i32 s{T2}, s{T2}, 160
s_add_u32 s{T2}, s{T2}, s{sT10}
s_lshl_b32 s{T1}, s{sW}, 10
s_add_u32 s{T1}, s{T1}, {L_STG_WO}""")
        for k in range(2):
            p.I(f"""v_add_u32 v31, s{T0}, v13
v_mul_u32_u24 v32, 205, v31
v_lshrrev_b32 v32, 10, v32
v_mul_u32_u24 v33, 5, v32
v_sub_u32 v33, v31, v33
v_lshl_add_u32 v34, v33, 3, v15
v_add_u32 v35, 4, v34
v_cmp_lt_u32 vcc, 1, v33
v_cndmask_b32 v34, v34, v35, vcc
v_add_u32 v35, 16, v15
v_add_u32 v36, 32, v15
v_cmp_lt_u32 vcc, 3, v15
v_cndmask_b32 v35, v35, v36, vcc
v_cmp_eq_u32 vcc, 4, v33
v_cndmask_b32 v34, v34, v35, vcc
v_mul_u32_u24 v32, 40, v32
v_add_u32 v34, v34, v32
v_mul_u32_u24 v34, 1280, v34
v_add_u32 v34, v34, v12
s_mov_b32 m0, s{T1}""")
            self.t_raw = p.vm(f'buffer_load_dwordx4 v34, {wo}, s{T2} offen{nt} lds')
            if k == 0:
                p.I(f's_add_u32 s{T0}, s{T0}, 2\ns_add_u32 s{T1}, s{T1}, 4096')
        p.cond = False
        p.L('L_icommon')
        p.wait_lgkm_all()
        if self.o.stamps:
            p.I(f'v_mov_b32 v{vSTAMP}, 0\nv_writelane_b32 v{vSTAMP}, s94, 0')
            self.stamp_names.append('entry')
            self.nstamp = 1
            self.stamp('role_iss')
        if self.o.wsbase:
            p.I(f's_add_u32 s{P_WS}, s{P_WS}, {self.o.wsbase}\ns_addc_u32 s{P_WS + 1}, s{P_WS + 1}, 0')
        p.sm(f's_load_dword s{sTAG}, s[{P_WS}:{P_WS + 1}], {WS_EPOCH}')
        xs = self.srd(SA, P_X, 2048 * 1280)
        p.I(f"""s_mul_i32 s{T0}, s{sROLE}, {8 * 1280}
s_cmp_lt_u32 s{sW}, 2
s_cselect_b32 s{T1}, s{T0}, {OOB}""")
        for k in range(3):
            self.t_x = p.vm(f'buffer_load_dwordx4 v[{48 + 4 * k}:{51 + 4 * k}], v10, {xs}, s{T0 if k < 2 else T1} offen offset:{512 * k}')
        p.I(f"""s_getpc_b64 s[{sM}:{sM + 1}]
s_lshl_b32 s{T0}, s{sI}, 2
s_add_u32 s{T0}, s{T0}, s{sW}
s_lshl_b32 s{T0}, s{T0}, 9
v_and_b32 v7, 3, v{vLANE}
v_lshlrev_b32 v7, 7, v7
v_add_u32 v7, s{T0}, v7
v_min_u32 v7, (L_end-L_pc0), v7""")
        p.L('L_pc0')
        p.vm(f'global_load_dword v63, v7, s[{sM}:{sM + 1}]')
        self.srd(S_WS, P_WS, WS_USED)
        wp = self.srd(SB, P_WPHI, 32 * 800)
        p.I(f"""v_lshlrev_b32 v31, 4, v0
v_min_u32 v31, 1584, v31
s_mul_i32 s{T0}, s{sC}, 1600
s_lshl_b32 s{T1}, s{sW}, 10
s_cmp_lt_u32 s{sW}, 2
s_cselect_b32 s{T1}, s{T1}, {(L_DUMMY - L_WPH) & 0xffffffff}
s_add_u32 s{T1}, s{T1}, {L_WPH}
s_mov_b32 m0, s{T1}""")
        p.vm(f'buffer_load_dwordx4 v31, {wp}, s{T0} offen lds')
        p.I(f"""v_mov_b32 v46, 0
v_mov_b32 v47, 0
v_lshlrev_b32 v45, 3, v0
v_add_u32 v45, {L_ZERO}, v45""")
        p.ds('ds_write_b64 v45, v[46:47]')
        p.wait_lgkm_all()
        p.I(f"""s_mul_i32 s{sTAG}, s{sTAG}, 0x2c1b3c6d
s_add_u32 s{sTAG}, s{sTAG}, 0x297a2d39
s_mov_b32 s{sTAG + 1}, s{sTAG}
s_mov_b32 s{sMODE}, 0""")
        if self.o.local:
            p.I(f"""s_getreg_b32 s{T0}, hwreg(HW_REG_XCC_ID, 0, 4)
s_lshl_b32 s{T1}, s{sROLE}, 2
s_add_u32 s{T1}, s{T1}, {F_HELLO}
s_add_u32 s{sCA}, s{T0}, s{sTAG}
s_add_u32 s{sCA}, s{sCA}, 1""")
            self.wave0(T1, T1)
            p.I(f'v_mov_b32 v45, s{sCA}\ns_mov_b64 exec, 1')
            p.vm(f'buffer_store_dword v45, v46, {WS}, s{T1} offen sc1')
            p.I('s_mov_b64 exec, -1')
        self.stamp('issued')

    def gemv(self, n, data, cval, scr):
        p = self.p
        for k in range(n):
            self.silu_pack(cval + k, 112 + 2 * k, 113 + 2 * k, 111)
        for c in range(8):
            p.I(f'v_mov_b32 v{124 + c}, 0')
        for k in range(n):
            for d in range(4):
                p.I(f'v_dot2c_f32_bf16 v{124 + 2 * d}, v{data + 4 * k + d}, v{112 + 2 * k}\n'
                    f'v_dot2c_f32_bf16 v{125 + 2 * d}, v{data + 4 * k + d}, v{113 + 2 * k}')
        self.merge8(124)
        self.dpp_add((124, 128), 'row_ror:8')
        p.I(f"""v_and_b32 v111, 7, v{vLANE}
v_lshrrev_b32 v112, 4, v{vLANE}
v_lshl_add_u32 v111, v111, 3, v112
v_lshlrev_b32 v111, 2, v111
s_lshl_b32 s{T0}, s{sW}, 8
s_add_u32 s{T0}, s{T0}, {scr}
v_add_u32 v111, s{T0}, v111""")
        p.ds('ds_write_b32 v111, v124')
        p.ds('ds_write_b32 v111, v128 offset:16')
        p.I(f'v_min_u32 v111, 21, v{vLANE}\nv_mul_u32_u24 v112, 12, v111\nv_add_u32 v112, {scr}, v112')

    def gemv_pub(self, soff):
        p = self.p
        for w in range(4):
            p.ds(f'ds_read2_b32 v[{114 + 4 * w}:{115 + 4 * w}], v112 offset0:{64 * w} offset1:{64 * w + 1}')
            t = p.ds(f'ds_read_b32 v{116 + 4 * w}, v112 offset:{256 * w + 8}')
        self.wave0(soff, soff)
        p.I(f'v_lshlrev_b32 v111, 4, v111\nv_mov_b32 v135, s{sTAG}')
        p.wait(ds=t, force=True)
        for d in range(3):
            p.I(f'v_add_f32 v{114 + d}, v{114 + d}, v{118 + d}\nv_add_f32 v{122 + d}, v{122 + d}, v{126 + d}')
        for d in range(3):
            p.I(f'v_add_f32 v{132 + d}, v{114 + d}, v{122 + d}')
        p.I('s_mov_b32 exec_lo, 0x3fffff\ns_mov_b32 exec_hi, 0')
        p.vm(f'buffer_store_dwordx4 v[132:135], v111, {WS}, s{soff} offen sc1')
        p.I('s_mov_b64 exec, -1')

    def trbase16(self, dst, rowbytes, t):
        sh = rowbytes.bit_length() - 1
        self.p.I(f"""v_lshrrev_b32 v{dst}, 4, v{vLANE}
v_bfe_u32 v{t}, v{vLANE}, 2, 2
v_lshl_add_u32 v{dst}, v{dst}, 3, v{t}
v_lshlrev_b32 v{dst}, {sh}, v{dst}
v_and_b32 v{t}, 3, v{vLANE}""")

    def repack5_addr(self, stg):
        p = self.p
        self.trbase16(31, 256, 32)
        p.I(f"""s_lshl_b32 s{T0}, s{sW}, 3
s_add_u32 s{T0}, s{T0}, {stg}
v_lshl_add_u32 v33, v32, 5, v31
v_add_u32 v33, s{T0}, v33
v_lshl_add_u32 v34, v32, 3, v31
v_add_u32 v34, {stg + 128}, v34""")

    def repack5(self, sdst, fr):
        p = self.p
        p.ds(f'ds_read_b64_tr_b16 v[{fr}:{fr + 1}], v33')
        t1 = p.ds(f'ds_read_b64_tr_b16 v[{fr + 2}:{fr + 3}], v33 offset:1024')
        p.ds(f'ds_read_b64_tr_b16 v[{fr + 4}:{fr + 5}], v34')
        t2 = p.ds(f'ds_read_b64_tr_b16 v[{fr + 6}:{fr + 7}], v34 offset:1024')
        p.I(f"""s_lshl_b32 s{T1}, s{sW}, 10
s_add_u32 s{T1}, s{T1}, s{sdst}
s_add_u32 s{T0}, s{sdst}, 4096""")
        self.wave0(T0, T0)
        p.wait(ds=t2, force=True)
        p.vm(f'buffer_store_dwordx4 v[{fr}:{fr + 3}], v{vL16}, {WS}, s{T1} offen sc1')
        return p.vm(f'buffer_store_dwordx4 v[{fr + 4}:{fr + 7}], v{vL16}, {WS}, s{T0} offen sc1')

    def flag_ks(self, base, nvalid):
        self.p.I(f"""s_lshl_b32 s{T0}, s{sJ}, 7
s_lshl_b32 s{T1}, s{sRB}, 2
s_add_u32 s{T0}, s{T0}, s{T1}
s_add_u32 s{T0}, s{T0}, {base}
s_cmp_lt_u32 s{sRB}, {nvalid}
s_cselect_b32 s{T0}, s{T0}, {OOB}""")
        self.wave0(T0, T0)

    def roles(self):
        p = self.p
        p.I(f"""v_bfe_u32 v41, v{vLANE}, 4, 1
v_bfe_u32 v42, v{vLANE}, 1, 1
v_lshl_add_u32 v41, v41, 1, v42
v_lshlrev_b32 v41, 2, v41
v_and_b32 v42, 1, v{vLANE}
v_bfe_u32 v43, v{vLANE}, 2, 2
v_lshrrev_b32 v44, 5, v{vLANE}
s_cmp_lt_u32 s{sI}, 10
s_cbranch_scc0 L_rw1""")
        p.cond = True
        p.wait(vm=self.t_g1)
        self.gemv(5, 136, 156, L_SCR_G1)
        p.I(f's_mul_i32 s{T2}, s{sT9}, 384\ns_add_u32 s{T2}, s{T2}, {MODG}')
        p.wait_lgkm_all()
        p.I('s_barrier')
        self.gemv_pub(T2)
        p.I(f's_mov_b32 s{T6}, {OOB}\ns_mov_b32 s{T7}, {OOB}\ns_branch L_rcommon')
        p.L('L_rw1')
        p.I(f"""v_lshl_add_u32 v35, v44, 3, v43
v_lshlrev_b32 v35, 10, v35
v_mul_u32_u24 v36, 40, v42
s_mul_i32 s{T0}, s{sW}, 80
s_add_u32 s{T0}, s{T0}, {L_STG_W1}
v_add3_u32 v35, v35, v36, s{T0}""")
        for T in range(4):
            p.I(f"""v_add_u32 v36, {16 * T}, v41
v_mul_u32_u24 v37, 13, v36
v_lshrrev_b32 v37, 8, v37
v_mul_u32_u24 v37, 280, v37
v_lshl_add_u32 v37, v36, 1, v37
v_add_u32 v{16 + T}, v37, v35""")
        self.repack5_addr(L_STG_WO)
        p.I(f"""s_and_b32 s{T0}, s{sT9}, 3
s_lshl_b32 s{T6}, s{T0}, 8
s_lshl_b32 s{T0}, s{T0}, 2
s_add_u32 s{T0}, s{T0}, s{sW}
s_lshr_b32 s{T1}, s{sT9}, 2
s_mul_i32 s{T2}, s{T0}, 0x1e000
s_mul_i32 s{T3}, s{T1}, 3072
s_add_u32 s{T2}, s{T2}, s{T3}
s_add_u32 s{T2}, s{T2}, {W1M}
s_add_u32 s{T2}, s{T2}, s{sT10}
s_mul_i32 s{T3}, s{T0}, 0xa000
s_lshl_b32 s{T4}, s{T1}, 10
s_add_u32 s{T3}, s{T3}, s{T4}
s_add_u32 s{T3}, s{T3}, {W1T}
s_add_u32 s{T3}, s{T3}, s{sT10}
s_lshl_b32 s{T1}, s{T1}, 2
s_add_u32 s{T6}, s{T6}, s{T1}
s_add_u32 s{T6}, s{T6}, {F_W1}
s_add_u32 s{T6}, s{T6}, s{sT10}
s_and_b32 s{T0}, s{sT9}, 7
s_lshr_b32 s{T1}, s{sT9}, 3
s_mul_i32 s{T4}, s{T0}, 0x19000
s_mul_i32 s{T5}, s{T1}, 5120
s_add_u32 s{T4}, s{T4}, s{T5}
s_add_u32 s{T4}, s{T4}, {WOF}
s_add_u32 s{T4}, s{T4}, s{sT10}
s_lshl_b32 s{T7}, s{T0}, 7
s_lshl_b32 s{T1}, s{T1}, 2
s_add_u32 s{T7}, s{T7}, s{T1}
s_add_u32 s{T7}, s{T7}, {F_WO}
s_add_u32 s{T7}, s{T7}, s{sT10}""")
        p.wait(vm=self.t_raw)
        p.I('s_barrier')
        for T in range(4):
            p.ds(f'ds_read_b64_tr_b16 v[{180 + 4 * T}:{181 + 4 * T}], v{16 + T}')
            t = p.ds(f'ds_read_b64_tr_b16 v[{182 + 4 * T}:{183 + 4 * T}], v{16 + T} offset:4096')
        p.wait(ds=t, force=True)
        for T in range(3):
            p.vm(f'buffer_store_dwordx4 v[{180 + 4 * T}:{183 + 4 * T}], v{vL16}, {WS}, s{T2} offen offset:{1024 * T} sc1')
        p.vm(f'buffer_store_dwordx4 v[192:195], v{vL16}, {WS}, s{T3} offen sc1')
        self.t_rp = self.repack5(T4, 196)
        p.cond = False
        p.L('L_rcommon')
        self.stamp('role_done')
        ws_ = self.srd(SA, P_WSP, 2048 * 4096)
        p.I(f"""v_and_b32 v31, 31, v{vLANE}
v_xor_b32 v31, v31, v44
v_lshlrev_b32 v31, 4, v31
v_lshl_add_u32 v31, v44, 12, v31
s_lshl_b32 s{T0}, s{sRB}, 18
s_lshl_b32 s{T1}, s{sJ}, 9
s_add_u32 s{T0}, s{T0}, s{T1}
s_lshl_b32 s{T1}, s{sW}, 16
s_add_u32 s{T0}, s{T0}, s{T1}
s_lshl_b32 s{T1}, s{sW}, 13
s_add_u32 s{T1}, s{T1}, {L_STG_WS}""")
        if 'nowsp' in self.o.exp:
            p.I(f's_mov_b32 s{T0}, {OOB}')
        for n in range(8):
            p.I(f's_mov_b32 m0, s{T1}')
            if n:
                p.I(f'v_xor_b32 v{32 + (n & 1)}, {32 * n}, v31')
            p.vm(f'buffer_load_dwordx4 v{32 + (n & 1) if n else 31}, {ws_}, s{T0} offen{self.o.nt} lds')
            if n < 7:
                p.I(f's_add_u32 s{T0}, s{T0}, 8192\ns_add_u32 s{T1}, s{T1}, 1024')
        p.I(f"""v_lshlrev_b32 v12, 9, v9
v_lshl_add_u32 v12, v8, 4, v12
s_lshr_b32 s{T3}, s{sROLE}, 2
s_mul_i32 s{T3}, s{T3}, 40960
s_and_b32 s{T4}, s{sROLE}, 3
s_lshl_b32 s{T4}, s{T4}, 7
s_add_u32 s{T3}, s{T3}, s{T4}
s_add_u32 s{T3}, s{T3}, {HF}
s_add_u32 s{T4}, s{T3}, 16384
s_add_u32 s{T5}, s{T3}, 32768
s_cmp_lt_u32 s{sW}, 2
s_cselect_b32 s{T5}, s{T5}, {OOB}""")
        if self.o.local:
            for so in (T3, T4, T5):
                p.vm(f'buffer_load_dword v63, v12, {WS}, s{so} offen {"nt" if "ptnt" in self.o.exp else "sc1"}')
            p.I(f"""v_lshrrev_b32 v31, 4, v{vLANE}
v_lshlrev_b32 v31, 12, v31
v_mov_b32 v32, s{sRB}
v_lshl_add_u32 v32, v32, 7, v31
v_mov_b32 v33, s{sR}
v_lshlrev_b32 v34, 7, v33
v_lshl_add_u32 v33, v33, 8, v31
v_lshl_add_u32 v33, v42, 7, v33
v_cmp_gt_u32 vcc, 32, v{vLANE}
v_cndmask_b32 v32, v32, v33, vcc
v_cmp_gt_u32 vcc, 16, v{vLANE}
v_cndmask_b32 v32, v32, v34, vcc
s_mov_b32 s{T0}, {F_H}""")
            p.vm(f'buffer_load_dword v63, v32, {WS}, s{T0} offen sc1')

    def ln_stats(self):
        p = self.p
        p.wait(vm=self.t_x)
        p.I('v_mov_b32 v16, 0\nv_mov_b32 v17, 0\nv_mov_b32 v18, 0x3f803f80')
        for k in range(12):
            p.I(f'v_dot2c_f32_bf16 v16, v{48 + k}, v18\nv_dot2c_f32_bf16 v17, v{48 + k}, v{48 + k}')
        self.dpp_add((16, 17), 'row_ror:8')
        p.I(f"""v_permlane16_swap_b32 v16, v17
v_add_f32 v16, v16, v17
v_mov_b32 v17, v16
v_permlane32_swap_b32 v16, v17
v_add_f32 v16, v16, v17
v_bfe_u32 v18, v{vLANE}, 4, 1
v_lshlrev_b32 v18, 5, v18
v_lshl_add_u32 v18, v8, 2, v18
s_lshl_b32 s{T0}, s{sW}, 6
s_add_u32 s{T0}, s{T0}, {L_SCR_LN}
v_add_u32 v18, s{T0}, v18""")
        p.ds('ds_write_b32 v18, v16')
        p.I(f"""v_mul_u32_u24 v36, 800, v42
v_mul_u32_u24 v37, 40, v43
v_add_u32 v36, v36, v37
v_lshl_add_u32 v36, v41, 1, v36
v_add_u32 v36, {L_WPH}, v36
v_mov_b32 v39, {L_ZERO}
v_cmp_eq_u32 vcc, v42, v44
v_cndmask_b32 v37, v39, v36, vcc
v_add_u32 v38, 32, v37
v_cmp_eq_u32 vcc, 0, v41
v_cndmask_b32 v38, v39, v38, vcc""")
        self.wave0(T6, T6)
        self.wave0(T7, T7)
        self.unpack(96, 48, 12)
        p.wait(vm=self.t_rp)
        p.wait_lgkm_all()
        p.I('s_barrier')
        self.flag(T6, 46, False)
        self.flag(T7, 46, False)
        self.stamp('w1_pub')
        p.I(f'v_lshlrev_b32 v18, 2, v8\nv_add_u32 v18, {L_SCR_LN}, v18')
        for w in range(4):
            t = p.ds(f'ds_read2_b32 v[{20 + 2 * w}:{21 + 2 * w}], v18 offset0:{16 * w} offset1:{16 * w + 8}')
        for mt in range(2):
            for kap in range(3):
                fr = 232 + 12 * mt + 4 * kap
                p.ds(f'ds_read_b64_tr_b16 v[{fr}:{fr + 1}], v{37 + mt} offset:{320 * kap}')
                if kap < 2:
                    p.ds(f'ds_read_b64_tr_b16 v[{fr + 2}:{fr + 3}], v{37 + mt} offset:{320 * kap + 160}')
                else:
                    p.I(f'v_mov_b32 v{fr + 2}, 0\nv_mov_b32 v{fr + 3}, 0')
        p.wait(ds=t)
        p.I("""v_add_f32 v20, v20, v22
v_add_f32 v21, v21, v23
v_add_f32 v24, v24, v26
v_add_f32 v25, v25, v27
v_add_f32 v16, v20, v24
v_add_f32 v17, v21, v25""")
        self.rstd(16, 17, 640)
        for e in range(24):
            p.I(f'v_fma_f32 v{96 + e}, v{96 + e}, v17, v16')
        for e in range(24):
            if e % 2 == 0:
                p.I(f'v_cvt_pk_bf16_f32 v{64 + e}, v{96 + e}, 0')
            else:
                p.I(f'v_cvt_pk_bf16_f32 v{64 + e}, 0, v{96 + e}')
        self.stamp('ln_done')

    def pretouch(self, texts):
        if self.o.local:
            for t in texts:
                self.p.vm(t)

    def mod_finish(self, data, nset, npart, vdelta, vlds):
        p = self.p
        for s_ in range(nset):
            b = data + 4 * npart * s_
            for k in range(1, npart):
                for d in range(3):
                    p.I(f'v_add_f32 v{b + d}, v{b + d}, v{b + 4 * k + d}')
            p.I(f"""v_cvt_pk_bf16_f32 v{b + 4}, v{b}, v{b + 1}
v_cvt_pk_bf16_f32 v{b + 5}, v{b + 2}, v{b + 2}
v_lshlrev_b32 v{b}, 16, v{b + 4}
v_and_b32 v{b + 1}, 0xffff0000, v{b + 4}
v_lshlrev_b32 v{b + 2}, 16, v{b + 5}
v_add_f32 v{b}, v{b}, v{vdelta + s_}
v_add_f32 v{b + 1}, v{b + 1}, v{vdelta + s_}
v_add_f32 v{b + 2}, v{b + 2}, v{vdelta + s_}
v_cvt_pk_bf16_f32 v{b + 4}, v{b}, v{b + 1}
v_cvt_pk_bf16_f32 v{b + 5}, v{b + 2}, v{b + 2}""")
            p.ds(f'ds_write_b16 v{vlds + s_}, v{b + 4}')
            p.ds(f'ds_write_b16_d16_hi v{vlds + s_}, v{b + 4} offset:2')
            p.ds(f'ds_write_b16 v{vlds + s_}, v{b + 5} offset:4')

    def make_h(self):
        p = self.p
        for s_ in range(2):
            p.I(f"""v_add_u32 v31, {256 * s_}, v0
v_min_u32 v31, 439, v31
v_mul_u32_u24 v32, 2979, v31
v_lshrrev_b32 v32, 16, v32
v_mul_u32_u24 v33, 22, v32
v_sub_u32 v33, v31, v33
v_mul_u32_u24 v34, 1536, v32
v_lshl_add_u32 v{20 + s_}, v33, 4, v34
v_mul_u32_u24 v34, 144, v32
v_mul_u32_u24 v33, 6, v33
v_add3_u32 v{22 + s_}, v33, v34, s{T2}
v_cmp_lt_u32 vcc, 9, v32
v_cndmask_b32 v{24 + s_}, 0, 1.0, vcc""".replace('v_mul_u32_u24 v34, 144, v32', f's_mov_b32 s{T2}, {L_MOD}\nv_mul_u32_u24 v34, 144, v32'))
        p.I(f"""v_min_u32 v26, 39, v{vLANE}
v_lshlrev_b32 v26, 2, v26
v_and_b32 v27, 31, v{vLANE}
v_lshlrev_b32 v27, 2, v27
v_lshrrev_b32 v13, 3, v9
v_mul_u32_u24 v13, 144, v13
v_and_b32 v28, 7, v9
v_lshl_add_u32 v13, v28, 4, v13
v_add_u32 v13, {L_MOD}, v13
s_mov_b32 s{T0}, {MODG}
s_lshr_b32 s{T1}, s{sC}, 2
s_lshl_b32 s{T1}, s{T1}, 8
s_add_u32 s{T1}, s{T1}, {F_W1}
s_lshl_b32 s{T2}, s{sX}, 7
s_add_u32 s{T2}, s{T2}, {F_HELLO}
s_add_u32 s{T6}, s{sTAG}, 1
v_mov_b32 v29, s{sTAG}""")
        p.wait_vm_all()
        if self.o.stamps:
            self.stamp('raws_in')
            p.I(f's_mov_b32 s94, s{sSPIN}')
        loop, done = p.newlabel('mg'), p.newlabel('mgd')
        p.L(loop)
        for s_ in range(2):
            for k in range(4):
                r = 96 + 16 * s_ + 4 * k
                p.vm(f'buffer_load_dwordx4 v[{r}:{r + 3}], v{20 + s_}, {WS}, s{T0} offen offset:{384 * k} sc1')
        p.vm(f'buffer_load_dword v30, v26, {WS}, s{T1} offen sc1')
        if self.o.local:
            p.vm(f'buffer_load_dword v31, v27, {WS}, s{T2} offen sc1')
        p.wait_vm_all()
        p.I('v_xor_b32 v30, v30, v29')
        for n in range(8):
            p.I(f'v_bitop3_b32 v30, v30, v{99 + 4 * n}, v29 bitop3:0xf6')
        if self.o.local:
            p.I(f'v_subrev_u32 v32, s{T6}, v31\nv_lshrrev_b32 v32, 4, v32\nv_or_b32 v30, v30, v32')
        p.I(f'v_cmp_ne_u32 vcc, 0, v30\ns_cmp_eq_u64 vcc, 0\ns_cbranch_scc1 {done}')
        self.spin_tail(loop, done)
        self.stamp('mod_in')
        if self.o.stamps:
            p.I(f's_sub_u32 s94, s94, s{sSPIN}\nv_writelane_b32 v{vSTAMP}, s94, 61')
        self.mod_finish(96, 2, 4, 24, 22)
        if self.o.local:
            p.I(f'v_cmp_ne_u32 vcc, s{sCA}, v31\ns_cmp_eq_u64 vcc, 0\ns_cselect_b32 s{sMODE}, 1, 0')
        p.wait_lgkm_all()
        p.I('s_barrier')
        toks = []
        for k in range(3):
            p.ds(f'ds_read_b128 v[{96 + 8 * k}:{99 + 8 * k}], v13 offset:{576 * k}')
            toks.append(p.ds(f'ds_read_b128 v[{100 + 8 * k}:{103 + 8 * k}], v13 offset:{576 * k + 1440}'))
        for k in range(3):
            p.wait(ds=toks[k])
            self.unpack(144 + 8 * k, 96 + 8 * k, 4)
            for e in range(8):
                p.I(f'v_dot2c_f32_bf16 v{144 + 8 * k + e}, v{64 + 8 * k + e}, v{100 + 8 * k + (e >> 1)}')
        for k in range(3):
            for d in range(4):
                p.I(f'v_cvt_pk_bf16_f32 v{168 + 4 * k + d}, v{144 + 8 * k + 2 * d}, v{145 + 8 * k + 2 * d}')
        t = self.lstores([f'buffer_store_dwordx4 v[{168 + 4 * k}:{171 + 4 * k}], v12, {WS}, s{so} offen'
                          for k, so in enumerate((T3, T4, T5))])
        p.I(f"""s_and_b32 s{sT10}, s{sR}, 1
s_mul_i32 s{T7}, s{sC}, 0x1e000
s_mul_i32 s{T8}, s{sW}, 3072
s_add_u32 s{T7}, s{T7}, s{T8}
s_mul_i32 s{T0}, s{sT10}, 61440
s_add_u32 s{T7}, s{T7}, s{T0}
s_add_u32 s{T7}, s{T7}, {W1M}""")
        self.chunk_tok = []
        for _ in range(self.LA_C):
            self.issue_chunk()
        p.I(f"""v_and_b32 v31, 31, v{vLANE}
v_and_b32 v32, 15, v{vLANE}
s_lshl_b32 s{T0}, s{sW}, 3
v_add_u32 v33, s{T0}, v44
v_xor_b32 v33, v33, v32
v_lshlrev_b32 v33, 4, v33
v_lshl_add_u32 v33, v31, 9, v33
v_add_u32 v33, {L_STG_WS}, v33""")
        for ks in range(4):
            if ks:
                p.I(f'v_xor_b32 v{33 + ks}, {32 * ks}, v33')
            for tt in range(2):
                r = 212 + 8 * ks + 4 * tt
                p.ds(f'ds_read_b128 a[{r}:{r + 3}], v{33 + ks} offset:{16384 * tt}')
        p.I(f"""s_lshl_b32 s{T0}, s{sR}, 7
s_lshl_b32 s{T1}, s{sC}, 2
s_add_u32 s{T0}, s{T0}, s{T1}
s_add_u32 s{T0}, s{T0}, {F_H}""")
        self.wave0(T0, T0)
        p.wait(vm=t)
        p.wait_lgkm_all()
        p.I('s_barrier')
        self.flag(T0, 46, True)
        self.stamp('h_pub')

    LA_C = 3

    def issue_chunk(self):
        p = self.p
        self.chunk_tok.append(self.dma(T7, T8, 3))
        p.I(f's_add_u32 s{T7}, s{T7}, 12288\ns_add_u32 s{T8}, s{T8}, 12288')
        if len(self.chunk_tok) == 5:
            p.I(f's_mul_i32 s{T0}, s{sT10}, 122880\ns_sub_u32 s{T7}, s{T7}, s{T0}')

    def raw_loads(self):
        p = self.p
        nt = self.o.nt
        wi = self.srd(SA, P_WIN, 640 * 3072)
        p.I(f"""v_and_b32 v4, 31, v{vLANE}
v_min_u32 v4, 23, v4
v_lshlrev_b32 v5, 4, v4
v_add_u32 v6, 1536, v5
v_subrev_u32 v5, 192, v5
v_cmp_gt_u32 vcc, 12, v4
v_cndmask_b32 v5, v5, v6, vcc
v_lshrrev_b32 v6, 5, v0
v_mul_u32_u24 v6, 3072, v6
v_add_u32 v5, v5, v6
s_mul_i32 s{T0}, s{sRB}, {32 * 3072}
s_mul_i32 s{T1}, s{sJ}, 192
s_add_u32 s{T0}, s{T0}, s{T1}
s_cmp_lt_u32 s{sRB}, 20
s_cselect_b32 s{T0}, s{T0}, {OOB}""")
        for k in range(4):
            p.vm(f'buffer_load_dwordx4 a[{160 + 4 * k}:{163 + 4 * k}], v5, {wi}, s{T0} offen{nt}')
            if k < 3:
                p.I(f's_add_u32 s{T0}, s{T0}, {8 * 3072}')
        wm = self.srd(SB, P_WMOD, 640 * 7680)
        p.I(f"""v_lshrrev_b32 v7, 3, v0
v_lshlrev_b32 v8, 1, v7
v_mul_u32_u24 v7, 7680, v7
v_and_b32 v4, 7, v0
v_lshl_add_u32 v7, v4, 4, v7
s_mul_i32 s{sT9}, s{sX}, 25
s_add_u32 s{sT9}, s{sT9}, s{sI}
s_mul_i32 s{T0}, s{sT9}, 205
s_lshr_b32 s{T0}, s{T0}, 10
s_mul_i32 s{T1}, s{T0}, 5
s_sub_u32 s{T1}, s{sT9}, s{T1}
s_lshl_b32 s{T2}, s{T1}, 8
s_mul_i32 s{T1}, s{T1}, {128 * 7680}
s_lshl_b32 s{T0}, s{T0}, 7
s_add_u32 s{T0}, s{T0}, s{T1}
s_add_u32 s{T0}, s{T0}, 2560
s_cmp_lt_u32 s{sI}, 25
s_cselect_b32 s{T0}, s{T0}, {OOB}""")
        for k in range(4):
            p.vm(f'buffer_load_dwordx4 a[{184 + 4 * k}:{187 + 4 * k}], v7, {wm}, s{T0} offen{nt}')
            if k < 3:
                p.I(f's_add_u32 s{T0}, s{T0}, {32 * 7680}')
        cs = self.srd(SA, P_C, 1280)
        for k in range(4):
            p.vm(f'buffer_load_ushort a{200 + k}, v8, {cs}, s{T2} offen offset:{64 * k}')
        wu = self.srd(SB, P_WOUT, 768 * 1280)
        p.I(f"""v_and_b32 v4, 15, v{vLANE}
v_min_u32 v4, 9, v4
v_lshrrev_b32 v6, 4, v0
v_mul_u32_u24 v6, 1280, v6
v_lshl_add_u32 v6, v4, 4, v6
s_mul_i32 s{T0}, s{sRB}, {32 * 1280}
s_mul_i32 s{T1}, s{sJ}, 160
s_add_u32 s{T0}, s{T0}, s{T1}
s_cmp_lt_u32 s{sRB}, 24
s_cselect_b32 s{T0}, s{T0}, {OOB}
s_add_u32 s{T1}, s{T0}, {16 * 1280}""")
        for k in range(2):
            self.t_rawp1 = p.vm(f'buffer_load_dwordx4 a[{176 + 4 * k}:{179 + 4 * k}], v6, {wu}, s{T0 + k} offen{nt}')

    def check_flags(self, tok, vval, vaddr, soff):
        p = self.p
        loop, done = p.newlabel('cf'), p.newlabel('cfd')
        p.wait(vm=tok)
        p.I(f'v_cmp_ne_u32 vcc, s{sTAG}, v{vval}\ns_cmp_eq_u64 vcc, 0\ns_cbranch_scc1 {done}')
        p.L(loop)
        p.vm(f'buffer_load_dword v{vval}, v{vaddr}, {WS}, s{soff} offen sc1', count=False)
        p.I(f's_waitcnt vmcnt(0)\nv_cmp_ne_u32 vcc, s{sTAG}, v{vval}\ns_cmp_eq_u64 vcc, 0\ns_cbranch_scc1 {done}')
        self.spin_tail(loop, done)

    def dma_rot(self, ssrc, n0, per, lds0, stride=None):
        p = self.p
        tok = None
        p.I(f's_mul_i32 s{T2}, s{sW}, {4 * per * 1024}')
        for g in range(4):
            p.I(f"""s_add_u32 s{T0}, s{sRB}, {g}
s_and_b32 s{T0}, s{T0}, 3
s_mul_i32 s{T0}, s{T0}, {per * 1024}
s_add_u32 s{T0}, s{T0}, s{T2}
s_add_u32 s{T8}, s{T0}, {lds0}
s_add_u32 s{T7}, s{T0}, s{ssrc}""")
            if n0:
                p.I(f's_add_u32 s{T7}, s{T7}, {n0 * 1024}')
            left = per
            while left:
                n = min(left, 4)
                tok = self.dma(T7, T8, n)
                left -= n
                if left:
                    p.I(f's_add_u32 s{T7}, s{T7}, 4096\ns_add_u32 s{T8}, s{T8}, 4096')
        return tok

    def p1_main(self):
        p = self.p
        LA_H = 6
        p.I(f"""v_and_b32 v10, 3, v{vLANE}
v_lshlrev_b32 v10, 2, v10
s_lshl_b32 s{T0}, s{sR}, 7
s_lshl_b32 s{T1}, s{sW}, 4
s_add_u32 s{T0}, s{T0}, s{T1}
s_add_u32 s{T0}, s{T0}, {F_H}
s_lshl_b32 s{T6}, s{sR}, 2
s_add_u32 s{T6}, s{T6}, s{sW}
s_mul_i32 s{T6}, s{T6}, 40960
s_mul_i32 s{T1}, s{sT10}, 20480
s_add_u32 s{T6}, s{T6}, s{T1}
s_add_u32 s{T6}, s{T6}, {HF}
v_add_u32 v11, 0x10000, v{vL16}
v_min_u32 v14, 19, v{vLANE}
v_lshlrev_b32 v14, 2, v14
s_lshl_b32 s{T5}, s{sJ}, 7
s_add_u32 s{T5}, s{T5}, {F_WO}""")
        self.vpoll(10, 63, T0)
        self.stamp('h_in')
        htok = []

        def issue_h():
            ks = len(htok)
            htok.append(p.vm(f'buffer_load_dwordx4 a[{4 * ks}:{4 * ks + 3}], v{vL16}, {WS}, s{T6} offen offset:{1024 * (ks & 3)} sc1'))
            if ks & 3 == 3:
                p.I(f's_add_u32 s{T6}, s{T6}, 4096')
            if ks == 19:
                p.I(f's_mul_i32 s{T0}, s{sT10}, 40960\ns_sub_u32 s{T6}, s{T6}, s{T0}')
        for _ in range(LA_H):
            issue_h()

        def rd(ks, T):
            off = (ks * 3 + T) * 1024
            b, off = (vL16, off) if off < 65536 else (11, off - 65536)
            r = 128 + 12 * (ks % 3) + 4 * T
            return p.ds(f'ds_read_b128 v[{r}:{r + 3}], v{b} offset:{off}')
        p.I('s_barrier')
        rt = {}
        for ks in range(2):
            for T in range(3):
                rt[ks] = rd(ks, T)
        for ks in range(40):
            if ks + 2 < 40 and (ks + 2) % 4 == 0 and (ks + 2) // 4 >= self.LA_C:
                p.wait(vm=self.chunk_tok[(ks + 2) // 4])
                p.I('s_barrier')
            if ks % 4 == 0 and len(self.chunk_tok) < 10:
                self.issue_chunk()
            if len(htok) < 40:
                issue_h()
            if ks == 35:
                tf = p.vm(f'buffer_load_dword v15, v14, {WS}, s{T5} offen sc1')
            p.wait(vm=htok[ks], ds=rt[ks])
            for T in range(3):
                r = 128 + 12 * (ks % 3) + 4 * T
                acc = vr(64 + 16 * T, 16)
                p.I(f'v_mfma_f32_32x32x16_bf16 {acc}, v[{r}:{r + 3}], a[{4 * ks}:{4 * ks + 3}], {acc if ks else 0}')
                if ks + 2 < 40:
                    rt[ks + 2] = rd(ks + 2, T)
        self.stamp('p1_main')
        p.I(f"""s_barrier
s_lshl_b32 s{T0}, s{sT10}, 1
s_add_u32 s{T0}, s{T0}, s{sW}
s_and_b32 s{T0}, s{T0}, 3
s_mul_i32 s{T7}, s{T0}, 10240
s_mul_i32 s{T0}, s{sC}, 0xa000
s_add_u32 s{T7}, s{T7}, s{T0}
s_add_u32 s{T7}, s{T7}, {W1T}
s_mul_i32 s{T8}, s{sW}, 10240""")
        for n in (4, 4, 2):
            self.t_t3 = self.dma(T7, T8, n)
            p.I(f's_add_u32 s{T7}, s{T7}, 4096\ns_add_u32 s{T8}, s{T8}, 4096')
        self.check_flags(tf, 15, 14, T5)
        p.I(f's_mul_i32 s{T6}, s{sJ}, 0x19000\ns_add_u32 s{T6}, s{T6}, {WOF}')
        self.dma_rot(T6, 0, 5, 40960)

    def chain_softmax(self, src, out):
        p = self.p
        for k in range(10):
            p.I(f'v_cvt_pk_bf16_f32 v{164 + k}, v{src + 2 * k}, v{src + 2 * k + 1}')
        p.I('v_mov_b32 v174, 0\nv_mov_b32 v175, 0')
        for kap in range(3):
            for mt in range(2):
                acc = vr(176 + 16 * mt, 16)
                fr = 232 + 12 * mt + 4 * kap
                p.I(f'v_mfma_f32_32x32x16_bf16 {acc}, v[{fr}:{fr + 3}], v[{164 + 4 * kap}:{167 + 4 * kap}], {acc if kap else 0}')
        P = 176
        p.I(f's_mov_b32 s{sCA}, {hex(f2u(LOG2E))}\ns_mov_b32 s{sCA + 1}, s{sCA}')
        p.I(f'v_max3_f32 v196, v{P}, v{P + 1}, v{P + 2}\nv_min3_f32 v198, v{P}, v{P + 1}, v{P + 2}')
        for k in range(3, 19, 2):
            p.I(f'v_max3_f32 v196, v196, v{P + k}, v{P + k + 1}\nv_min3_f32 v198, v198, v{P + k}, v{P + k + 1}')
        p.I(f'''v_max_f32 v196, v196, v{P + 19}
v_min_f32 v198, v198, v{P + 19}
v_mul_f32 v196, {hex(f2u(-LOG2E))}, v196
v_mul_f32 v198, {hex(f2u(LOG2E))}, v198''')
        E = 128
        ca = f's[{sCA}:{sCA + 1}]'
        for k in range(10):
            p.I(f'v_pk_fma_f32 v[{E + 2 * k}:{E + 2 * k + 1}], v[{P + 2 * k}:{P + 2 * k + 1}], {ca}, v[196:197] op_sel_hi:[1,1,0]')
            p.I(f'v_pk_fma_f32 v[{P + 2 * k}:{P + 2 * k + 1}], v[{P + 2 * k}:{P + 2 * k + 1}], {ca}, v[198:199] op_sel_hi:[1,1,0] neg_lo:[1,0,0] neg_hi:[1,0,0]')
        for k in range(20):
            p.I(f'v_exp_f32 v{E + k}, v{E + k}\nv_exp_f32 v{P + k}, v{P + k}')
        p.I(f'v_pk_add_f32 v[200:201], v[{E}:{E + 1}], v[{E + 2}:{E + 3}]\nv_pk_add_f32 v[202:203], v[{P}:{P + 1}], v[{P + 2}:{P + 3}]')
        for k in range(2, 10):
            p.I(f'v_pk_add_f32 v[200:201], v[200:201], v[{E + 2 * k}:{E + 2 * k + 1}]\n'
                f'v_pk_add_f32 v[202:203], v[202:203], v[{P + 2 * k}:{P + 2 * k + 1}]')
        p.I('v_add_f32 v200, v200, v201\nv_add_f32 v202, v202, v203\nv_rcp_f32 v200, v200\nv_rcp_f32 v202, v202')
        for k in range(10):
            p.I(f'v_pk_mul_f32 v[{E + 2 * k}:{E + 2 * k + 1}], v[{E + 2 * k}:{E + 2 * k + 1}], v[200:201] op_sel_hi:[1,0]')
            p.I(f'v_pk_mul_f32 v[{P + 2 * k}:{P + 2 * k + 1}], v[{P + 2 * k}:{P + 2 * k + 1}], v[202:203] op_sel_hi:[1,0]')
        for k in range(10):
            p.I(f'v_cvt_pk_bf16_f32 v{out + k}, v{E + 2 * k}, v{E + 2 * k + 1}\n'
                f'v_cvt_pk_bf16_f32 v{out + 10 + k}, v{P + 2 * k}, v{P + 2 * k + 1}')

    def p1_kv(self):
        p = self.p
        for k in range(10):
            p.I(f'v_cvt_pk_bf16_f32 v{152 + k}, v{84 + 2 * k}, v{85 + 2 * k}')
        p.I('v_mov_b32 v162, 0x3f80\nv_mov_b32 v163, 0')
        self.chain_softmax(64, 208)
        p.I(f'''v_and_b32 v4, 31, v{vLANE}
v_lshrrev_b32 v5, 5, v{vLANE}
v_lshlrev_b32 v5, 14, v5
v_lshl_add_u32 v5, v4, 7, v5
s_lshl_b32 s{T0}, s{sW}, 12
s_add_u32 s{T0}, s{T0}, {L_PHS}
v_add_u32 v5, s{T0}, v5
v_bfe_u32 v6, v{vLANE}, 1, 1
v_bfe_u32 v7, v{vLANE}, 2, 1
v_lshl_add_u32 v6, v6, 1, v7
v_and_b32 v7, 1, v{vLANE}
v_lshl_add_u32 v6, v6, 1, v7
v_lshl_add_u32 v5, v6, 4, v5''')
        for ch in range(8):
            src = 208 + 4 * ch if ch < 5 else 152 + 4 * (ch - 5)
            if ch:
                p.I(f'v_xor_b32 v{6 + (ch & 1)}, {16 * ch}, v5')
            p.ds(f'ds_write_b128 v{6 + (ch & 1) if ch else 5}, v[{src}:{src + 3}]')
        p.I(f'''v_bfe_u32 v4, v{vLANE}, 2, 2
v_lshrrev_b32 v5, 5, v{vLANE}
v_lshl_add_u32 v5, v5, 3, v4
v_lshlrev_b32 v5, 7, v5
s_lshr_b32 s{T0}, s{sW}, 1
s_lshl_b32 s{T0}, s{T0}, 14
s_add_u32 s{T0}, s{T0}, {L_PHS}
v_add_u32 v5, s{T0}, v5
v_lshrrev_b32 v6, 1, v4
v_and_b32 v7, 1, v4
v_lshl_add_u32 v6, v6, 2, v7
v_bfe_u32 v7, v{vLANE}, 4, 1
v_and_b32 v8, 1, v{vLANE}
v_bfe_u32 v9, v{vLANE}, 1, 1
v_lshl_add_u32 v10, v7, 1, v8
s_and_b32 s{T1}, s{sW}, 1
s_lshl_b32 s{T1}, s{T1}, 2
v_add_u32 v10, s{T1}, v10
v_xor_b32 v10, v10, v6
v_lshlrev_b32 v10, 4, v10
v_lshl_add_u32 v10, v9, 3, v10
v_add_u32 v12, v5, v10
v_xor_b32 v10, 32, v10
v_add3_u32 v13, v5, v10, s{T2}
v_lshl_add_u32 v10, v7, 1, v9
v_add_u32 v10, 5, v10
v_min_u32 v10, 7, v10
v_xor_b32 v10, v10, v6
v_lshlrev_b32 v10, 4, v10
v_lshl_add_u32 v10, v8, 3, v10
v_add_u32 v14, v5, v10
v_xor_b32 v10, 32, v10
v_add3_u32 v15, v5, v10, s{T2}'''.replace(f'v_add_u32 v12, v5, v10', f's_mov_b32 s{T2}, 512\nv_add_u32 v12, v5, v10'))
        p.wait_lgkm_all()
        p.I('s_barrier')
        toks = []
        for ks in range(8):
            a, b = 128 + 8 * (ks & 3), 132 + 8 * (ks & 3)
            if ks >= 4:
                self.kv_mfma(ks - 4, toks)
            p.ds(f'ds_read_b64_tr_b16 v[{a}:{a + 1}], v12 offset:{2048 * ks}')
            p.ds(f'ds_read_b64_tr_b16 v[{a + 2}:{a + 3}], v13 offset:{2048 * ks}')
            p.ds(f'ds_read_b64_tr_b16 v[{b}:{b + 1}], v14 offset:{2048 * ks}')
            toks.append(p.ds(f'ds_read_b64_tr_b16 v[{b + 2}:{b + 3}], v15 offset:{2048 * ks}'))
        for ks in range(4, 8):
            self.kv_mfma(ks, toks)
        p.I(f'''v_and_b32 v4, 31, v{vLANE}
s_and_b32 s{T1}, s{sW}, 1
s_lshl_b32 s{T2}, s{T1}, 5
v_and_b32 v5, s{T2}, v{vLANE}
v_add_u32 v4, v4, v5
v_mov_b32 v5, {OOB}
v_cmp_lt_u32 vcc, 20, v4
v_cndmask_b32 v4, v{vL16}, v5, vcc
s_lshl_b32 s{T0}, s{sC}, 4
s_add_u32 s{T0}, s{T0}, s{sR}
s_mul_i32 s{T0}, s{T0}, 5120
s_lshr_b32 s{T2}, s{sW}, 1
s_mul_i32 s{T2}, s{T2}, 2560
s_add_u32 s{T0}, s{T0}, s{T2}
s_lshl_b32 s{T2}, s{T1}, 11
s_add_u32 s{T0}, s{T0}, s{T2}
s_add_u32 s{T0}, s{T0}, {KVP}
s_cmp_eq_u32 s{T1}, 0
s_cselect_b32 s{T1}, s{T0}, {OOB}''')
        for k in range(8):
            p.I(f'v_cvt_pk_bf16_f32 v{128 + k}, v{176 + 2 * k}, v{177 + 2 * k}')
        p.vm(f'buffer_store_dwordx4 v[128:131], v4, {WS}, s{T0} offen sc1')
        p.vm(f'buffer_store_dwordx4 v[132:135], v4, {WS}, s{T1} offen offset:1024 sc1')
        p.I(f'''s_lshl_b32 s{T0}, s{sRB}, 18
s_lshl_b32 s{T1}, s{sJ}, 15
s_add_u32 s{T0}, s{T0}, s{T1}
s_lshl_b32 s{T1}, s{sW}, 13
s_add_u32 s{T0}, s{T0}, s{T1}
s_add_u32 s{T0}, s{T0}, {WSF}
s_add_u32 s{T1}, s{T0}, 4096
s_lshl_b32 s{T2}, s{sC}, 7
s_lshl_b32 s{T3}, s{sR}, 2
s_add_u32 s{T2}, s{T2}, s{T3}
s_add_u32 s{T2}, s{T2}, {F_KV}''')
        self.wave0(T2, T2)
        p.wait_vm_all()
        p.I('s_barrier')
        self.flag(T2, 46, False)
        self.stamp('kv_pub')
        for n in range(8):
            p.vm(f'buffer_store_dwordx4 a[{212 + 4 * n}:{215 + 4 * n}], v{vL16}, {WS}, s{T0 if n < 4 else T1} offen offset:{1024 * (n & 3)} sc1')
        self.raw_loads()
        self.dma_range(T6, 80, 100, 40960 + 81920)

    def kv_mfma(self, ks, toks):
        p = self.p
        a, b = 128 + 8 * (ks & 3), 132 + 8 * (ks & 3)
        p.wait(ds=toks[ks])
        p.I(f'v_mfma_f32_32x32x16_bf16 v[176:191], v[{a}:{a + 3}], v[{b}:{b + 3}], {"v[176:191]" if ks else 0}')

    def p1_q(self):
        p = self.p

        def rd(ks):
            r = 128 + 4 * (ks & 3)
            return p.ds(f'ds_read_b128 v[{r}:{r + 3}], v{vL16} offset:{1024 * ks}')
        toks = [rd(0), rd(1), rd(2)]
        for ks in range(40):
            if ks + 3 < 40:
                toks.append(rd(ks + 3))
            p.wait(ds=toks[ks])
            r = 128 + 4 * (ks & 3)
            p.I(f'v_mfma_f32_32x32x16_bf16 v[112:127], v[{r}:{r + 3}], a[{4 * ks}:{4 * ks + 3}], {"v[112:127]" if ks else 0}')
        self.stamp('t3_done')
        self.chain_softmax(104, 208)
        self.stamp('q_done')

    def repack_mid(self):
        p = self.p
        p.I('s_barrier\nv_lshlrev_b32 v4, 4, v0')
        p.wait(vm=self.t_rawp1)
        for k in range(4):
            p.ds(f'ds_write_b128 v4, a[{160 + 4 * k}:{163 + 4 * k}] offset:{4096 * k}')
        for k in range(2):
            p.ds(f'ds_write_b128 v4, a[{176 + 4 * k}:{179 + 4 * k}] offset:{16384 + 4096 * k}')
        for k in range(20):
            p.I(f'v_accvgpr_read_b32 v{64 + k}, a{184 + k}')
        self.gemv(4, 64, 80, L_SCR_G2)
        self.trbase16(35, 512, 36)
        p.I(f"""s_lshr_b32 s{T2}, s{sW}, 1
s_and_b32 s{T3}, s{sW}, 1
s_cmp_eq_u32 s{T2}, 0
s_cselect_b32 s{T4}, 8, 48
s_cselect_b32 s{T5}, 32, 8
s_cselect_b32 s{T6}, 0, 192
s_mul_i32 s{T1}, s{T5}, 3
s_mul_i32 s{T1}, s{T1}, s{T3}
s_add_u32 s{T6}, s{T6}, s{T1}
v_mul_lo_u32 v37, v36, s{T4}
v_add3_u32 v37, v37, v35, s{T6}
v_add_u32 v38, s{T5}, v37
v_add_u32 v39, s{T5}, v38
s_mul_i32 s{T0}, s{sJ}, 0x3c000
s_mul_i32 s{T1}, s{T2}, 0x1e000
s_add_u32 s{T0}, s{T0}, s{T1}
s_mul_i32 s{T1}, s{sRB}, 6144
s_add_u32 s{T0}, s{T0}, s{T1}
s_mul_i32 s{T1}, s{T3}, 3072
s_add_u32 s{T0}, s{T0}, s{T1}
s_add_u32 s{T0}, s{T0}, {W2F}
s_cmp_lt_u32 s{sRB}, 20
s_cselect_b32 s{T2}, s{T0}, {OOB}
s_mul_i32 s{T3}, s{sT9}, 384
s_add_u32 s{T3}, s{T3}, {M2}
s_cmp_lt_u32 s{sI}, 25
s_cselect_b32 s{T3}, s{T3}, {OOB}
s_mul_i32 s{T4}, s{sJ}, 0x1e000
s_mul_i32 s{T1}, s{sRB}, 5120
s_add_u32 s{T4}, s{T4}, s{T1}
s_add_u32 s{T4}, s{T4}, {WOUTF}
s_cmp_lt_u32 s{sRB}, 24
s_cselect_b32 s{T4}, s{T4}, {OOB}""")
        self.repack5_addr(16384)
        p.wait_lgkm_all()
        p.I('s_barrier')
        self.gemv_pub(T3)
        for k in range(3):
            p.ds(f'ds_read_b64_tr_b16 v[{64 + 4 * k}:{65 + 4 * k}], v{37 + k}')
            t = p.ds(f'ds_read_b64_tr_b16 v[{66 + 4 * k}:{67 + 4 * k}], v{37 + k} offset:2048')
        p.wait(ds=t)
        for k in range(3):
            p.vm(f'buffer_store_dwordx4 v[{64 + 4 * k}:{67 + 4 * k}], v{vL16}, {WS}, s{T2} offen offset:{1024 * k} sc1')
        self.repack5(T4, 76)
        self.stamp('rp_done')

    def repack_flags(self):
        p = self.p
        self.flag_ks(F_WIN, 20)
        self.flag(T0, 46, False)
        self.flag_ks(F_WOUT, 24)
        self.flag(T0, 46, False)
        p.I(f"""s_lshl_b32 s{T0}, s{sROLE}, 2
s_add_u32 s{T0}, s{T0}, {F_WS}""")
        self.wave0(T0, T0)
        self.flag(T0, 46, False)

    def p1_o(self):
        p = self.p
        p.I(f'''v_mul_u32_u24 v4, 3121, v0
v_lshrrev_b32 v4, 16, v4
v_mul_u32_u24 v5, 21, v4
v_sub_u32 v5, v0, v5
v_lshlrev_b32 v5, 4, v5
v_lshl_add_u32 v6, v4, 9, v5
v_mul_u32_u24 v4, 384, v4
v_add3_u32 v7, v4, v5, s{T2}
v_mov_b32 v4, {OOB}
v_mov_b32 v5, {L_ZERO + 2048}
v_cmp_gt_u32 vcc, 210, v0
v_cndmask_b32 v6, v4, v6, vcc
v_cndmask_b32 v7, v5, v7, vcc
v_bfe_u32 v4, v{vLANE}, 3, 2
v_and_b32 v5, 3, v{vLANE}
v_lshl_add_u32 v4, v4, 2, v5
v_bfe_u32 v5, v{vLANE}, 2, 1
v_mul_u32_u24 v8, 1920, v5
v_lshl_add_u32 v8, v4, 4, v8
v_add_u32 v8, {L_KVR}, v8
v_lshrrev_b32 v9, 5, v{vLANE}
v_mov_b32 v10, {L_ZERO}
v_cmp_eq_u32 vcc, v5, v9
v_cndmask_b32 v8, v10, v8, vcc
v_add_u32 v11, 256, v8
v_cmp_ge_u32 vcc, 4, v4
v_cndmask_b32 v11, v10, v11, vcc
v_bfe_u32 v4, v{vLANE}, 4, 1
v_mul_u32_u24 v4, 20480, v4
v_and_b32 v5, 15, v{vLANE}
v_lshl_add_u32 v4, v5, 4, v4
v_lshl_add_u32 v12, v9, 9, v4
v_lshl_add_u32 v13, v9, 3, v4
s_lshl_b32 s{T5}, s{sR}, 2
s_add_u32 s{T5}, s{T5}, s{sW}
s_mul_i32 s{T5}, s{T5}, 40960
s_mul_i32 s{T1}, s{sC}, 1280
s_add_u32 s{T5}, s{T5}, s{T1}
s_add_u32 s{T5}, s{T5}, {OF}
s_mul_i32 s{T6}, s{sC}, {16 * 5120}
s_add_u32 s{T6}, s{T6}, {KVP}
s_lshl_b32 s{T0}, s{sC}, 7
s_add_u32 s{T0}, s{T0}, {F_KV}'''.replace('v_mul_u32_u24 v4, 384, v4', f's_mov_b32 s{T2}, {L_KVR}\nv_mul_u32_u24 v4, 384, v4'))
        self.pretouch([f'buffer_load_dword v63, v12, {WS}, s{T5} offen sc1',
                       f'buffer_load_dword v63, v12, {WS}, s{T5} offen offset:256 sc1',
                       f'buffer_load_dword v63, v13, {WS}, s{T5} offen offset:1024 sc1'])
        self.spoll_n(T0, 16)
        self.stamp('kv_in')
        toks = []
        for r in range(16):
            toks.append(p.vm(f'buffer_load_dwordx4 v[{64 + 4 * r}:{67 + 4 * r}], v6, {WS}, s{T6} offen sc1'))
            if r < 15:
                p.I(f's_add_u32 s{T6}, s{T6}, 5120')
        p.I('v_mov_b32 v38, 0x3f80\nv_mov_b32 v39, 1.0')
        for n in range(8):
            p.I(f'v_mov_b32 v{40 + n}, 0')
        for r in range(16):
            p.wait(vm=toks[r])
            for d in range(4):
                p.I(f'v_dot2c_f32_bf16 v{40 + 2 * d}, v{64 + 4 * r + d}, v38\nv_dot2c_f32_bf16 v{41 + 2 * d}, v{64 + 4 * r + d}, v39')
        for d in range(4):
            p.I(f'v_cvt_pk_bf16_f32 v{48 + d}, v{40 + 2 * d}, v{41 + 2 * d}')
        p.ds('ds_write_b128 v7, v[48:51]')
        p.wait_lgkm_all()
        p.I('s_barrier')
        toks = []
        for ks in range(5):
            p.ds(f'ds_read_b128 v[{64 + 8 * ks}:{67 + 8 * ks}], v8 offset:{384 * ks}')
            toks.append(p.ds(f'ds_read_b128 v[{68 + 8 * ks}:{71 + 8 * ks}], v11 offset:{384 * ks}'))
        self.repack_flags()
        for ks in range(5):
            p.wait(ds=toks[ks])
            for tp in range(2):
                acc = vr(128 + 16 * tp, 16)
                r = 64 + 8 * ks + 4 * tp
                p.I(f'v_mfma_f32_32x32x16_bf16 {acc}, v[{r}:{r + 3}], v[{208 + 4 * ks}:{211 + 4 * ks}], {acc if ks else 0}')
        p.I(f'''s_lshl_b32 s{T0}, s{sR}, 8
s_lshl_b32 s{T1}, s{sW}, 6
s_add_u32 s{T0}, s{T0}, s{T1}
s_lshl_b32 s{T1}, s{sC}, 2
s_add_u32 s{T0}, s{T0}, s{T1}
s_add_u32 s{T0}, s{T0}, {F_O}
v_add_f32 v148, {hex(f2u(1e-6))}, v148
v_rcp_f32 v148, v148''')
        for k in range(10):
            p.I(f'v_pk_mul_f32 v[{128 + 2 * k}:{129 + 2 * k}], v[{128 + 2 * k}:{129 + 2 * k}], v[148:149] op_sel_hi:[1,0]')
        for k in range(10):
            p.I(f'v_cvt_pk_bf16_f32 v{152 + k}, v{128 + 2 * k}, v{129 + 2 * k}')
        t = self.lstores([f'buffer_store_dwordx4 v[152:155], v12, {WS}, s{T5} offen',
                          f'buffer_store_dwordx4 v[156:159], v12, {WS}, s{T5} offen offset:256',
                          f'buffer_store_dwordx2 v[160:161], v13, {WS}, s{T5} offen offset:1024'])
        p.wait(vm=t)
        self.flag(T0, 46, True)
        self.stamp('o_pub')

    def wsp_load(self, n):
        p = self.p
        for _ in range(n):
            if self.nws >= 64:
                return
            k = self.nws
            if k % 16 == 0:
                p.I(f"""s_add_u32 s{sT10}, s{sRB}, {k // 16}
s_and_b32 s{sT10}, s{sT10}, 3
s_lshl_b32 s{sT10}, s{sT10}, 14
s_lshl_b32 s3, s{sRB}, 2
s_add_u32 s3, s3, s{sW}
s_lshl_b32 s3, s3, 16
s_add_u32 s{sT10}, s{sT10}, s3
s_add_u32 s{sT10}, s{sT10}, {WSF}""")
            self.t_ws = p.vm(f'buffer_load_dwordx4 a[{4 * k}:{4 * k + 3}], v{vL16}, {WS}, s{sT10} offen offset:{1024 * (k & 3)} sc1')
            if k & 3 == 3 and k % 16 != 15:
                p.I(f's_add_u32 s{sT10}, s{sT10}, 4096')
            self.nws += 1

    def dma_range(self, src0, n0, n1, lds0):
        p = self.p
        per = (n1 - n0) // 4
        assert per * 4 == n1 - n0
        p.I(f'''s_mul_i32 s{T8}, s{sW}, {per * 1024}
s_add_u32 s{T7}, s{T8}, s{src0}
s_add_u32 s{T7}, s{T7}, {n0 * 1024}
s_add_u32 s{T8}, s{T8}, {lds0}''')
        tok = None
        while per:
            n = min(per, 4)
            tok = self.dma(T7, T8, n)
            per -= n
            if per:
                p.I(f's_add_u32 s{T7}, s{T7}, 4096\ns_add_u32 s{T8}, s{T8}, 4096')
        return tok

    def lds_frag(self, r, addr):
        b = (vL16, 5, 6)[addr >> 16]
        return self.p.ds(f'ds_read_b128 v[{r}:{r + 3}], v{b} offset:{addr & 0xffff}')

    def gemm16(self, nks, nt, btok, breg, addr_of, abuf, acc, swap=False, hook=None, pre=None):
        p = self.p
        buf = lambda ks, n: abuf + 4 * nt * (ks % 3) + 4 * n
        rt = {}
        for ks in range(2):
            if pre:
                pre(ks)
            for n in range(nt):
                rt[ks] = self.lds_frag(buf(ks, n), addr_of(ks, n))
        for ks in range(nks):
            if pre and ks + 2 < nks:
                pre(ks + 2)
            if hook:
                hook(ks)
            p.wait(vm=btok[ks] if btok else None, ds=rt[ks])
            for n in range(nt):
                w = vr(buf(ks, n), 4)
                x = vr(breg + 4 * ks, 4)
                d = vr(acc + 4 * n, 4)
                a, b = (x, w) if swap else (w, x)
                p.I(f'v_mfma_f32_16x16x32_bf16 {d}, {a}, {b}, {d if ks else 0}')
                if ks + 2 < nks:
                    rt[ks + 2] = self.lds_frag(buf(ks + 2, n), addr_of(ks + 2, n))

    def tile_addr(self):
        self.p.I(f"""v_lshrrev_b32 v4, 4, v{vLANE}
v_and_b32 v11, 15, v{vLANE}
v_lshlrev_b32 v9, 5, v4
v_lshlrev_b32 v10, 3, v4
v_add_u32 v10, 128, v10
v_mul_u32_u24 v8, 1280, v11
v_add_u32 v7, v8, v9
v_add_u32 v8, v8, v10
s_and_b32 s{T0}, s{sJ}, 3
s_lshl_b32 s{T0}, s{T0}, 5
v_add_u32 v9, s{T0}, v9
v_lshrrev_b32 v4, 7, v9
v_lshl_add_u32 v9, v4, 4, v9
v_add_u32 v9, {L_M2}, v9
s_add_u32 s{T0}, s{T0}, {L_M2 + 16}
v_add_u32 v10, s{T0}, v10""")

    def load_vec(self, dst, vec):
        p = self.p
        p.ds(f'ds_read_b128 v[{dst}:{dst + 3}], v9 offset:{288 * vec}')
        p.ds(f'ds_read_b128 v[{dst + 4}:{dst + 7}], v9 offset:{288 * vec + 16}')
        return p.ds(f'ds_read_b64 v[{dst + 8}:{dst + 9}], v10 offset:{288 * vec}')

    def rstd(self, s, q, n):
        self.p.I(f'''s_mov_b32 s{T2}, {hex(f2u(1 / n))}
v_mul_f32 v{s}, s{T2}, v{s}
v_mul_f32 v4, v{s}, v{s}
v_fma_f32 v{q}, v{q}, s{T2}, -v4
v_max_f32 v{q}, 0, v{q}
v_add_f32 v{q}, {hex(f2u(1e-5))}, v{q}
v_rsq_f32 v{q}, v{q}
v_mul_f32 v{s}, -v{s}, v{q}''')

    def p2a(self):
        p = self.p
        X1, GA, A2, SBv, ACC = 232, 16, 76, 96, 204
        PA2, PSB = 36, 46
        p.I(f'v_add_u32 v5, 0x10000, v{vL16}\nv_add_u32 v6, 0x20000, v{vL16}')
        self.tile_addr()
        xs = self.srd(SA, P_X, 2048 * 1280)
        p.I(f"""s_lshl_b32 s{T6}, s{sRB}, 2
s_add_u32 s{T6}, s{T6}, s{sW}
s_mul_i32 s{T1}, s{T6}, {16 * 1280}
s_mul_i32 s{T2}, s{sJ}, 160
s_add_u32 s{sT9}, s{T1}, s{T2}""")
        p.vm(f'buffer_load_dwordx4 v[64:67], v7, {xs}, s{sT9} offen')
        p.vm(f'buffer_load_dwordx4 v[68:71], v7, {xs}, s{sT9} offen offset:16')
        p.vm(f'buffer_load_dwordx2 v[72:73], v8, {xs}, s{sT9} offen')
        p.I(f"""v_lshlrev_b32 v12, 4, v11
v_lshrrev_b32 v4, 4, v{vLANE}
v_lshl_add_u32 v13, v4, 9, v12
v_lshrrev_b32 v14, 1, v4
v_lshl_add_u32 v14, v14, 8, v12
v_and_b32 v15, 1, v4
v_lshl_add_u32 v14, v15, 3, v14
v_lshl_add_u32 v15, v4, 10, v12
s_mul_i32 s{T5}, s{T6}, 20480
s_mul_i32 s{T1}, s{sJ}, 2560
s_add_u32 s{T4}, s{T5}, s{T1}
s_add_u32 s{T4}, s{T4}, {H2F}
s_add_u32 s{T5}, s{T5}, {OF}
s_lshl_b32 s{T3}, s{sRB}, 13
s_lshl_b32 s{T1}, s{sW}, 8
s_add_u32 s{T3}, s{T3}, s{T1}
s_add_u32 s{T3}, s{T3}, {ST2}
s_lshl_b32 s{T1}, s{sJ}, 10
s_add_u32 s{T6}, s{T3}, s{T1}""")
        self.pretouch([f'buffer_load_dword v63, v13, {WS}, s{T4} offen sc1',
                       f'buffer_load_dword v63, v13, {WS}, s{T4} offen offset:256 sc1',
                       f'buffer_load_dword v63, v14, {WS}, s{T4} offen offset:2048 sc1',
                       f'buffer_load_dword v63, v12, {WS}, s{T6} offen sc1'])
        p.I(f"""v_min_u32 v56, 175, v0
v_mul_u32_u24 v57, 2979, v56
v_lshrrev_b32 v57, 16, v57
v_mul_u32_u24 v58, 22, v57
v_sub_u32 v58, v56, v58
v_lshrrev_b32 v59, 1, v57
v_mul_u32_u24 v60, 10, v59
v_and_b32 v61, 1, v57
s_mul_i32 s{T0}, s{sJ}, 5
s_lshr_b32 s{T0}, s{T0}, 2
v_add3_u32 v60, v60, v61, s{T0}
v_mul_u32_u24 v60, 1920, v60
v_lshl_add_u32 v60, v58, 4, v60
v_mul_u32_u24 v57, 144, v57
v_mul_u32_u24 v58, 6, v58
s_mov_b32 s{T0}, {L_M2}
v_add3_u32 v61, v57, v58, s{T0}
v_cmp_eq_u32 vcc, 2, v59
v_cndmask_b32 v62, 0, 1.0, vcc
s_mov_b32 s{T0}, {M2}
v_mov_b32 v57, s{sTAG}""")
        loop, done = p.newlabel('m2'), p.newlabel('m2d')
        p.L(loop)
        for k in range(5):
            p.vm(f'buffer_load_dwordx4 v[{76 + 4 * k}:{79 + 4 * k}], v60, {WS}, s{T0} offen offset:{384 * k} sc1')
        p.wait_vm_all()
        p.I('v_xor_b32 v56, v79, v57')
        for k in range(1, 5):
            p.I(f'v_bitop3_b32 v56, v56, v{79 + 4 * k}, v57 bitop3:0xf6')
        p.I(f'v_cmp_ne_u32 vcc, 0, v56\ns_cmp_eq_u64 vcc, 0\ns_cbranch_scc1 {done}')
        self.spin_tail(loop, done)
        self.mod_finish(76, 1, 5, 62, 61)
        self.unpack(X1, 64, 10)
        p.I(f"""v_min_u32 v56, 51, v{vLANE}
v_lshlrev_b32 v56, 2, v56
s_lshl_b32 s{T0}, s{sJ}, 7
s_add_u32 s{T1}, s{T0}, {F_WIN}
s_add_u32 s{T0}, s{T0}, {F_WOUT - 80}
s_lshl_b32 s{T2}, s{sRB}, 5
s_add_u32 s{T2}, s{T2}, {F_WS - 176}
v_mov_b32 v57, s{T1}
v_mov_b32 v58, s{T0}
v_cmp_lt_u32 vcc, 19, v{vLANE}
v_cndmask_b32 v57, v57, v58, vcc
v_mov_b32 v58, s{T2}
v_cmp_lt_u32 vcc, 43, v{vLANE}
v_cndmask_b32 v57, v57, v58, vcc
v_add_u32 v61, v56, v57
v_lshlrev_b32 v4, 2, v11
s_lshl_b32 s{T0}, s{sR}, 8
s_and_b32 s{T1}, s{sRB}, 1
s_lshl_b32 s{T1}, s{T1}, 1
s_lshr_b32 s{T2}, s{sW}, 1
s_add_u32 s{T1}, s{T1}, s{T2}
s_lshl_b32 s{T1}, s{T1}, 6
s_add_u32 s{T0}, s{T0}, s{T1}
s_add_u32 s{T0}, s{T0}, {F_O}
s_mul_i32 s{sCA}, s{sJ}, 0x3c000
s_add_u32 s{sCA}, s{sCA}, {W2F}
s_mov_b32 s{sCA + 1}, 0""")
        self.stamp('p2a_prep')
        self.vpoll(4, 63, T0)
        self.stamp('o_in')
        bt = []
        for ks in range(20):
            bt.append(p.vm(f'buffer_load_dwordx4 v[{64 + 4 * ks}:{67 + 4 * ks}], v{vL16}, {WS}, s{T5} offen offset:{1024 * (ks & 3)} sc1'))
            if ks & 3 == 3:
                p.I(f's_add_u32 s{T5}, s{T5}, 4096')
        tf = p.vm(f'buffer_load_dword v62, v61, {WS}, s{sCA + 1} offen sc1')
        p.wait_lgkm_all()
        p.I('s_barrier')
        self.load_vec(PA2, 2)
        self.load_vec(PSB, 1)
        self.nws = 0

        def hook(ks):
            if ks == 19:
                self.check_flags(tf, 62, 61, sCA + 1)
                self.dma_range(sCA, 0, 36, 0)
        self.gemm16(20, 5, bt, 64, lambda ks, n: 40960 + (ks * 5 + n) * 1024, 144, ACC, hook=hook)
        tg = self.load_vec(64, 0)
        p.wait(ds=tg)
        self.unpack(GA, 64, 10)
        p.I('s_barrier')
        self.stamp('p2a_mm')
        for k in range(10):
            p.I(f'v_pk_fma_f32 v[{X1 + 2 * k}:{X1 + 2 * k + 1}], v[{GA + 2 * k}:{GA + 2 * k + 1}], v[{ACC + 2 * k}:{ACC + 2 * k + 1}], v[{X1 + 2 * k}:{X1 + 2 * k + 1}]')
        p.I(f'v_pk_add_f32 v[56:57], v[{X1}:{X1 + 1}], v[{X1 + 2}:{X1 + 3}]\nv_pk_mul_f32 v[58:59], v[{X1}:{X1 + 1}], v[{X1}:{X1 + 1}]')
        for k in range(1, 10):
            x = f'v[{X1 + 2 * k}:{X1 + 2 * k + 1}]'
            if k > 1:
                p.I(f'v_pk_add_f32 v[56:57], v[56:57], {x}')
            p.I(f'v_pk_fma_f32 v[58:59], {x}, {x}, v[58:59]')
        p.I('v_add_f32 v56, v56, v57\nv_add_f32 v58, v58, v59')
        self.xreduce_sq(56, 58, 57)
        p.I(f'v_mov_b32 v58, s{sTAG}\nv_mov_b32 v59, 0\ns_mov_b64 exec, 0xffff')
        self.lstores([f'buffer_store_dwordx4 v[56:59], v12, {WS}, s{T6} offen'])
        p.I(f's_mov_b64 exec, -1\ns_add_u32 s{T1}, s{T3}, 4096')
        self.unpack(A2, PA2, 10)
        self.unpack(SBv, PSB, 10)
        loop, done = p.newlabel('s2'), p.newlabel('s2d')
        p.L(loop)
        p.vm(f'buffer_load_dwordx4 v[64:67], v15, {WS}, s{T3} offen sc1')
        p.vm(f'buffer_load_dwordx4 v[68:71], v15, {WS}, s{T1} offen sc1')
        p.wait_vm_all()
        p.I(f'''v_cmp_ne_u32 vcc, s{sTAG}, v66
v_cmp_ne_u32 s[{sM}:{sM + 1}], s{sTAG}, v70
s_or_b64 vcc, vcc, s[{sM}:{sM + 1}]
s_cmp_eq_u64 vcc, 0
s_cbranch_scc1 {done}''')
        self.spin_tail(loop, done)
        self.stamp('st2_in')
        p.I('v_add_f32 v56, v64, v68\nv_add_f32 v60, v65, v69')
        self.xreduce_sq(56, 60, 58)
        self.rstd(56, 58, 640)
        for k in range(10):
            p.I(f'v_pk_fma_f32 v[{ACC + 2 * k}:{ACC + 2 * k + 1}], v[{X1 + 2 * k}:{X1 + 2 * k + 1}], v[58:59], v[56:57] op_sel_hi:[1,0,0]')
        for k in range(10):
            p.I(f'v_pk_fma_f32 v[{ACC + 2 * k}:{ACC + 2 * k + 1}], v[{ACC + 2 * k}:{ACC + 2 * k + 1}], v[{A2 + 2 * k}:{A2 + 2 * k + 1}], v[{SBv + 2 * k}:{SBv + 2 * k + 1}]')
        for k in range(10):
            p.I(f'v_cvt_pk_bf16_f32 v{64 + k}, v{ACC + 2 * k}, v{ACC + 2 * k + 1}')
        t = self.lstores([f'buffer_store_dwordx4 v[64:67], v13, {WS}, s{T4} offen',
                          f'buffer_store_dwordx4 v[68:71], v13, {WS}, s{T4} offen offset:256',
                          f'buffer_store_dwordx2 v[72:73], v14, {WS}, s{T4} offen offset:2048'])
        p.I(f'''s_lshl_b32 s{T6}, s{sRB}, 7
s_lshl_b32 s{T1}, s{sW}, 5
s_add_u32 s{T6}, s{T6}, s{T1}
s_add_u32 s{T6}, s{T6}, {F_H2}
s_lshl_b32 s{T1}, s{sJ}, 2
s_add_u32 s{T0}, s{T6}, s{T1}''')
        p.wait(vm=t)
        self.flag(T0, 60, True)
        self.stamp('h2_pub')

    def gelu(self, x, n, t):
        p = self.p
        k0 = 0.7978845608028654
        A = -2 * LOG2E * k0
        B = A * 0.044715
        p.I(f's_mov_b32 s{sM}, {hex(f2u(B))}\ns_mov_b32 s{sM + 1}, s{sM}\nv_mov_b32 v56, {hex(f2u(A))}')
        pr = lambda b, k: f'v[{b + 2 * k}:{b + 2 * k + 1}]'
        for k in range(n // 2):
            p.I(f'v_pk_mul_f32 {pr(t, k)}, {pr(x, k)}, {pr(x, k)}')
        for k in range(n // 2):
            p.I(f'v_pk_fma_f32 {pr(t, k)}, {pr(t, k)}, s[{sM}:{sM + 1}], v[56:57] op_sel_hi:[1,1,0]')
        for k in range(n // 2):
            p.I(f'v_pk_mul_f32 {pr(t, k)}, {pr(t, k)}, {pr(x, k)}')
        for k in range(n):
            p.I(f'v_exp_f32 v{t + k}, v{t + k}')
        for k in range(n // 2):
            p.I(f'v_pk_add_f32 {pr(t, k)}, {pr(t, k)}, 1.0 op_sel_hi:[1,0]')
        for k in range(n):
            p.I(f'v_rcp_f32 v{t + k}, v{t + k}')
        for k in range(n // 2):
            p.I(f'v_pk_mul_f32 {pr(x, k)}, {pr(x, k)}, {pr(t, k)}')

    def p2b(self):
        p = self.p
        ACC, Z1, TMP = 16, 16, 144
        ta = self.dma_range(sCA, 36, 76, 40960)
        p.I(f'''v_and_b32 v4, 7, v{vLANE}
v_lshlrev_b32 v4, 2, v4
s_lshl_b32 s{T5}, s{sRB}, 2
s_add_u32 s{T5}, s{T5}, s{sW}
s_mul_i32 s{T5}, s{T5}, 20480
s_add_u32 s{T5}, s{T5}, {H2F}
v_lshrrev_b32 v12, 4, v{vLANE}
v_lshlrev_b32 v12, 6, v12
v_and_b32 v13, 3, v{vLANE}
v_lshl_add_u32 v13, v13, 4, v12
v_bfe_u32 v14, v{vLANE}, 3, 1
v_lshl_add_u32 v14, v14, 4, v12
v_and_b32 v15, 7, v{vLANE}
v_lshl_add_u32 v14, v15, 10, v14
s_lshl_b32 s{T3}, s{sRB}, 13
s_lshl_b32 s{T1}, s{sW}, 8
s_add_u32 s{T3}, s{T3}, s{T1}
s_add_u32 s{T3}, s{T3}, {ST3}
s_lshl_b32 s{T1}, s{sJ}, 10
s_add_u32 s{T4}, s{T3}, s{T1}''')
        self.pretouch([f'buffer_load_dword v63, v13, {WS}, s{T4} offen sc1'])
        self.vpoll(4, 63, T6)
        self.stamp('h2_in')
        bt = []
        for ks in range(20):
            bt.append(p.vm(f'buffer_load_dwordx4 v[{64 + 4 * ks}:{67 + 4 * ks}], v{vL16}, {WS}, s{T5} offen offset:{1024 * (ks & 3)} sc1'))
            if ks & 3 == 3:
                p.I(f's_add_u32 s{T5}, s{T5}, 4096')
        tb = self.dma_range(sCA, 76, 120, 40960 + 40 * 1024)
        p.I('s_barrier')
        z2addr = lambda n: n * 1024 if n < 36 else 40960 + (n - 36) * 1024

        def pre(ks):
            if ks == 12:
                p.wait(vm=tb)
                p.I('s_barrier')
        st = {}

        def hook(ks):
            if ks == 12:
                p.I(f's_add_u32 s{sCA}, s{sCA}, 0x1e000')
                st['c'] = self.dma_range(sCA, 0, 24, 40960 + 84 * 1024)
        self.gemm16(20, 6, bt, 64, lambda ks, n: z2addr(ks * 6 + n), TMP, ACC, swap=True, pre=pre, hook=hook)
        p.I('s_barrier')
        self.stamp('z2_mm')
        td = self.dma_range(sCA, 24, 64, 0)
        self.gelu(ACC, 24, TMP)
        pr = lambda b: f'v[{b}:{b + 1}]'
        p.I(f'v_pk_add_f32 v[40:41], {pr(ACC)}, {pr(ACC + 4)}\nv_pk_add_f32 v[42:43], {pr(ACC + 2)}, {pr(ACC + 6)}')
        p.I(f'v_pk_mul_f32 v[44:45], {pr(ACC)}, {pr(ACC)}\nv_pk_mul_f32 v[46:47], {pr(ACC + 2)}, {pr(ACC + 2)}')
        for ft in range(1, 6):
            a, b = pr(ACC + 4 * ft), pr(ACC + 4 * ft + 2)
            if ft > 1:
                p.I(f'v_pk_add_f32 v[40:41], v[40:41], {a}\nv_pk_add_f32 v[42:43], v[42:43], {b}')
            p.I(f'v_pk_fma_f32 v[44:45], {a}, {a}, v[44:45]\nv_pk_fma_f32 v[46:47], {b}, {b}, v[46:47]')
        for c in ('row_ror:8', 'row_ror:4', 'row_ror:2', 'row_ror:1'):
            self.dpp_add(range(40, 48), c)
        p.I(f'''s_mov_b32 vcc_lo, 0xaaaaaaaa
s_mov_b32 vcc_hi, 0xaaaaaaaa
v_cndmask_b32 v40, v40, v41, vcc
v_cndmask_b32 v42, v42, v43, vcc
v_cndmask_b32 v44, v44, v45, vcc
v_cndmask_b32 v46, v46, v47, vcc
s_mov_b32 vcc_lo, 0xcccccccc
s_mov_b32 vcc_hi, 0xcccccccc
v_cndmask_b32 v48, v40, v42, vcc
v_cndmask_b32 v49, v44, v46, vcc
v_mov_b32 v50, s{sTAG}
v_mov_b32 v51, 0
s_mov_b32 exec_lo, 0x000f000f
s_mov_b32 exec_hi, 0x000f000f''')
        self.lstores([f'buffer_store_dwordx4 v[48:51], v13, {WS}, s{T4} offen'])
        p.I('s_mov_b64 exec, -1')
        loop, done = p.newlabel('s3'), p.newlabel('s3d')
        p.L(loop)
        p.vm(f'buffer_load_dwordx4 v[40:43], v14, {WS}, s{T3} offen sc1')
        p.vm(f'buffer_load_dwordx4 v[44:47], v14, {WS}, s{T3} offen offset:32 sc1')
        p.wait_vm_all()
        p.I(f'''v_cmp_ne_u32 vcc, s{sTAG}, v42
v_cmp_ne_u32 s[{sM}:{sM + 1}], s{sTAG}, v46
s_or_b64 vcc, vcc, s[{sM}:{sM + 1}]
s_cmp_eq_u64 vcc, 0
s_cbranch_scc1 {done}''')
        self.spin_tail(loop, done)
        self.stamp('st3_in')
        for c in ('quad_perm:[1,0,3,2]', 'quad_perm:[2,3,0,1]', 'row_half_mirror'):
            self.dpp_add((40, 41, 44, 45), c)
        self.rstd(40, 41, 768)
        self.rstd(44, 45, 768)
        for dst, src in ((48, 41), (50, 45), (52, 40), (54, 44)):
            p.I(f'v_mov_b32_dpp v{dst}, v{src} row_newbcast:0 row_mask:0xf bank_mask:0xf\n'
                f'v_mov_b32_dpp v{dst + 1}, v{src} row_newbcast:8 row_mask:0xf bank_mask:0xf')
        for ft in range(6):
            for h in range(2):
                x = pr(ACC + 4 * ft + 2 * h)
                p.I(f'v_pk_fma_f32 {x}, {x}, {pr(48 + 2 * h)}, {pr(52 + 2 * h)}')
        for k in range(12):
            p.I(f'v_cvt_pk_bf16_f32 v{TMP + k}, v{ACC + 2 * k}, v{ACC + 2 * k + 1}')
        for F in range(3):
            p.I(f'v_permlane16_swap_b32 v{TMP + 4 * F}, v{TMP + 4 * F + 2}\nv_permlane16_swap_b32 v{TMP + 4 * F + 1}, v{TMP + 4 * F + 3}')
        p.I(f'''s_mul_i32 s{T5}, s{sJ}, {128 * 3072}
s_add_u32 s{T5}, s{T5}, {Z2F}
s_lshl_b32 s{T0}, s{sRB}, 2
s_add_u32 s{T0}, s{T0}, s{sW}
s_mul_i32 s{T0}, s{T0}, 3072
s_add_u32 s{T0}, s{T0}, s{T5}''')
        for F in range(3):
            p.vm(f'buffer_store_dwordx4 v[{TMP + 4 * F}:{TMP + 4 * F + 3}], v{vL16}, {WS}, s{T0} offen offset:{1024 * F} sc1')
        p.I(f'''s_lshl_b32 s{T6}, s{sJ}, 7
s_add_u32 s{T6}, s{T6}, {F_Z2}
s_lshl_b32 s{T1}, s{sRB}, 2
s_add_u32 s{T0}, s{T6}, s{T1}''')
        self.wave0(T0, T0)
        p.wait_vm_all()
        p.I('s_barrier')
        self.flag(T0, 60, False)
        self.stamp('z2_pub')
        te = self.dma_range(sCA, 64, 120, 40960)
        z1addr = lambda n: 40960 + (84 + n) * 1024 if n < 24 else (n - 24) * 1024 if n < 64 else 40960 + (n - 64) * 1024

        def pre1(ks):
            if ks == 10:
                p.wait(vm=te)
                p.I('s_barrier')
        self.gemm16(20, 6, None, 64, lambda ks, n: z1addr(ks * 6 + n), TMP, Z1, pre=pre1,
                    hook=lambda ks: self.wsp_load(4))
        self.wsp_load(64)
        bs = self.srd(SA, P_BSP, 4096)
        p.I(f'''s_lshl_b32 s{T0}, s{sRB}, 7
s_lshl_b32 s{T1}, s{sW}, 5
s_add_u32 s{T0}, s{T0}, s{T1}
v_lshlrev_b32 v4, 1, v11''')
        self.t_b = p.vm(f'buffer_load_ushort v40, v4, {bs}, s{T0} offen')
        self.gelu(Z1, 24, TMP)
        self.stamp('z1_done')

    def p3a(self):
        p = self.p
        ACC, RING, D, Z1 = 136, 44, 6, 16
        p.I(f"""s_lshl_b32 s{T1}, s{sW}, 5
s_add_u32 s{T0}, s{T6}, s{T1}
s_mul_i32 s{T1}, s{sW}, {32 * 3072}
s_add_u32 s{T6}, s{T5}, s{T1}
v_lshrrev_b32 v4, 4, v{vLANE}
v_mul_u32_u24 v12, 768, v4
v_lshl_add_u32 v12, v11, 4, v12
s_lshl_b32 s{T4}, s{sRB}, 2
s_add_u32 s{T4}, s{T4}, s{sW}
s_mul_i32 s{T4}, s{T4}, 24576
s_add_u32 s{T4}, s{T4}, {UF}
s_mul_i32 s{T1}, s{sJ}, 3072
s_add_u32 s{T3}, s{T4}, s{T1}""")
        self.spoll_n(T0, 8)
        self.stamp('z2_in')
        toks = []

        def issue():
            s = len(toks)
            if s % 8 == 0:
                p.I(f"""s_add_u32 s{T5}, s{sRB}, {s // 8}
s_and_b32 s{T5}, s{T5}, 3
s_mul_i32 s{T5}, s{T5}, {8 * 3072}
s_add_u32 s{T5}, s{T5}, s{T6}""")
            for F in range(3):
                r = RING + 12 * (s % D) + 4 * F
                t = p.vm(f'buffer_load_dwordx4 v[{r}:{r + 3}], v{vL16}, {WS}, s{T5} offen offset:{1024 * F} sc1')
            if s % 8 != 7:
                p.I(f's_add_u32 s{T5}, s{T5}, 3072')
            toks.append(t)
        for _ in range(D - 1):
            issue()
        for s in range(32):
            if len(toks) < 32:
                issue()
            if s == 33 - D:
                self.pretouch([f'buffer_load_dword v41, v12, {WS}, s{T3} offen offset:{256 * m} sc1' for m in range(3)])
                p.I(f's_mul_i32 s{sCA}, s{sJ}, 0x1e000\ns_add_u32 s{sCA}, s{sCA}, {WOUTF}\ns_barrier')
                self.dma_rot(sCA, 0, 3, 102400)
            p.wait(vm=toks[s])
            for F in range(3):
                for tt in range(2):
                    r = RING + 12 * (s % D) + 4 * F
                    acc = vr(ACC + 16 * (2 * F + tt), 16)
                    b = 4 * (2 * s + tt)
                    p.I(f'v_mfma_f32_32x32x16_bf16 {acc}, v[{r}:{r + 3}], a[{b}:{b + 3}], {acc if s else 0}')
        self.stamp('p3a_mm')
        p.I(f'''v_and_b32 v4, 31, v{vLANE}
v_mul_u32_u24 v13, 400, v4
v_lshrrev_b32 v4, 5, v{vLANE}
v_lshl_add_u32 v13, v4, 4, v13
s_mul_i32 s{T0}, s{sW}, 25600
v_add_u32 v13, s{T0}, v13
v_lshrrev_b32 v4, 4, v{vLANE}
v_mul_u32_u24 v14, 96, v4
v_mul_u32_u24 v4, 400, v11
s_mul_i32 s{T0}, s{sW}, 6400
v_add3_u32 v14, v14, v4, s{T0}
v_add_u32 v15, 51200, v14''')
        for F in range(3):
            for tt in range(2):
                for q in range(4):
                    r = ACC + 16 * (2 * F + tt) + 4 * q
                    p.ds(f'ds_write_b128 v13, v[{r}:{r + 3}] offset:{tt * 12800 + F * 128 + q * 32}')
        p.wait_lgkm_all()
        p.I('s_barrier')
        G = 44
        toks = []
        for m in range(6):
            for pp in range(4):
                r = G + 24 * pp + 4 * m
                t = p.ds(f'ds_read_b128 v[{r}:{r + 3}], v{14 + (pp >> 1)} offset:{25600 * (pp & 1) + 16 * m}')
            toks.append(t)
        p.wait(vm=self.t_b)
        p.I('v_lshlrev_b32 v42, 16, v40')
        pr = lambda b: f'v[{b}:{b + 1}]'
        for m in range(6):
            p.wait(ds=toks[m])
            for h in range(2):
                r = G + 4 * m + 2 * h
                p.I(f'v_pk_add_f32 {pr(r)}, {pr(r)}, {pr(r + 24)}\nv_pk_add_f32 {pr(r + 48)}, {pr(r + 48)}, {pr(r + 72)}')
            for h in range(2):
                r = G + 4 * m + 2 * h
                p.I(f'v_pk_add_f32 {pr(r)}, {pr(r)}, v[42:43] op_sel_hi:[1,0]')
            for h in range(2):
                r = G + 4 * m + 2 * h
                p.I(f'v_pk_add_f32 {pr(r)}, {pr(r)}, {pr(r + 48)}')
            for h in range(2):
                r = G + 4 * m + 2 * h
                p.I(f'v_pk_mul_f32 {pr(r)}, {pr(r)}, {pr(Z1 + 4 * m + 2 * h)}')
        for k in range(12):
            p.I(f'v_cvt_pk_bf16_f32 v{140 + k}, v{G + 2 * k}, v{G + 2 * k + 1}')
        t = self.lstores([f'buffer_store_dwordx4 v[{140 + 4 * m}:{143 + 4 * m}], v12, {WS}, s{T3} offen offset:{256 * m}'
                          for m in range(3)])
        p.I(f'''s_lshl_b32 s{T6}, s{sRB}, 7
s_lshl_b32 s{T1}, s{sW}, 5
s_add_u32 s{T6}, s{T6}, s{T1}
s_add_u32 s{T6}, s{T6}, {F_U}
s_lshl_b32 s{T1}, s{sJ}, 2
s_add_u32 s{T0}, s{T6}, s{T1}''')
        p.wait(vm=t)
        self.flag(T0, 60, True)
        self.stamp('u_pub')

    def p3b(self):
        p = self.p
        X1, ACC, GB = 232, 36, 16
        p.I('s_barrier')
        t = self.load_vec(40, 3)
        tb = self.dma_range(sCA, 48, 84, 0)
        p.I(f'v_and_b32 v4, 7, v{vLANE}\nv_lshlrev_b32 v4, 2, v4')
        p.wait(ds=t)
        self.unpack(GB, 40, 10)
        self.vpoll(4, 63, T6)
        self.stamp('u_in')
        bt = []
        for ks in range(24):
            bt.append(p.vm(f'buffer_load_dwordx4 v[{64 + 4 * ks}:{67 + 4 * ks}], v{vL16}, {WS}, s{T4} offen offset:{1024 * (ks & 3)} sc1'))
            if ks & 3 == 3:
                p.I(f's_add_u32 s{T4}, s{T4}, 4096')
            if ks == 11:
                tc = self.dma_range(sCA, 84, 120, 36 * 1024)
        p.I('s_barrier')
        addr = lambda n: 102400 + n * 1024 if n < 48 else (n - 48) * 1024

        def pre(ks):
            if ks == 16:
                p.wait(vm=tc)
                p.I('s_barrier')
        self.gemm16(24, 5, bt, 64, lambda ks, n: addr(ks * 5 + n), 160, ACC, pre=pre)
        os_ = self.srd(SA, P_OUT, 2048 * 1280)
        self.stamp('p3b_mm')
        for k in range(10):
            p.I(f'v_pk_fma_f32 v[{X1 + 2 * k}:{X1 + 2 * k + 1}], v[{GB + 2 * k}:{GB + 2 * k + 1}], v[{ACC + 2 * k}:{ACC + 2 * k + 1}], v[{X1 + 2 * k}:{X1 + 2 * k + 1}]')
        for k in range(10):
            p.I(f'v_cvt_pk_bf16_f32 v{64 + k}, v{X1 + 2 * k}, v{X1 + 2 * k + 1}')
        p.vm(f'buffer_store_dwordx4 v[64:67], v7, {os_}, s{sT9} offen')
        p.vm(f'buffer_store_dwordx4 v[68:71], v7, {os_}, s{sT9} offen offset:16')
        p.vm(f'buffer_store_dwordx2 v[72:73], v8, {os_}, s{sT9} offen')

    def build(self):
        p = self.p
        p.L(KNAME)
        stages = [('entry', self.entry), ('roles', self.roles), ('ln', self.ln_stats),
                  ('h', self.make_h), ('p1main', self.p1_main), ('kv', self.p1_kv), ('q', self.p1_q),
                  ('repack1', self.repack_mid), ('o', self.p1_o), ('p2a', self.p2a), ('p2b', self.p2b),
                  ('p3a', self.p3a), ('p3b', self.p3b)]
        for name, fn in stages:
            p.C(f'======== {name}')
            fn()
            if self.o.stop == name:
                break
        p.L('L_fin')
        if self.o.stop is None:
            p.I(f's_or_b32 s{T0}, s{sROLE}, s{sW}\ns_cmp_eq_u32 s{T0}, 0\ns_cselect_b32 s{T0}, {WS_EPOCH}, {OOB}')
            self.flag(T0, 60, False)
        if self.o.stamps:
            self.stamp('end')
            p.I(f'''s_lshl_b32 s{T0}, s{sROLE}, 2
s_add_u32 s{T0}, s{T0}, s{sW}
s_lshl_b32 s{T0}, s{T0}, 8
s_add_u32 s{T0}, s{T0}, {STAMPS}
v_lshlrev_b32 v4, 2, v{vLANE}''')
            p.vm(f'buffer_store_dword v{vSTAMP}, v4, {WS}, s{T0} offen')
            if self.o.dbgrole is not None:
                d = self.srd(SA, P_DBG, 256)
                p.I(f'''v_readlane_b32 s{T1}, v{vSTAMP}, 0
v_subrev_u32 v5, s{T1}, v{vSTAMP}
v_lshlrev_b32 v4, 1, v{vLANE}
s_lshl_b32 s{T0}, s{sROLE}, 2
s_add_u32 s{T0}, s{T0}, s{sW}
s_cmp_eq_u32 s{T0}, {4 * self.o.dbgrole}
s_cselect_b32 s{T0}, 0, {OOB}''')
                p.vm(f'buffer_store_short v5, v4, {d}, s{T0} offen')
        if self.o.pad:
            p.I(f'v_readlane_b32 s{T1}, v{vSTAMP}, 0')
            p.L('L_pad')
            p.sm(f's_memrealtime s[{sM}:{sM + 1}]')
            p.wait_lgkm_all()
            p.I(f's_sub_u32 s{T0}, s{sM}, s{T1}\ns_cmp_lt_u32 s{T0}, {self.o.pad}\ns_cbranch_scc1 L_pad')
        p.I('s_endpgm')
        for lg, lb, texts in self.ool:
            p.L(lg)
            for t in texts:
                p.vm(t, count=False)
            p.I(f's_branch {lb}')
        p.L('L_end')
        p.I('s_endpgm')
        head = open('adaLN_cond__linear_kernel_hedgehog__mixer_gmlp__prompt.s.ref').read().split('\n')
        hdr = [l for l in head if l.startswith(';') and '@launch' not in l and 'Override' not in l and 'grid=ceil' not in l]
        txt = '\n'.join(hdr) + f'\n; @launch grid=(256,1,1) block=(256,1,1) lds={LDS_BYTES}\n'
        txt += f'.amdgcn_target "amdgcn-amd-amdhsa--gfx950"\n.text\n.globl {KNAME}\n.p2align 8\n.type {KNAME},@function\n'
        txt += p.render()
        txt += f'''.section .rodata,"a"
.p2align 6
.amdhsa_kernel {KNAME}
  .amdhsa_next_free_vgpr 512
  .amdhsa_next_free_sgpr 102
  .amdhsa_accum_offset 256
  .amdhsa_group_segment_fixed_size 0
  .amdhsa_kernarg_size 112
  .amdhsa_user_sgpr_count 2
  .amdhsa_user_sgpr_kernarg_segment_ptr 1
  .amdhsa_system_sgpr_workgroup_id_x 1
  .amdhsa_float_denorm_mode_32 3
.end_amdhsa_kernel
'''
        return txt


if __name__ == '__main__':
    import argparse
    ap = argparse.ArgumentParser()
    ap.add_argument('-o', default='mk.s')
    ap.add_argument('--stamps', action='store_true')
    ap.add_argument('--nolocal', action='store_true')
    ap.add_argument('--stop')
    ap.add_argument('--wsbase', type=lambda x: int(x, 0), default=0)
    ap.add_argument('--exp', default='')
    ap.add_argument('--pad', type=int, default=0)
    ap.add_argument('--dbgrole', type=int)
    ap.add_argument('--nont', action='store_true')
    a = ap.parse_args()
    o = Opt()
    o.stamps, o.local, o.stop = a.stamps, not a.nolocal, a.stop
    o.nt = '' if a.nont else ' nt'
    o.dbgrole = a.dbgrole
    o.pad = a.pad
    o.exp = a.exp.split(',')
    o.wsbase = a.wsbase
    g = Gen(o)
    s = g.build()
    open(a.o, 'w').write(s)
    open(a.o + '.stamps', 'w').write('\n'.join(g.stamp_names))
    for w in g.p.warn: print('WARN', w)
    print('instructions', sum(1 for k, _ in g.p.items if k == 'i'), 'nops', g.p.nnop)
```

```python
WS_EPOCH = 0
F_HELLO = 0x1000
F_W1 = 0x1400
F_WO = 0x1C00
F_WIN = 0x2000
F_WOUT = 0x2400
F_KV = 0x2800
F_Z2 = 0x3000
F_M2 = 0x3400
F_WS = 0x3800
F_H = 0x4000
F_O = 0x5000
F_H2 = 0x6000
F_X = 0x9000
F_U = 0x7000
MODG = 0x10000
M2 = 0xE0000
ST2 = 0x20000
ST3 = 0x60000
STAMPS = 0xA0000
HF = 0x100000
W1M = 0x400000
W1T = 0x600000
WOF = 0x700000
WOUTF = 0x800000
W2F = 0x900000
KVP = 0xB00000
OF = 0xD00000
H2F = HF
Z2F = 0x1300000
UF = OF
WSF = 0x1900000
XCH = 0x1000000
DBGX = 0x2100000
WS_USED = 0x2800000
OOB = 0x40000000

L_STG_W1 = 0x1E000
L_STG_WS = 0x1D000
L_STG_R2 = 0x12000
L_STG_WO = 0x22000
L_MOD = 0x24000
L_DUMMY = 0x25000
L_PHS = 0xA000
L_SCR_G1 = 0x25400
L_SCR_LN = 0x26000
L_M2 = 0x25800
L_SCR_G2 = 0x18000
L_WPH = 0x26400
L_KVR = 0x26400
L_ZERO = 0x27400
LDS_BYTES = 0x28000

import os
if os.environ.get('NOALIAS'):
    H2F = 0x2100000
    UF = 0x1600000
```

```python
import sys
sys.path.insert(0, 'gen')
from asmlib import *
from layout import *

KNAME = 'adaLN_cond__linear_kernel_hedgehog__mixer_gmlp__prompt_kernel'


class Opt:
    local = True
    stamps = False
    nt = ' nt'
    dbgrole = None
    pad = 0
    wsbase = 0
    exp = ''
    stop = None


S_WS = 4
SA, SB = 8, 12
P_X, P_WQKV, P_WPHI, P_WO, P_WIN, P_WSP, P_BSP = 16, 18, 20, 22, 26, 28, 30
P_WOUT, P_C, P_WMOD, P_OUT, P_DBG, P_WS = 32, 34, 36, 38, 40, 42
sTAG, sROLE, sW, sX, sI, sR, sC, sRB, sJ, sMODE = 44, 46, 47, 48, 49, 50, 51, 52, 53, 54
T0, T1, T2, T3, T4, T5, T6, T7, T8 = 55, 56, 57, 58, 59, 60, 61, 62, 63
PB = 64
sK2, sT9, sSPIN, sT10 = 96, 97, 100, 101
sBS, sBL, sB1, sB2, sB3, sB4, sB5 = 80, 81, 82, 83, 84, 85, 86
sCA = 24
sM = 98

WS = f's[{S_WS}:{S_WS + 3}]'
vL16, vLANE, vSTAMP = 1, 2, 3

LOG2E = 1.4426950408889634


def f2u(x):
    import struct
    return struct.unpack('<I', struct.pack('<f', x))[0]


class Recorder:
    def __init__(self):
        self.alu, self.lds = [], []

    def I(self, text):
        if not self.lds:
            self.alu += [l.strip() for l in text.strip().split('\n')]

    def ds(self, text):
        self.lds.append(text)


class Gen:
    def __init__(self, opt):
        self.o = opt
        self.p = Prog()
        self.ool = []
        self.nstamp = 0
        self.stamp_names = []
        self.bg = []
        self.tok = {}
        self.fill = []

    def srd(self, q, ptr, nbytes):
        self.p.I(f's_mov_b32 s{q}, s{ptr}\ns_mov_b32 s{q + 1}, s{ptr + 1}\ns_mov_b32 s{q + 2}, {nbytes}\n'
                 f's_mov_b32 s{q + 3}, s{sK2}')
        return f's[{q}:{q + 3}]'

    def stamp(self, name):
        if not self.o.stamps:
            return
        p = self.p
        p.sm('s_memrealtime s[94:95]')
        p.sm('s_memtime s[78:79]')
        p.wait_lgkm_all()
        p.I(f'v_writelane_b32 v{vSTAMP}, s94, {self.nstamp}\nv_writelane_b32 v231, s78, {self.nstamp}')
        self.stamp_names.append(name)
        self.nstamp += 1

    def spin_tail(self, loop, done, sleep=0):
        p = self.p
        if sleep:
            p.I(f's_sleep {sleep}')
        p.I(f's_sub_u32 s{sSPIN}, s{sSPIN}, 1\ns_cbranch_scc0 {loop}\ns_mov_b32 s{sSPIN}, 0')
        p.L(done)

    def spoll_issue(self, soff, n):
        p = self.p
        p.I(f's_add_u32 s{sM}, s{P_WS}, s{soff}\ns_addc_u32 s{sM + 1}, s{P_WS + 1}, 0')
        p.sm(f's_load_dwordx{n} s[{PB}:{PB + n - 1}], s[{sM}:{sM + 1}], 0 glc')

    def spoll_check(self, n):
        p = self.p
        loop, chk, done = p.newlabel('sp'), p.newlabel('spc'), p.newlabel('spd')
        test = f's_xor_b64 s[{PB}:{PB + 1}], s[{PB}:{PB + 1}], s[{sTAG}:{sTAG + 1}]\n'
        for q in range(PB + 2, PB + n, 2):
            test += (f's_xor_b64 s[{q}:{q + 1}], s[{q}:{q + 1}], s[{sTAG}:{sTAG + 1}]\n'
                     f's_or_b64 s[{PB}:{PB + 1}], s[{PB}:{PB + 1}], s[{q}:{q + 1}]\n')
        test += f's_cmp_eq_u64 s[{PB}:{PB + 1}], 0\ns_cbranch_scc1 {done}'
        p.wait_lgkm_all()
        p.I(test)
        p.L(loop)
        p.sm(f's_load_dwordx{n} s[{PB}:{PB + n - 1}], s[{sM}:{sM + 1}], 0 glc')
        p.wait_lgkm_all()
        p.I(test)
        self.spin_tail(loop, done, 2)

    def vpoll(self, vaddr, vtmp, soff):
        p = self.p
        loop, done = p.newlabel('vp'), p.newlabel('vpd')
        p.L(loop)
        p.vm(f'buffer_load_dword v{vtmp}, v{vaddr}, {WS}, s{soff} offen sc1')
        p.wait_vm_all()
        p.I(f'v_cmp_ne_u32 vcc, s{sTAG}, v{vtmp}\ns_cmp_eq_u64 vcc, 0\ns_cbranch_scc1 {done}')
        self.spin_tail(loop, done)

    def lstores(self, texts):
        p = self.p
        if not self.o.local:
            return [p.vm(t + ' sc1') for t in texts][-1]
        lg, lb = p.newlabel('glob'), p.newlabel('back')
        p.I(f's_cmp_eq_u32 s{sMODE}, 0\ns_cbranch_scc1 {lg}')
        tok = [p.vm(t) for t in texts][-1]
        p.L(lb)
        self.ool.append((lg, lb, [t + ' sc1' for t in texts]))
        return tok

    def flag(self, soff, vtmp, local):
        p = self.p
        p.I(f'v_mov_b32 v{vtmp}, s{sTAG}\nv_mov_b32 v{vtmp + 1}, 0\ns_mov_b64 exec, 1')
        t = f'buffer_store_dword v{vtmp}, v{vtmp + 1}, {WS}, s{soff} offen'
        if local:
            self.lstores([t])
        else:
            p.vm(t + ' sc1')
        p.I('s_mov_b64 exec, -1')

    def wave0(self, dst, src):
        self.p.I(f's_cmp_eq_u32 s{sW}, 0\ns_cselect_b32 s{dst}, s{src}, {OOB}')

    def dma(self, soff, lds, n, extra=' sc1'):
        p = self.p
        p.I(f's_mov_b32 m0, s{lds}')
        tok = None
        for k in range(n):
            tok = p.vm(f'buffer_load_dwordx4 v{vL16}, {WS}, s{soff} offen offset:{1024 * k}{extra} lds')
        return tok

    def pump(self, n=1000):
        while n > 0 and self.bg:
            self.bg.pop(0)()
            n -= 1

    def bg_dma(self, src0, n0, n1, lds0, key):
        p = self.p
        per = (n1 - n0) // 4
        assert per * 4 == n1 - n0

        def op(k):
            def f():
                if k == 0:
                    p.I(f"""s_mul_i32 s{sBL}, s{sW}, {per * 1024}
s_add_u32 s{sBS}, s{sBL}, s{src0}
s_add_u32 s{sBS}, s{sBS}, {n0 * 1024}
s_add_u32 s{sBL}, s{sBL}, {lds0}""")
                elif k % 4 == 0:
                    p.I(f's_add_u32 s{sBS}, s{sBS}, 4096\ns_add_u32 s{sBL}, s{sBL}, 4096')
                if k % 4 == 0:
                    p.I(f's_mov_b32 m0, s{sBL}')
                self.tok[key] = p.vm(f'buffer_load_dwordx4 v{vL16}, {WS}, s{sBS} offen offset:{1024 * (k % 4)} sc1 lds')
            return f
        self.bg += [op(k) for k in range(per)]

    def bg_vm(self, text, key=None, pre=None):
        def f():
            if pre:
                self.p.I(pre)
            t = self.p.vm(text)
            if key:
                self.tok[key] = t
        self.bg.append(f)

    def xreduce_sq(self, s, q, t):
        self.p.I(f'''v_permlane16_swap_b32 v{s}, v{q}
v_add_f32 v{s}, v{s}, v{q}
v_mov_b32 v{q}, v{s}
v_permlane32_swap_b32 v{s}, v{q}
v_add_f32 v{s}, v{s}, v{q}
v_mov_b32 v{t}, v{s}
v_permlane16_swap_b32 v{s}, v{t}''')

    def silu_pack(self, src, lo, hi, t):
        self.p.I(f'''v_lshlrev_b32 v{src}, 16, v{src}
v_mul_f32 v{t}, {hex(f2u(-LOG2E))}, v{src}
v_exp_f32 v{t}, v{t}
v_add_f32 v{t}, 1.0, v{t}
v_rcp_f32 v{t}, v{t}
v_mul_f32 v{t}, v{src}, v{t}
v_cvt_pk_bf16_f32 v{lo}, v{t}, 0
v_lshlrev_b32 v{hi}, 16, v{lo}''')

    def merge8(self, a):
        p = self.p
        for b in (a, a + 4):
            p.I(f'v_permlane32_swap_b32 v{b}, v{b + 2}\nv_permlane32_swap_b32 v{b + 1}, v{b + 3}')
        for b in (a, a + 4):
            p.I(f'v_add_f32 v{b}, v{b}, v{b + 2}\nv_add_f32 v{b + 1}, v{b + 1}, v{b + 3}')
        for b in (a, a + 4):
            p.I(f'v_permlane16_swap_b32 v{b}, v{b + 1}')
        for b in (a, a + 4):
            p.I(f'v_add_f32 v{b}, v{b}, v{b + 1}')

    def dpp_add(self, regs, ctrl):
        for r in regs:
            self.p.I(f'v_add_f32_dpp v{r}, v{r}, v{r} {ctrl} row_mask:0xf bank_mask:0xf')

    def unpack(self, dst, src, n):
        for k in range(n):
            self.p.I(f'v_lshlrev_b32 v{dst + 2 * k}, 16, v{src + k}\nv_and_b32 v{dst + 2 * k + 1}, 0xffff0000, v{src + k}')

    def round_add_round(self, a, sdelta, out):
        p = self.p
        p.I(f'v_cvt_pk_bf16_f32 v{out}, v{a}, v{a + 1}\nv_cvt_pk_bf16_f32 v{out + 1}, v{a + 2}, v{a + 3}')
        self.unpack(a, out, 2)
        for k in range(4):
            p.I(f'v_add_f32 v{a + k}, s{sdelta}, v{a + k}')
        p.I(f'v_cvt_pk_bf16_f32 v{out}, v{a}, v{a + 1}\nv_cvt_pk_bf16_f32 v{out + 1}, v{a + 2}, v{a + 3}')

    def stop_here(self, name):
        if self.o.stop == name:
            self.p.I('s_branch L_fin')
            return True
        return False

    def entry(self):
        p = self.p
        nt = self.o.nt
        p.I('s_cmp_ge_u32 s2, 256\ns_cbranch_scc1 L_end')
        if self.o.stamps:
            p.sm('s_memrealtime s[94:95]')
        p.sm(f's_load_dwordx4 s[{P_DBG}:{P_DBG + 3}], s[0:1], 96')
        p.sm(f's_load_dwordx8 s[{P_WOUT}:{P_WOUT + 7}], s[0:1], 64')
        p.sm(f's_load_dwordx16 s[{P_X}:{P_X + 15}], s[0:1], 0')
        p.I(f"""s_and_b32 s{sX}, s2, 7
s_lshr_b32 s{sI}, s2, 3
s_lshl_b32 s3, s{sX}, 5
s_add_u32 s{sROLE}, s3, s{sI}
v_and_b32 v{vLANE}, 63, v0
v_lshrrev_b32 v4, 6, v0
v_lshlrev_b32 v{vL16}, 4, v{vLANE}
v_readfirstlane_b32 s{sW}, v4
s_mov_b32 s{sK2}, 0x20000
s_lshr_b32 s{sR}, s{sROLE}, 4
s_and_b32 s{sC}, s{sROLE}, 15
s_lshr_b32 s{sRB}, s{sROLE}, 3
s_and_b32 s{sJ}, s{sROLE}, 7
s_mov_b32 s{sSPIN}, 400000
v_and_b32 v8, 7, v{vLANE}
v_lshrrev_b32 v9, 3, v0
v_mul_u32_u24 v10, 1280, v8
v_lshl_add_u32 v10, v9, 4, v10
s_cmp_lt_u32 s{sI}, 10
s_cbranch_scc0 L_iw1""")
        p.cond = 'A'
        p.I(f"""s_mul_i32 s{sT9}, s{sX}, 10
s_add_u32 s{sT9}, s{sT9}, s{sI}
s_and_b32 s{T0}, s{sT9}, 3
s_mul_i32 s{T1}, s{T0}, {160 * 7680}
s_mul_i32 s{T2}, s{T0}, 320
s_lshr_b32 s{T0}, s{sT9}, 2
s_lshl_b32 s{T0}, s{T0}, 7
s_add_u32 s{T1}, s{T1}, s{T0}
v_mul_u32_u24 v5, 7680, v9
v_lshl_add_u32 v5, v8, 4, v5
v_lshlrev_b32 v6, 1, v9""")
        p.wait_lgkm_all()
        a = self.srd(SA, P_WMOD, 640 * 7680)
        for k in range(5):
            p.vm(f'buffer_load_dwordx4 v[{136 + 4 * k}:{139 + 4 * k}], v5, {a}, s{T1} offen{nt}')
            if k < 4:
                p.I(f's_add_u32 s{T1}, s{T1}, {32 * 7680}')
        b = self.srd(SB, P_C, 1280)
        for k in range(5):
            self.t_g1 = p.vm(f'buffer_load_ushort v{156 + k}, v6, {b}, s{T2} offen offset:{64 * k}')
        p.I('s_branch L_icommon')
        p.L('L_iw1')
        p.cond = 'B'
        p.I(f"""s_mul_i32 s{sT9}, s{sX}, 20
s_add_u32 s{sT9}, s{sT9}, s{sI}
s_sub_u32 s{sT9}, s{sT9}, 12
v_min_u32 v12, 59, v{vLANE}
v_mul_u32_u24 v13, 13, v12
v_lshrrev_b32 v13, 8, v13
v_mul_u32_u24 v14, 960, v13
v_lshl_add_u32 v14, v12, 4, v14
v_add_u32 v14, 1280, v14
v_subrev_u32 v15, 3840, v14
v_cmp_eq_u32 vcc, 2, v13
v_cndmask_b32 v14, v14, v15, vcc
s_lshr_b32 s{T0}, s{sT9}, 2
s_lshl_b32 s{T0}, s{T0}, 4
s_add_u32 s{T0}, s{T0}, s{sW}
s_mul_i32 s{T0}, s{T0}, 3840
s_and_b32 s{T1}, s{sT9}, 3
s_mul_i32 s{T1}, s{T1}, 320
s_add_u32 s{T0}, s{T0}, s{T1}
s_cmp_ge_u32 s{sI}, 12
s_cselect_b32 s{T0}, s{T0}, {OOB}
s_cselect_b32 s{sT10}, 0, {OOB}
s_lshl_b32 s{T1}, s{sW}, 10
s_add_u32 s{T1}, s{T1}, {L_STG_W1}""")
        p.wait_lgkm_all()
        wq = self.srd(SA, P_WQKV, 640 * 3840)
        for k in range(4):
            p.I(f's_mov_b32 m0, s{T1}')
            p.vm(f'buffer_load_dwordx4 v14, {wq}, s{T0} offen{nt} lds')
            if k < 3:
                p.I(f's_add_u32 s{T0}, s{T0}, {4 * 3840}\ns_add_u32 s{T1}, s{T1}, 4096')
        wo = self.srd(SB, P_WO, 640 * 1280)
        p.I(f"""v_and_b32 v11, 15, v{vLANE}
v_min_u32 v12, 9, v11
v_lshlrev_b32 v12, 4, v12
v_lshrrev_b32 v13, 4, v0
v_and_b32 v15, 7, v13
v_lshrrev_b32 v13, 3, v13
s_lshr_b32 s{T0}, s{sT9}, 3
s_lshl_b32 s{T0}, s{T0}, 2
s_and_b32 s{T2}, s{sT9}, 7
s_mul_i32 s{T2}, s{T2}, 160
s_add_u32 s{T2}, s{T2}, s{sT10}
s_lshl_b32 s{T1}, s{sW}, 10
s_add_u32 s{T1}, s{T1}, {L_STG_WO}""")
        for k in range(2):
            p.I(f"""v_add_u32 v31, s{T0}, v13
v_mul_u32_u24 v32, 205, v31
v_lshrrev_b32 v32, 10, v32
v_mul_u32_u24 v33, 5, v32
v_sub_u32 v33, v31, v33
v_lshl_add_u32 v34, v33, 3, v15
v_add_u32 v35, 4, v34
v_cmp_lt_u32 vcc, 1, v33
v_cndmask_b32 v34, v34, v35, vcc
v_add_u32 v35, 16, v15
v_add_u32 v36, 32, v15
v_cmp_lt_u32 vcc, 3, v15
v_cndmask_b32 v35, v35, v36, vcc
v_cmp_eq_u32 vcc, 4, v33
v_cndmask_b32 v34, v34, v35, vcc
v_mul_u32_u24 v32, 40, v32
v_add_u32 v34, v34, v32
v_mul_u32_u24 v34, 1280, v34
v_add_u32 v34, v34, v12
s_mov_b32 m0, s{T1}""")
            self.t_raw = p.vm(f'buffer_load_dwordx4 v34, {wo}, s{T2} offen{nt} lds')
            if k == 0:
                p.I(f's_add_u32 s{T0}, s{T0}, 2\ns_add_u32 s{T1}, s{T1}, 4096')
        p.cond = False
        p.L('L_icommon')
        p.wait_lgkm_all()
        if self.o.stamps:
            p.I(f'v_mov_b32 v{vSTAMP}, 0\nv_writelane_b32 v{vSTAMP}, s94, 0')
            self.stamp_names.append('entry')
            self.nstamp = 1
            self.stamp('role_iss')
        if self.o.wsbase:
            p.I(f's_add_u32 s{P_WS}, s{P_WS}, {self.o.wsbase}\ns_addc_u32 s{P_WS + 1}, s{P_WS + 1}, 0')
        p.sm(f's_load_dword s{sTAG}, s[{P_WS}:{P_WS + 1}], {WS_EPOCH}')
        xs = self.srd(SA, P_X, 2048 * 1280)
        p.I(f"""s_mul_i32 s{T0}, s{sROLE}, {8 * 1280}
s_cmp_lt_u32 s{sW}, 2
s_cselect_b32 s{T1}, s{T0}, {OOB}""")
        for k in range(3):
            self.t_x = p.vm(f'buffer_load_dwordx4 v[{48 + 4 * k}:{51 + 4 * k}], v10, {xs}, s{T0 if k < 2 else T1} offen offset:{512 * k}')
        p.I(f"""s_getpc_b64 s[{sM}:{sM + 1}]
s_lshl_b32 s{T0}, s{sI}, 2
s_add_u32 s{T0}, s{T0}, s{sW}
s_lshl_b32 s{T0}, s{T0}, 9
v_and_b32 v7, 3, v{vLANE}
v_lshlrev_b32 v7, 7, v7
v_add_u32 v7, s{T0}, v7
v_min_u32 v7, (L_end-L_pc0), v7""")
        p.L('L_pc0')
        p.vm(f'global_load_dword v63, v7, s[{sM}:{sM + 1}]')
        self.srd(S_WS, P_WS, WS_USED)
        wp = self.srd(SB, P_WPHI, 32 * 800)
        p.I(f"""v_lshlrev_b32 v31, 4, v0
v_min_u32 v31, 1584, v31
s_mul_i32 s{T0}, s{sC}, 1600
s_lshl_b32 s{T1}, s{sW}, 10
s_cmp_lt_u32 s{sW}, 2
s_cselect_b32 s{T1}, s{T1}, {(L_DUMMY - L_WPH) & 0xffffffff}
s_add_u32 s{T1}, s{T1}, {L_WPH}
s_mov_b32 m0, s{T1}""")
        self.t_wphi = p.vm(f'buffer_load_dwordx4 v31, {wp}, s{T0} offen lds')
        p.I(f"""v_lshlrev_b32 v12, 9, v9
v_lshl_add_u32 v12, v8, 4, v12
s_lshr_b32 s{sB1}, s{sROLE}, 2
s_mul_i32 s{sB1}, s{sB1}, 40960
s_and_b32 s{sB2}, s{sROLE}, 3
s_lshl_b32 s{sB2}, s{sB2}, 7
s_add_u32 s{sB1}, s{sB1}, s{sB2}
s_add_u32 s{sB1}, s{sB1}, {HF}
s_add_u32 s{sB2}, s{sB1}, 16384
s_add_u32 s{sB3}, s{sB1}, 32768
s_cmp_lt_u32 s{sW}, 2
s_cselect_b32 s{sB3}, s{sB3}, {OOB}""")
        p.I(f"""v_mov_b32 v46, 0
v_mov_b32 v47, 0
v_lshlrev_b32 v45, 3, v0
v_add_u32 v45, {L_ZERO}, v45""")
        p.ds('ds_write_b64 v45, v[46:47]')
        p.wait_lgkm_all()
        p.I(f"""s_mul_i32 s{sTAG}, s{sTAG}, 0x2c1b3c6d
s_add_u32 s{sTAG}, s{sTAG}, 0x297a2d39
s_mov_b32 s{sTAG + 1}, s{sTAG}
s_mov_b32 s{sMODE}, 0""")
        if self.o.local:
            p.I(f"""s_getreg_b32 s{T0}, hwreg(HW_REG_XCC_ID, 0, 4)
s_lshl_b32 s{T1}, s{sROLE}, 2
s_add_u32 s{T1}, s{T1}, {F_HELLO}
s_add_u32 s{sCA}, s{T0}, s{sTAG}
s_add_u32 s{sCA}, s{sCA}, 1""")
            self.wave0(T1, T1)
            p.I(f'v_mov_b32 v45, s{sCA}\ns_mov_b64 exec, 1')
            p.vm(f'buffer_store_dword v45, v46, {WS}, s{T1} offen sc1')
            p.I('s_mov_b64 exec, -1')
        self.stamp('issued')

    def touch_first(self):
        p = self.p
        if self.o.local:
            for so in (sB1, sB2, sB3):
                p.vm(f'buffer_load_dword v63, v12, {WS}, s{so} offen {"nt" if "ptnt" in self.o.exp else "sc1"}')
            p.I(f"""v_and_b32 v35, 1, v{vLANE}
v_lshrrev_b32 v31, 4, v{vLANE}
v_lshlrev_b32 v31, 12, v31
v_mov_b32 v32, s{sRB}
v_lshl_add_u32 v32, v32, 7, v31
v_mov_b32 v33, s{sR}
v_lshlrev_b32 v34, 7, v33
v_lshl_add_u32 v33, v33, 8, v31
v_lshl_add_u32 v33, v35, 7, v33
v_cmp_gt_u32 vcc, 32, v{vLANE}
v_cndmask_b32 v32, v32, v33, vcc
v_cmp_gt_u32 vcc, 16, v{vLANE}
v_cndmask_b32 v32, v32, v34, vcc
s_mov_b32 s{T0}, {F_H}""")
            p.vm(f'buffer_load_dword v63, v32, {WS}, s{T0} offen sc1')

    def gemv(self, n, data, cval, scr):
        p = self.p
        for k in range(n):
            self.silu_pack(cval + k, 168 + 2 * k, 169 + 2 * k, 167)
        for c in range(8):
            p.I(f'v_mov_b32 v{180 + c}, 0')
        for k in range(n):
            for d in range(4):
                p.I(f'v_dot2c_f32_bf16 v{180 + 2 * d}, v{data + 4 * k + d}, v{168 + 2 * k}\n'
                    f'v_dot2c_f32_bf16 v{181 + 2 * d}, v{data + 4 * k + d}, v{169 + 2 * k}')
        self.merge8(180)
        self.dpp_add((180, 184), 'row_ror:8')
        p.I(f"""v_and_b32 v167, 7, v{vLANE}
v_lshrrev_b32 v168, 4, v{vLANE}
v_lshl_add_u32 v167, v167, 3, v168
v_lshlrev_b32 v167, 2, v167
s_lshl_b32 s{T0}, s{sW}, 8
s_add_u32 s{T0}, s{T0}, {scr}
v_add_u32 v167, s{T0}, v167""")
        p.ds('ds_write_b32 v167, v180')
        p.ds('ds_write_b32 v167, v184 offset:16')
        p.I(f'v_min_u32 v167, 21, v{vLANE}\nv_mul_u32_u24 v168, 12, v167\nv_add_u32 v168, {scr}, v168')

    def gemv_pub(self, soff):
        p = self.p
        for w in range(4):
            p.ds(f'ds_read2_b32 v[{170 + 4 * w}:{171 + 4 * w}], v168 offset0:{64 * w} offset1:{64 * w + 1}')
            t = p.ds(f'ds_read_b32 v{172 + 4 * w}, v168 offset:{256 * w + 8}')
        self.wave0(soff, soff)
        p.I(f'v_lshlrev_b32 v167, 4, v167\nv_mov_b32 v191, s{sTAG}')
        p.wait(ds=t, force=True)
        for d in range(3):
            p.I(f'v_add_f32 v{170 + d}, v{170 + d}, v{174 + d}\nv_add_f32 v{178 + d}, v{178 + d}, v{182 + d}')
        for d in range(3):
            p.I(f'v_add_f32 v{188 + d}, v{170 + d}, v{178 + d}')
        p.I('s_mov_b32 exec_lo, 0x3fffff\ns_mov_b32 exec_hi, 0')
        p.vm(f'buffer_store_dwordx4 v[188:191], v167, {WS}, s{soff} offen sc1')
        p.I('s_mov_b64 exec, -1')

    def trbase16(self, dst, rowbytes, t):
        sh = rowbytes.bit_length() - 1
        self.p.I(f"""v_lshrrev_b32 v{dst}, 4, v{vLANE}
v_bfe_u32 v{t}, v{vLANE}, 2, 2
v_lshl_add_u32 v{dst}, v{dst}, 3, v{t}
v_lshlrev_b32 v{dst}, {sh}, v{dst}
v_and_b32 v{t}, 3, v{vLANE}""")

    def repack5_addr(self, stg):
        p = self.p
        self.trbase16(31, 256, 32)
        p.I(f"""s_lshl_b32 s{T0}, s{sW}, 3
s_add_u32 s{T0}, s{T0}, {stg}
v_lshl_add_u32 v33, v32, 5, v31
v_add_u32 v33, s{T0}, v33
v_lshl_add_u32 v34, v32, 3, v31
v_add_u32 v34, {stg + 128}, v34""")

    def repack5(self, sdst, fr):
        p = self.p
        p.ds(f'ds_read_b64_tr_b16 v[{fr}:{fr + 1}], v33')
        t1 = p.ds(f'ds_read_b64_tr_b16 v[{fr + 2}:{fr + 3}], v33 offset:1024')
        p.ds(f'ds_read_b64_tr_b16 v[{fr + 4}:{fr + 5}], v34')
        t2 = p.ds(f'ds_read_b64_tr_b16 v[{fr + 6}:{fr + 7}], v34 offset:1024')
        p.I(f"""s_lshl_b32 s{T1}, s{sW}, 10
s_add_u32 s{T1}, s{T1}, s{sdst}
s_add_u32 s{T0}, s{sdst}, 4096""")
        self.wave0(T0, T0)
        p.wait(ds=t2, force=True)
        p.vm(f'buffer_store_dwordx4 v[{fr}:{fr + 3}], v{vL16}, {WS}, s{T1} offen sc1')
        return p.vm(f'buffer_store_dwordx4 v[{fr + 4}:{fr + 7}], v{vL16}, {WS}, s{T0} offen sc1')

    def flag_ks(self, base, nvalid):
        self.p.I(f"""s_lshl_b32 s{T0}, s{sJ}, 7
s_lshl_b32 s{T1}, s{sRB}, 2
s_add_u32 s{T0}, s{T0}, s{T1}
s_add_u32 s{T0}, s{T0}, {base}
s_cmp_lt_u32 s{sRB}, {nvalid}
s_cselect_b32 s{T0}, s{T0}, {OOB}""")
        self.wave0(T0, T0)

    def roles(self):
        p = self.p
        p.I(f"""v_bfe_u32 v41, v{vLANE}, 4, 1
v_bfe_u32 v42, v{vLANE}, 1, 1
v_lshl_add_u32 v41, v41, 1, v42
v_lshlrev_b32 v41, 2, v41
v_and_b32 v42, 1, v{vLANE}
v_bfe_u32 v43, v{vLANE}, 2, 2
v_lshrrev_b32 v44, 5, v{vLANE}
s_cmp_lt_u32 s{sI}, 10
s_cbranch_scc0 L_rw1""")
        p.cond = 'A'
        p.wait(vm=self.t_g1)
        self.gemv(5, 136, 156, L_SCR_G1)
        p.I(f's_mul_i32 s{T2}, s{sT9}, 384\ns_add_u32 s{T2}, s{T2}, {MODG}')
        p.wait_lgkm_all()
        p.I('s_barrier')
        self.gemv_pub(T2)
        p.wait(vm=self.t_wphi)
        p.I(f's_mov_b32 s{T6}, {OOB}\ns_mov_b32 s{T7}, {OOB}\ns_branch L_rcommon')
        p.L('L_rw1')
        p.cond = 'B'
        p.I(f"""v_lshl_add_u32 v35, v44, 3, v43
v_lshlrev_b32 v35, 10, v35
v_mul_u32_u24 v36, 40, v42
s_mul_i32 s{T0}, s{sW}, 80
s_add_u32 s{T0}, s{T0}, {L_STG_W1}
v_add3_u32 v35, v35, v36, s{T0}""")
        for T in range(4):
            p.I(f"""v_add_u32 v36, {16 * T}, v41
v_mul_u32_u24 v37, 13, v36
v_lshrrev_b32 v37, 8, v37
v_mul_u32_u24 v37, 280, v37
v_lshl_add_u32 v37, v36, 1, v37
v_add_u32 v{16 + T}, v37, v35""")
        self.repack5_addr(L_STG_WO)
        p.I(f"""s_and_b32 s{T0}, s{sT9}, 3
s_lshl_b32 s{T6}, s{T0}, 8
s_lshl_b32 s{T0}, s{T0}, 2
s_add_u32 s{T0}, s{T0}, s{sW}
s_lshr_b32 s{T1}, s{sT9}, 2
s_mul_i32 s{T2}, s{T0}, 0x1e000
s_mul_i32 s{T3}, s{T1}, 3072
s_add_u32 s{T2}, s{T2}, s{T3}
s_add_u32 s{T2}, s{T2}, {W1M}
s_add_u32 s{T2}, s{T2}, s{sT10}
s_mul_i32 s{T3}, s{T0}, 0xa000
s_lshl_b32 s{T4}, s{T1}, 10
s_add_u32 s{T3}, s{T3}, s{T4}
s_add_u32 s{T3}, s{T3}, {W1T}
s_add_u32 s{T3}, s{T3}, s{sT10}
s_lshl_b32 s{T1}, s{T1}, 2
s_add_u32 s{T6}, s{T6}, s{T1}
s_add_u32 s{T6}, s{T6}, {F_W1}
s_add_u32 s{T6}, s{T6}, s{sT10}
s_and_b32 s{T0}, s{sT9}, 7
s_lshr_b32 s{T1}, s{sT9}, 3
s_mul_i32 s{T4}, s{T0}, 0x19000
s_mul_i32 s{T5}, s{T1}, 5120
s_add_u32 s{T4}, s{T4}, s{T5}
s_add_u32 s{T4}, s{T4}, {WOF}
s_add_u32 s{T4}, s{T4}, s{sT10}
s_lshl_b32 s{T7}, s{T0}, 7
s_lshl_b32 s{T1}, s{T1}, 2
s_add_u32 s{T7}, s{T7}, s{T1}
s_add_u32 s{T7}, s{T7}, {F_WO}
s_add_u32 s{T7}, s{T7}, s{sT10}""")
        p.wait(vm=self.t_raw)
        p.I('s_barrier')
        for T in range(4):
            p.ds(f'ds_read_b64_tr_b16 v[{180 + 4 * T}:{181 + 4 * T}], v{16 + T}')
            t = p.ds(f'ds_read_b64_tr_b16 v[{182 + 4 * T}:{183 + 4 * T}], v{16 + T} offset:4096')
        p.wait(ds=t, force=True)
        for T in range(3):
            p.vm(f'buffer_store_dwordx4 v[{180 + 4 * T}:{183 + 4 * T}], v{vL16}, {WS}, s{T2} offen offset:{1024 * T} sc1')
        p.vm(f'buffer_store_dwordx4 v[192:195], v{vL16}, {WS}, s{T3} offen sc1')
        self.t_rp = self.repack5(T4, 196)
        p.wait(vm=self.t_wphi)
        p.cond = False
        p.L('L_rcommon')
        p.vm_done = max(p.vm_done, self.t_wphi)
        p.ds_done = p.last_ds()
        self.stamp('role_done')
        self.touch_first()

    def ln_stats(self):
        p = self.p
        p.wait(vm=self.t_x)
        p.I('v_mov_b32 v16, 0\nv_mov_b32 v17, 0\nv_mov_b32 v18, 0x3f803f80')
        for k in range(12):
            p.I(f'v_dot2c_f32_bf16 v16, v{48 + k}, v18\nv_dot2c_f32_bf16 v17, v{48 + k}, v{48 + k}')
        self.dpp_add((16, 17), 'row_ror:8')
        p.I(f"""v_permlane16_swap_b32 v16, v17
v_add_f32 v16, v16, v17
v_mov_b32 v17, v16
v_permlane32_swap_b32 v16, v17
v_add_f32 v16, v16, v17
v_bfe_u32 v18, v{vLANE}, 4, 1
v_lshlrev_b32 v18, 5, v18
v_lshl_add_u32 v18, v8, 2, v18
s_lshl_b32 s{T0}, s{sW}, 6
s_add_u32 s{T0}, s{T0}, {L_SCR_LN}
v_add_u32 v18, s{T0}, v18""")
        p.ds('ds_write_b32 v18, v16')
        p.I(f"""v_mul_u32_u24 v36, 800, v42
v_mul_u32_u24 v37, 40, v43
v_add_u32 v36, v36, v37
v_lshl_add_u32 v36, v41, 1, v36
v_add_u32 v36, {L_WPH}, v36
v_mov_b32 v39, {L_ZERO}
v_cmp_eq_u32 vcc, v42, v44
v_cndmask_b32 v37, v39, v36, vcc
v_add_u32 v38, 32, v37
v_cmp_eq_u32 vcc, 0, v41
v_cndmask_b32 v38, v39, v38, vcc""")
        self.wave0(T6, T6)
        self.wave0(T7, T7)
        self.unpack(96, 48, 12)
        p.wait(vm=self.t_rp)
        p.wait_lgkm_all()
        p.I('s_barrier')
        self.flag(T6, 46, False)
        self.flag(T7, 46, False)
        self.stamp('w1_pub')
        p.I(f'v_lshlrev_b32 v18, 2, v8\nv_add_u32 v18, {L_SCR_LN}, v18')
        for w in range(4):
            t = p.ds(f'ds_read2_b32 v[{20 + 2 * w}:{21 + 2 * w}], v18 offset0:{16 * w} offset1:{16 * w + 8}')
        for mt in range(2):
            for kap in range(3):
                fr = 232 + 12 * mt + 4 * kap
                p.ds(f'ds_read_b64_tr_b16 v[{fr}:{fr + 1}], v{37 + mt} offset:{320 * kap}')
                if kap < 2:
                    p.ds(f'ds_read_b64_tr_b16 v[{fr + 2}:{fr + 3}], v{37 + mt} offset:{320 * kap + 160}')
                else:
                    p.I(f'v_mov_b32 v{fr + 2}, 0\nv_mov_b32 v{fr + 3}, 0')
        p.wait(ds=t)
        p.I("""v_add_f32 v20, v20, v22
v_add_f32 v21, v21, v23
v_add_f32 v24, v24, v26
v_add_f32 v25, v25, v27
v_add_f32 v16, v20, v24
v_add_f32 v17, v21, v25""")
        self.rstd(16, 17, 640)
        for e in range(24):
            p.I(f'v_fma_f32 v{96 + e}, v{96 + e}, v17, v16')
        for e in range(24):
            if e % 2 == 0:
                p.I(f'v_cvt_pk_bf16_f32 v{64 + e}, v{96 + e}, 0')
            else:
                p.I(f'v_cvt_pk_bf16_f32 v{64 + e}, 0, v{96 + e}')
        self.stamp('ln_done')

    def pretouch(self, texts):
        if self.o.local:
            for t in texts:
                self.p.vm(t)

    def mod_finish(self, data, nset, npart, vdelta, vlds):
        p = self.p
        for s_ in range(nset):
            b = data + 4 * npart * s_
            for k in range(1, npart):
                for d in range(3):
                    p.I(f'v_add_f32 v{b + d}, v{b + d}, v{b + 4 * k + d}')
            p.I(f"""v_cvt_pk_bf16_f32 v{b + 4}, v{b}, v{b + 1}
v_cvt_pk_bf16_f32 v{b + 5}, v{b + 2}, v{b + 2}
v_lshlrev_b32 v{b}, 16, v{b + 4}
v_and_b32 v{b + 1}, 0xffff0000, v{b + 4}
v_lshlrev_b32 v{b + 2}, 16, v{b + 5}
v_add_f32 v{b}, v{b}, v{vdelta + s_}
v_add_f32 v{b + 1}, v{b + 1}, v{vdelta + s_}
v_add_f32 v{b + 2}, v{b + 2}, v{vdelta + s_}
v_cvt_pk_bf16_f32 v{b + 4}, v{b}, v{b + 1}
v_cvt_pk_bf16_f32 v{b + 5}, v{b + 2}, v{b + 2}""")
            p.ds(f'ds_write_b16 v{vlds + s_}, v{b + 4}')
            p.ds(f'ds_write_b16_d16_hi v{vlds + s_}, v{b + 4} offset:2')
            p.ds(f'ds_write_b16 v{vlds + s_}, v{b + 5} offset:4')

    def make_h(self):
        p = self.p
        p.I(f's_mov_b32 s{T2}, {L_MOD}')
        for s_ in range(2):
            p.I(f"""v_add_u32 v31, {256 * s_}, v0
v_min_u32 v31, 439, v31
v_mul_u32_u24 v32, 2979, v31
v_lshrrev_b32 v32, 16, v32
v_mul_u32_u24 v33, 22, v32
v_sub_u32 v33, v31, v33
v_mul_u32_u24 v34, 1536, v32
v_lshl_add_u32 v{20 + s_}, v33, 4, v34
v_mul_u32_u24 v34, 144, v32
v_mul_u32_u24 v33, 6, v33
v_add3_u32 v{22 + s_}, v33, v34, s{T2}
v_cmp_lt_u32 vcc, 9, v32
v_cndmask_b32 v{24 + s_}, 0, 1.0, vcc""")
        p.I(f"""v_min_u32 v26, 39, v{vLANE}
v_lshlrev_b32 v26, 2, v26
v_and_b32 v27, 31, v{vLANE}
v_lshlrev_b32 v27, 2, v27
v_lshrrev_b32 v13, 3, v9
v_mul_u32_u24 v13, 144, v13
v_and_b32 v28, 7, v9
v_lshl_add_u32 v13, v28, 4, v13
v_add_u32 v13, {L_MOD}, v13
s_mov_b32 s{T0}, {MODG}
s_lshr_b32 s{T1}, s{sC}, 2
s_lshl_b32 s{T1}, s{T1}, 8
s_add_u32 s{T1}, s{T1}, {F_W1}
s_lshl_b32 s{T2}, s{sX}, 7
s_add_u32 s{T2}, s{T2}, {F_HELLO}
s_add_u32 s{T6}, s{sTAG}, 1
v_mov_b32 v29, s{sTAG}
s_mul_i32 s{T7}, s{sC}, 0x1e000
s_mul_i32 s{T8}, s{sW}, 3072
s_add_u32 s{T7}, s{T7}, s{T8}
s_add_u32 s{T7}, s{T7}, {W1M}
s_lshl_b32 s{T3}, s{sR}, 7
s_add_u32 s{T3}, s{T3}, {F_H}
s_lshl_b32 s{T4}, s{sC}, 2
s_add_u32 s{T4}, s{T4}, s{T3}
s_lshl_b32 s{T5}, s{sW}, 4
s_add_u32 s{T3}, s{T3}, s{T5}
v_and_b32 v14, 3, v{vLANE}
v_lshlrev_b32 v14, 2, v14""")
        self.wave0(T4, T4)
        p.wait_vm_all()
        self.stamp('raws_in')
        loop, done = p.newlabel('mg'), p.newlabel('mgd')
        p.L(loop)
        for s_ in range(2):
            for k in range(4):
                r = 96 + 16 * s_ + 4 * k
                p.vm(f'buffer_load_dwordx4 v[{r}:{r + 3}], v{20 + s_}, {WS}, s{T0} offen offset:{384 * k} sc1')
        if self.o.local:
            p.vm(f'buffer_load_dword v31, v27, {WS}, s{T2} offen sc1')
        p.wait_vm_all()
        p.I('v_xor_b32 v30, v99, v29')
        for n in range(1, 8):
            p.I(f'v_bitop3_b32 v30, v30, v{99 + 4 * n}, v29 bitop3:0xf6')
        if self.o.local:
            p.I(f'v_subrev_u32 v32, s{T6}, v31\nv_lshrrev_b32 v32, 4, v32\nv_or_b32 v30, v30, v32')
        p.I(f'v_cmp_ne_u32 vcc, 0, v30\ns_cmp_eq_u64 vcc, 0\ns_cbranch_scc1 {done}')
        self.spin_tail(loop, done, 6)
        self.stamp('mod_in')
        self.mod_finish(96, 2, 4, 24, 22)
        if self.o.local:
            p.I(f'v_cmp_ne_u32 vcc, s{sCA}, v31\ns_cmp_eq_u64 vcc, 0\ns_cselect_b32 s{sMODE}, 1, 0')
        p.wait_lgkm_all()
        p.I('s_barrier')
        tw = p.vm(f'buffer_load_dword v35, v26, {WS}, s{T1} offen sc1')
        toks = []
        for k in range(3):
            p.ds(f'ds_read_b128 v[{96 + 8 * k}:{99 + 8 * k}], v13 offset:{576 * k}')
            toks.append(p.ds(f'ds_read_b128 v[{100 + 8 * k}:{103 + 8 * k}], v13 offset:{576 * k + 1440}'))
        for k in range(3):
            p.wait(ds=toks[k])
            self.unpack(144 + 8 * k, 96 + 8 * k, 4)
            for e in range(8):
                p.I(f'v_dot2c_f32_bf16 v{144 + 8 * k + e}, v{64 + 8 * k + e}, v{100 + 8 * k + (e >> 1)}')
        for k in range(3):
            for d in range(4):
                p.I(f'v_cvt_pk_bf16_f32 v{168 + 4 * k + d}, v{144 + 8 * k + 2 * d}, v{145 + 8 * k + 2 * d}')
        t = self.lstores([f'buffer_store_dwordx4 v[{168 + 4 * k}:{171 + 4 * k}], v12, {WS}, s{so} offen'
                          for k, so in enumerate((sB1, sB2, sB3))])
        p.I(f"""s_lshl_b32 s{T6}, s{sR}, 2
s_add_u32 s{T6}, s{T6}, s{sW}
s_mul_i32 s{T6}, s{T6}, 40960
s_add_u32 s{T6}, s{T6}, {HF}
v_add_u32 v5, 0x10000, v{vL16}
v_add_u32 v6, 0x20000, v{vL16}""")
        p.wait(vm=tw)
        p.I(f'v_cmp_ne_u32 vcc, s{sTAG}, v35\ns_cmp_eq_u64 vcc, 0\ns_cselect_b32 s{sT10}, 1, 0\ns_cbranch_scc0 L_w1late')
        self.chunk_tok = []
        p.cond = 'C'
        for _ in range(self.EARLY_C):
            self.issue_chunk()
        p.wait(vm=t)
        p.cond = False
        p.I('s_branch L_w1go')
        p.L('L_w1late')
        p.wait(vm=t)
        p.L('L_w1go')
        p.I('s_barrier')
        self.flag(T4, 46, True)
        self.stamp('h_pub')
        p.I(f's_cmp_eq_u32 s{sT10}, 1\ns_cbranch_scc1 L_w1ok')
        p.cond = 'D'
        self.vpoll(26, 35, T1)
        self.chunk_tok = []
        for _ in range(self.EARLY_C):
            self.issue_chunk()
        p.cond = False
        p.L('L_w1ok')
        for _ in range(self.LA_C - self.EARLY_C):
            self.issue_chunk()

    EARLY_C = 3
    LA_C = 5

    def issue_chunk(self):
        p = self.p
        self.chunk_tok.append(self.dma(T7, T8, 3))
        p.I(f's_add_u32 s{T7}, s{T7}, 12288\ns_add_u32 s{T8}, s{T8}, 12288')

    def pfill(self, n=10000):
        while n > 0 and self.fill:
            u = self.fill.pop(0)
            self.p.I(u)
            n -= u.count('\n') + 1

    def addfill(self, text):
        self.fill += [l.replace(' && ', '\n') for l in text.strip().split('\n')]

    def p1_addresses(self):
        L = vLANE
        self.addfill(f"""v_and_b32 v4, 31, v{L}
v_lshrrev_b32 v12, 5, v{L}
v_lshrrev_b32 v13, 4, v{L}
v_and_b32 v11, 15, v{L}
v_min_u32 v14, 23, v4
v_lshlrev_b32 v22, 4, v14
v_add_u32 v15, 1536, v22
v_subrev_u32 v22, 192, v22
v_cmp_gt_u32 vcc, 12, v14 && v_cndmask_b32 v22, v22, v15, vcc
v_lshrrev_b32 v15, 5, v0
v_mul_u32_u24 v15, 3072, v15
v_add_u32 v22, v22, v15
s_mul_i32 s{T0}, s{sRB}, {32 * 3072}
s_mul_i32 s{T1}, s{sJ}, 192
s_add_u32 s{T0}, s{T0}, s{T1}
s_cmp_lt_u32 s{sRB}, 20 && s_cselect_b32 s{sB1}, s{T0}, {OOB}
v_lshrrev_b32 v23, 3, v0
v_lshlrev_b32 v24, 1, v23
v_mul_u32_u24 v23, 7680, v23
v_and_b32 v15, 7, v0
v_lshl_add_u32 v23, v15, 4, v23
s_mul_i32 s{sT9}, s{sX}, 25
s_add_u32 s{sT9}, s{sT9}, s{sI}
s_mul_i32 s{T0}, s{sT9}, 205
s_lshr_b32 s{T0}, s{T0}, 10
s_mul_i32 s{T1}, s{T0}, 5
s_sub_u32 s{T1}, s{sT9}, s{T1}
s_lshl_b32 s{sB3}, s{T1}, 8
s_mul_i32 s{T1}, s{T1}, {128 * 7680}
s_lshl_b32 s{T0}, s{T0}, 7
s_add_u32 s{T0}, s{T0}, s{T1}
s_add_u32 s{T0}, s{T0}, 2560
s_cmp_lt_u32 s{sI}, 25 && s_cselect_b32 s{sB2}, s{T0}, {OOB}
v_min_u32 v15, 9, v11
v_lshrrev_b32 v25, 4, v0
v_mul_u32_u24 v25, 1280, v25
v_lshl_add_u32 v25, v15, 4, v25
s_mul_i32 s{T0}, s{sRB}, {32 * 1280}
s_mul_i32 s{T1}, s{sJ}, 160
s_add_u32 s{T0}, s{T0}, s{T1}
s_cmp_lt_u32 s{sRB}, 24 && s_cselect_b32 s{sB4}, s{T0}, {OOB}
s_add_u32 s{sB5}, s{sB4}, {16 * 1280}
s_mul_i32 s{sBL}, s{sW}, 10240
s_mul_i32 s{T0}, s{sC}, 0xa000
s_add_u32 s{sBS}, s{sBL}, s{T0}
s_add_u32 s{sBS}, s{sBS}, {W1T}""")
        for q, ptr, nb in ((SA, P_WIN, 640 * 3072), (SB, P_WMOD, 640 * 7680), (PB, P_C, 1280), (PB + 4, P_WOUT, 768 * 1280)):
            self.addfill(f's_mov_b32 s{q}, s{ptr}\ns_mov_b32 s{q + 1}, s{ptr + 1}\ns_mov_b32 s{q + 2}, {nb}\ns_mov_b32 s{q + 3}, s{sK2}')
        self.addfill(f"""v_lshlrev_b32 v16, 14, v12
v_lshl_add_u32 v16, v4, 7, v16
s_lshl_b32 s{T0}, s{sW}, 12
s_add_u32 s{T0}, s{T0}, {L_PHS}
v_add_u32 v16, s{T0}, v16
v_bfe_u32 v14, v{L}, 1, 1
v_bfe_u32 v15, v{L}, 2, 1
v_lshl_add_u32 v15, v14, 1, v15
v_and_b32 v21, 1, v{L}
v_lshl_add_u32 v15, v15, 1, v21
v_lshl_add_u32 v16, v15, 4, v16
v_bfe_u32 v15, v{L}, 2, 2
v_lshl_add_u32 v20, v12, 3, v15
v_lshlrev_b32 v20, 7, v20
s_lshr_b32 s{T0}, s{sW}, 1
s_lshl_b32 s{T0}, s{T0}, 14
s_add_u32 s{T0}, s{T0}, {L_PHS}
v_add_u32 v20, s{T0}, v20
v_lshrrev_b32 v26, 1, v15
v_and_b32 v15, 1, v15
v_lshl_add_u32 v26, v26, 2, v15
v_bfe_u32 v15, v{L}, 4, 1
v_lshl_add_u32 v17, v15, 1, v21
s_and_b32 s{T1}, s{sW}, 1
s_lshl_b32 s{T2}, s{T1}, 2
v_add_u32 v17, s{T2}, v17
v_xor_b32 v17, v17, v26
v_lshlrev_b32 v17, 4, v17
v_lshl_add_u32 v17, v14, 3, v17
v_xor_b32 v18, 32, v17
v_add_u32 v17, v17, v20
s_mov_b32 s{T2}, 512
v_add3_u32 v18, v18, v20, s{T2}
v_lshl_add_u32 v19, v15, 1, v14
v_add_u32 v19, 5, v19
v_min_u32 v19, 7, v19
v_xor_b32 v19, v19, v26
v_lshlrev_b32 v19, 4, v19
v_lshl_add_u32 v19, v21, 3, v19
v_xor_b32 v26, 32, v19
v_add_u32 v19, v19, v20
v_add3_u32 v20, v26, v20, s{T2}
s_lshl_b32 s{T2}, s{T1}, 5
v_and_b32 v15, s{T2}, v{L}
v_add_u32 v15, v4, v15
v_mov_b32 v26, {OOB}
v_cmp_lt_u32 vcc, 20, v15 && v_cndmask_b32 v21, v{vL16}, v26, vcc
s_lshl_b32 s{T0}, s{sC}, 4
s_add_u32 s{T0}, s{T0}, s{sR}
s_mul_i32 s{T0}, s{T0}, 5120
s_lshr_b32 s{T2}, s{sW}, 1
s_mul_i32 s{T2}, s{T2}, 2560
s_add_u32 s{T0}, s{T0}, s{T2}
s_lshl_b32 s{T2}, s{T1}, 11
s_add_u32 s{T0}, s{T0}, s{T2}
s_add_u32 s87, s{T0}, {KVP}
s_cmp_eq_u32 s{T1}, 0 && s_cselect_b32 s88, s87, {OOB}
s_lshl_b32 s{T5}, s{sC}, 7
s_add_u32 s{T5}, s{T5}, {F_KV}
s_lshl_b32 s{T3}, s{sR}, 2
s_add_u32 s{T4}, s{T5}, s{T3}
s_cmp_eq_u32 s{sW}, 0 && s_cselect_b32 s{T4}, s{T4}, {OOB}""")
        self.addfill(f"""v_mul_u32_u24 v31, 3121, v0
v_lshrrev_b32 v31, 16, v31
v_mul_u32_u24 v32, 21, v31
v_sub_u32 v32, v0, v32
v_lshlrev_b32 v32, 4, v32
v_mul_u32_u24 v15, 384, v31
v_lshl_add_u32 v31, v31, 9, v32
s_mov_b32 s{T2}, {L_KVR}
v_add3_u32 v32, v15, v32, s{T2}
v_mov_b32 v15, {L_ZERO + 2048}
v_cmp_gt_u32 vcc, 210, v0 && v_cndmask_b32 v31, v26, v31, vcc && v_cndmask_b32 v32, v15, v32, vcc
v_bfe_u32 v14, v{L}, 3, 2
v_and_b32 v15, 3, v{L}
v_lshl_add_u32 v14, v14, 2, v15
v_bfe_u32 v15, v{L}, 2, 1
v_mul_u32_u24 v33, 1920, v15
v_lshl_add_u32 v33, v14, 4, v33
v_add_u32 v33, {L_KVR}, v33
v_mov_b32 v26, {L_ZERO}
v_cmp_eq_u32 vcc, v15, v12 && v_cndmask_b32 v33, v26, v33, vcc
v_add_u32 v34, 256, v33
v_cmp_ge_u32 vcc, 4, v14 && v_cndmask_b32 v34, v26, v34, vcc
v_bfe_u32 v29, v{L}, 4, 1
v_mul_u32_u24 v29, 20480, v29
v_lshl_add_u32 v29, v11, 4, v29
v_lshl_add_u32 v30, v12, 3, v29
v_lshl_add_u32 v29, v12, 9, v29
s_and_b32 s{T0}, s{sR}, 1
s_lshl_b32 s{T0}, s{T0}, 2
s_add_u32 s{T0}, s{T0}, s{sW}
s_mul_i32 s{T0}, s{T0}, 40960
s_mul_i32 s{T1}, s{sC}, 1280
s_add_u32 s{T0}, s{T0}, s{T1}
s_mul_i32 s{T1}, s{sX}, 393216
s_add_u32 s{T0}, s{T0}, s{T1}
s_add_u32 s89, s{T0}, {OF}
v_xor_b32 v26, v4, v12
v_lshlrev_b32 v26, 4, v26
v_lshl_add_u32 v26, v12, 12, v26
v_lshlrev_b32 v40, 4, v0
v_add_u32 v40, {L_STG_R2}, v40
v_min_u32 v41, 19, v{L}
v_lshlrev_b32 v41, 2, v41
s_lshl_b32 s90, s{sJ}, 7
s_add_u32 s90, s90, {F_WO}""")
        self.addfill(f"""v_bfe_u32 v15, v{L}, 2, 2
v_lshl_add_u32 v14, v13, 3, v15
v_and_b32 v15, 3, v{L}
v_lshlrev_b32 v35, 9, v14
s_lshr_b32 s{T2}, s{sW}, 1
s_and_b32 s{T3}, s{sW}, 1
v_mul_u32_u24 v36, 48, v15
v_add_u32 v35, v35, v36
s_mul_i32 s{T1}, s{T2}, 192
s_mul_i32 s{T2}, s{T3}, 24
s_add_u32 s{T1}, s{T1}, s{T2}
s_add_u32 s{T1}, s{T1}, {L_STG_R2}
v_add_u32 v35, s{T1}, v35
v_add_u32 v36, 8, v35
v_add_u32 v37, 16, v35
v_lshlrev_b32 v14, 8, v14
s_lshl_b32 s{T0}, s{sW}, 3
s_add_u32 s{T0}, s{T0}, {L_STG_R2 + 16384}
v_lshl_add_u32 v38, v15, 5, v14
v_add_u32 v38, s{T0}, v38
v_lshl_add_u32 v39, v15, 3, v14
v_add_u32 v39, {L_STG_R2 + 16384 + 128}, v39
s_mul_i32 s{T0}, s{sJ}, 0x3c000
s_lshr_b32 s{T2}, s{sW}, 1
s_mul_i32 s{T1}, s{T2}, 0x1e000
s_add_u32 s{T0}, s{T0}, s{T1}
s_mul_i32 s{T1}, s{sRB}, 6144
s_add_u32 s{T0}, s{T0}, s{T1}
s_mul_i32 s{T1}, s{T3}, 3072
s_add_u32 s{T0}, s{T0}, s{T1}
s_add_u32 s{T0}, s{T0}, {W2F}
s_cmp_lt_u32 s{sRB}, 20 && s_cselect_b32 s91, s{T0}, {OOB}
s_mul_i32 s{T0}, s{sT9}, 384
s_add_u32 s{T0}, s{T0}, {M2}
s_cmp_lt_u32 s{sI}, 25 && s_cselect_b32 s92, s{T0}, {OOB}
s_mul_i32 s{T0}, s{sJ}, 0x1e000
s_mul_i32 s{T1}, s{sRB}, 5120
s_add_u32 s{T0}, s{T0}, s{T1}
s_add_u32 s{T0}, s{T0}, {WOUTF}
s_cmp_lt_u32 s{sRB}, 24 && s_cselect_b32 s93, s{T0}, {OOB}""")
        self.addfill(f"""v_lshlrev_b32 v9, 5, v13
v_lshlrev_b32 v10, 3, v13
v_add_u32 v10, 128, v10
v_mul_u32_u24 v8, 1280, v11
v_add_u32 v7, v8, v9
v_add_u32 v8, v8, v10
s_and_b32 s{T0}, s{sJ}, 3
s_lshl_b32 s{T0}, s{T0}, 5
v_add_u32 v9, s{T0}, v9
v_lshrrev_b32 v15, 7, v9
v_lshl_add_u32 v9, v15, 4, v9
v_add_u32 v9, {L_M2}, v9
s_add_u32 s{T0}, s{T0}, {L_M2 + 16}
v_add_u32 v10, s{T0}, v10
s_lshl_b32 s{T0}, s{sRB}, 2
s_add_u32 s{T0}, s{T0}, s{sW}
s_mul_i32 s{T1}, s{T0}, {16 * 1280}
s_mul_i32 s{T2}, s{sJ}, 160
s_add_u32 s{sT9}, s{T1}, s{T2}
v_lshlrev_b32 v45, 4, v11
v_lshl_add_u32 v43, v13, 9, v45
v_lshrrev_b32 v44, 1, v13
v_lshl_add_u32 v44, v44, 8, v45
v_and_b32 v15, 1, v13
v_lshl_add_u32 v44, v15, 3, v44
v_lshl_add_u32 v46, v13, 10, v45
v_min_u32 v14, 175, v0
v_mul_u32_u24 v15, 2979, v14
v_lshrrev_b32 v15, 16, v15
v_mul_u32_u24 v48, 22, v15
v_sub_u32 v48, v14, v48
v_lshrrev_b32 v14, 1, v15
v_cmp_eq_u32 vcc, 2, v14 && v_cndmask_b32 v49, 0, 1.0, vcc
v_mul_u32_u24 v14, 10, v14
v_and_b32 v47, 1, v15
s_mul_i32 s{T0}, s{sJ}, 5
s_lshr_b32 s{T0}, s{T0}, 2
v_add3_u32 v47, v47, v14, s{T0}
v_mul_u32_u24 v47, 1920, v47
v_lshl_add_u32 v47, v48, 4, v47
v_mul_u32_u24 v15, 144, v15
v_mul_u32_u24 v48, 6, v48
s_mov_b32 s{T0}, {L_M2}
v_add3_u32 v48, v15, v48, s{T0}
v_and_b32 v14, 31, v{L}
v_min_u32 v14, 19, v14
v_min_u32 v15, 55, v{L}
v_cmp_gt_u32 vcc, 32, v{L} && v_cndmask_b32 v14, v15, v14, vcc
v_lshlrev_b32 v14, 2, v14
s_lshl_b32 s{T0}, s{sJ}, 7
s_add_u32 s{T1}, s{T0}, {F_WIN}
s_add_u32 s{T0}, s{T0}, {F_WOUT - 128}
v_mov_b32 v52, s{T1}
v_mov_b32 v15, s{T0}
v_cndmask_b32 v52, v15, v52, vcc
v_add_u32 v52, v52, v14
v_lshlrev_b32 v53, 2, v11""")

    def check_flags(self, tok, vval, vaddr, soff):
        p = self.p
        loop, done = p.newlabel('cf'), p.newlabel('cfd')
        p.wait(vm=tok)
        p.I(f'v_cmp_ne_u32 vcc, s{sTAG}, v{vval}\ns_cmp_eq_u64 vcc, 0\ns_cbranch_scc1 {done}')
        p.L(loop)
        p.vm(f'buffer_load_dword v{vval}, v{vaddr}, {WS}, {soff} offen sc1', count=False)
        p.I(f's_waitcnt vmcnt(0)\nv_cmp_ne_u32 vcc, s{sTAG}, v{vval}\ns_cmp_eq_u64 vcc, 0\ns_cbranch_scc1 {done}')
        self.spin_tail(loop, done, 2)

    def p1_main(self):
        p = self.p
        LA_H = 8
        self.vpoll(14, 63, T3)
        self.stamp('h_in')
        htok = []

        def issue_h():
            ks = len(htok)
            htok.append(p.vm(f'buffer_load_dwordx4 a[{4 * ks}:{4 * ks + 3}], v{vL16}, {WS}, s{T6} offen offset:{1024 * (ks & 3)} sc1'))
            if ks & 3 == 3:
                p.I(f's_add_u32 s{T6}, s{T6}, 4096')
        for _ in range(LA_H):
            issue_h()
        H, C = issue_h, self.issue_chunk
        self.bg = [H] * (self.H1 - LA_H) + [C] * 3 + [H] * (self.H2 - self.H1) + [C] * 2 + [H] * (40 - self.H2)
        self.p1_addresses()

        def rd(ks, T):
            off = (ks * 3 + T) * 1024
            b, off = (vL16, off) if off < 65536 else (5, off - 65536)
            r = 128 + 12 * (ks % 3) + 4 * T
            return p.ds(f'ds_read_b128 v[{r}:{r + 3}], v{b} offset:{off}')
        p.I('s_barrier')
        rt = {}
        for ks in range(2):
            for T in range(3):
                rt[ks] = rd(ks, T)
        credit = 0
        for ks in range(40):
            if ks in (8, 18, 22, 30, 34) and 'fine' in self.o.exp:
                self.stamp(f'ks{ks}')
            if ks in (18, 30):
                p.wait(vm=self.chunk_tok[7 if ks == 18 else 9])
                p.I('s_barrier')
            credit += 2
            while self.bg and credit >= (3 if self.bg[0] == C else 1):
                credit -= 3 if self.bg[0] == C else 1
                self.pump(1)
            p.wait(vm=htok[ks], ds=rt[ks])
            for T in range(3):
                r = 128 + 12 * (ks % 3) + 4 * T
                acc = vr(64 + 16 * T, 16)
                p.I(f'v_mfma_f32_32x32x16_bf16 {acc}, v[{r}:{r + 3}], a[{4 * ks}:{4 * ks + 3}], {acc if ks else 0}')
                if ks + 2 < 40:
                    rt[ks + 2] = rd(ks + 2, T)
                self.pfill(0 if 'nofill' in self.o.exp else 3)
        self.stamp('p1_main')
        self.pfill()
        p.I('s_barrier')
        nt = self.o.nt
        for k in range(10):
            pre = f's_add_u32 s{sBS}, s{sBS}, 4096\ns_add_u32 s{sBL}, s{sBL}, 4096\n' if k in (4, 8) else ''
            self.bg_vm(f'buffer_load_dwordx4 v{vL16}, {WS}, s{sBS} offen offset:{1024 * (k & 3)} sc1 lds',
                       pre=pre + f's_mov_b32 m0, s{sBL}' if k % 4 == 0 else None)
        for k in range(4):
            self.bg_vm(f'buffer_load_dwordx4 a[{184 + 4 * k}:{187 + 4 * k}], v23, s[{SB}:{SB + 3}], s{sB2} offen{nt}',
                       pre=f's_add_u32 s{sB2}, s{sB2}, {32 * 7680}' if k else None)
        for k in range(4):
            self.bg_vm(f'buffer_load_ushort a{200 + k}, v24, s[{PB}:{PB + 3}], s{sB3} offen offset:{64 * k}')
        for k in range(4):
            self.bg_vm(f'buffer_load_dwordx4 a[{160 + 4 * k}:{163 + 4 * k}], v22, s[{SA}:{SA + 3}], s{sB1} offen{nt}',
                       pre=f's_add_u32 s{sB1}, s{sB1}, {8 * 3072}' if k else None)
        for k in range(2):
            self.bg_vm(f'buffer_load_dwordx4 a[{176 + 4 * k}:{179 + 4 * k}], v25, s[{PB + 4}:{PB + 7}], s{sB4 + k} offen{nt}')
        self.bg_vm(f'buffer_load_dword v42, v41, {WS}, s90 offen sc1', 'wo_flags')
        self.pump(8)

    H1, H2 = 22, 34

    def chain_softmax(self, src, out):
        p = self.p
        for k in range(10):
            p.I(f'v_cvt_pk_bf16_f32 v{164 + k}, v{src + 2 * k}, v{src + 2 * k + 1}')
        p.I('v_mov_b32 v174, 0\nv_mov_b32 v175, 0')
        for kap in range(3):
            for mt in range(2):
                acc = vr(176 + 16 * mt, 16)
                fr = 232 + 12 * mt + 4 * kap
                p.I(f'v_mfma_f32_32x32x16_bf16 {acc}, v[{fr}:{fr + 3}], v[{164 + 4 * kap}:{167 + 4 * kap}], {acc if kap else 0}')
                self.pfill(4)
            self.pump(1)
        self.pfill()
        P = 176
        p.I(f's_mov_b32 s{sCA}, {hex(f2u(LOG2E))}\ns_mov_b32 s{sCA + 1}, s{sCA}')
        p.I(f'v_max3_f32 v196, v{P}, v{P + 1}, v{P + 2}\nv_min3_f32 v198, v{P}, v{P + 1}, v{P + 2}')
        for k in range(3, 19, 2):
            p.I(f'v_max3_f32 v196, v196, v{P + k}, v{P + k + 1}\nv_min3_f32 v198, v198, v{P + k}, v{P + k + 1}')
            if k % 6 == 3:
                self.pump(1)
        p.I(f"""v_max_f32 v196, v196, v{P + 19}
v_min_f32 v198, v198, v{P + 19}
v_mul_f32 v196, {hex(f2u(-LOG2E))}, v196
v_mul_f32 v198, {hex(f2u(LOG2E))}, v198""")
        E = 128
        ca = f's[{sCA}:{sCA + 1}]'
        for k in range(10):
            p.I(f'v_pk_fma_f32 v[{E + 2 * k}:{E + 2 * k + 1}], v[{P + 2 * k}:{P + 2 * k + 1}], {ca}, v[196:197] op_sel_hi:[1,1,0]')
            p.I(f'v_pk_fma_f32 v[{P + 2 * k}:{P + 2 * k + 1}], v[{P + 2 * k}:{P + 2 * k + 1}], {ca}, v[198:199] op_sel_hi:[1,1,0] neg_lo:[1,0,0] neg_hi:[1,0,0]')
            if k % 4 == 0:
                self.pump(1)
        for k in range(20):
            p.I(f'v_exp_f32 v{E + k}, v{E + k}\nv_exp_f32 v{P + k}, v{P + k}')
            if k % 3 == 0:
                self.pump(1)
        p.I(f'v_pk_add_f32 v[200:201], v[{E}:{E + 1}], v[{E + 2}:{E + 3}]\nv_pk_add_f32 v[202:203], v[{P}:{P + 1}], v[{P + 2}:{P + 3}]')
        for k in range(2, 10):
            p.I(f'v_pk_add_f32 v[200:201], v[200:201], v[{E + 2 * k}:{E + 2 * k + 1}]\n'
                f'v_pk_add_f32 v[202:203], v[202:203], v[{P + 2 * k}:{P + 2 * k + 1}]')
        p.I('v_add_f32 v200, v200, v201\nv_add_f32 v202, v202, v203\nv_rcp_f32 v200, v200\nv_rcp_f32 v202, v202')
        self.pump(1)
        for k in range(10):
            p.I(f'v_pk_mul_f32 v[{E + 2 * k}:{E + 2 * k + 1}], v[{E + 2 * k}:{E + 2 * k + 1}], v[200:201] op_sel_hi:[1,0]')
            p.I(f'v_pk_mul_f32 v[{P + 2 * k}:{P + 2 * k + 1}], v[{P + 2 * k}:{P + 2 * k + 1}], v[202:203] op_sel_hi:[1,0]')
        for k in range(10):
            p.I(f'v_cvt_pk_bf16_f32 v{out + k}, v{E + 2 * k}, v{E + 2 * k + 1}\n'
                f'v_cvt_pk_bf16_f32 v{out + 10 + k}, v{P + 2 * k}, v{P + 2 * k + 1}')

    def p1_kv(self):
        p = self.p
        self.addfill('\n'.join(f'v_cvt_pk_bf16_f32 v{152 + k}, v{84 + 2 * k}, v{85 + 2 * k}' for k in range(10)))
        self.addfill('v_mov_b32 v162, 0x3f80\nv_mov_b32 v163, 0\n' + '\n'.join(f'v_xor_b32 v{54 + ch}, {16 * ch}, v16' for ch in range(1, 8)))
        self.chain_softmax(64, 208)
        self.pump()
        self.stamp('sm_k')
        for ch in (5, 6, 7, 0, 1, 2, 3, 4):
            src = 208 + 4 * ch if ch < 5 else 152 + 4 * (ch - 5)
            p.ds(f'ds_write_b128 v{54 + ch if ch else 16}, v[{src}:{src + 3}]')
        p.wait_lgkm_all()
        p.I('s_barrier')
        toks = []
        for ks in range(8):
            a, b = 128 + 8 * (ks & 3), 132 + 8 * (ks & 3)
            if ks >= 4:
                self.kv_mfma(ks - 4, toks)
            p.ds(f'ds_read_b64_tr_b16 v[{a}:{a + 1}], v17 offset:{2048 * ks}')
            p.ds(f'ds_read_b64_tr_b16 v[{a + 2}:{a + 3}], v18 offset:{2048 * ks}')
            p.ds(f'ds_read_b64_tr_b16 v[{b}:{b + 1}], v19 offset:{2048 * ks}')
            toks.append(p.ds(f'ds_read_b64_tr_b16 v[{b + 2}:{b + 3}], v20 offset:{2048 * ks}'))
        for ks in range(4, 8):
            self.kv_mfma(ks, toks)
        self.stamp('kv_mm')
        for k in range(8):
            p.I(f'v_cvt_pk_bf16_f32 v{128 + k}, v{176 + 2 * k}, v{177 + 2 * k}')
        p.vm(f'buffer_store_dwordx4 v[128:131], v21, {WS}, s87 offen sc1')
        tk = p.vm(f'buffer_store_dwordx4 v[132:135], v21, {WS}, s88 offen offset:1024 sc1')
        xs = self.srd(SA, P_X, 2048 * 1280)
        ws_ = self.srd(SB, P_WSP, 2048 * 4096)
        p.I(f"""s_lshl_b32 s{T0}, s{sRB}, 18
s_lshl_b32 s{T1}, s{sJ}, 9
s_add_u32 s{T0}, s{T0}, s{T1}
s_lshl_b32 s{T1}, s{sW}, 16
s_add_u32 s{sB1}, s{T0}, s{T1}
s_lshl_b32 s{T1}, s{sW}, 13
s_add_u32 s{sB2}, s{T1}, {L_STG_WS}
s_mul_i32 s{sB5}, s{sJ}, 0x19000
s_add_u32 s{sB5}, s{sB5}, {WOF}
s_lshl_b32 s{T0}, s{sRB}, 2
s_add_u32 s{T0}, s{T0}, s{sW}
s_mul_i32 s{T6}, s{T0}, 20480
s_mul_i32 s{T1}, s{sJ}, 2560
s_add_u32 s87, s{T6}, s{T1}
s_add_u32 s87, s87, {H2F}
s_lshl_b32 s{T1}, s{sX}, 16
s_add_u32 s{T6}, s{T6}, s{T1}
s_add_u32 s{T6}, s{T6}, {OF}
s_lshl_b32 s{T7}, s{sRB}, 13
s_lshl_b32 s{T1}, s{sW}, 8
s_add_u32 s{T7}, s{T7}, s{T1}
s_add_u32 s{T7}, s{T7}, {ST2}
s_lshl_b32 s{T1}, s{sJ}, 10
s_add_u32 s88, s{T7}, s{T1}
s_add_u32 s{sB3}, s88, {ST3 - ST2}""")
        p.wait(vm=tk)
        p.I('s_barrier')
        self.flag(T4, 50, False)
        self.stamp('kv_pub')
        self.check_flags(self.tok['wo_flags'], 42, 41, 's90')
        if self.o.local:
            for a_, o_ in ((29, 0), (29, 256), (30, 1024)):
                self.bg_vm(f'buffer_load_dword v15, v{a_}, {WS}, s89 offen offset:{o_} sc1')
        for n in range(8):
            pre = f's_add_u32 s{sB1}, s{sB1}, 8192\ns_add_u32 s{sB2}, s{sB2}, 1024\nv_xor_b32 v{27 + (n & 1)}, {32 * n}, v26\n' if n else ''
            self.bg_vm(f'buffer_load_dwordx4 v{27 + (n & 1) if n else 26}, {ws_}, s{sB1} offen{self.o.nt} lds',
                       pre=pre + f's_mov_b32 m0, s{sB2}')
        self.bg_vm(f'buffer_load_dwordx4 v[54:57], v7, {xs}, s{sT9} offen')
        self.bg_vm(f'buffer_load_dwordx4 v[58:61], v7, {xs}, s{sT9} offen offset:16')
        self.bg_vm(f'buffer_load_dwordx2 v[62:63], v8, {xs}, s{sT9} offen')
        if self.o.local:
            for a_, s_, o_ in ((43, 87, 0), (43, 87, 256), (44, 87, 2048), (45, 88, 0), (45, sB3, 0)):
                self.bg_vm(f'buffer_load_dword v15, v{a_}, {WS}, s{s_} offen offset:{o_} sc1')
        self.bg_dma(sB5, 0, self.NWO1, 40960, 'wo')

    NWO1 = 32
    NW2B = 24
    NW2C = 40
    NWS1 = 40
    NWU1 = 88

    def kv_mfma(self, ks, toks):
        p = self.p
        a, b = 128 + 8 * (ks & 3), 132 + 8 * (ks & 3)
        p.wait(ds=toks[ks])
        p.I(f'v_mfma_f32_32x32x16_bf16 v[176:191], v[{a}:{a + 3}], v[{b}:{b + 3}], {"v[176:191]" if ks else 0}')

    def p1_q(self):
        p = self.p
        for k in range(4):
            p.ds(f'ds_write_b128 v40, a[{160 + 4 * k}:{163 + 4 * k}] offset:{4096 * k}')
        for k in range(2):
            p.ds(f'ds_write_b128 v40, a[{176 + 4 * k}:{179 + 4 * k}] offset:{16384 + 4096 * k}')
        self.addfill('\n'.join(f'v_accvgpr_read_b32 v{144 + k}, a{184 + k}' for k in (16, 17, 18, 19) + tuple(range(16))))
        keep, self.p = self.p, Recorder()
        self.gemv(4, 144, 160, L_SCR_G2)
        rec, self.p = self.p, keep
        self.fill += rec.alu

        def rd(ks):
            r = 128 + 4 * (ks & 3)
            return p.ds(f'ds_read_b128 v[{r}:{r + 3}], v{vL16} offset:{1024 * ks}')
        toks = [rd(0), rd(1), rd(2)]
        for ks in range(40):
            if ks + 3 < 40:
                toks.append(rd(ks + 3))
            if ks % 2 == 0:
                self.pump(1)
            p.wait(ds=toks[ks])
            r = 128 + 4 * (ks & 3)
            p.I(f'v_mfma_f32_32x32x16_bf16 v[112:127], v[{r}:{r + 3}], a[{4 * ks}:{4 * ks + 3}], {"v[112:127]" if ks else 0}')
            self.pfill(3)
        self.pfill()
        for t in rec.lds:
            p.ds(t)
        p.I(f'v_min_u32 v50, 21, v{vLANE}\nv_mul_u32_u24 v51, 12, v50\nv_add_u32 v51, {L_SCR_G2}, v51')
        p.wait_lgkm_all()
        self.stamp('t3_done')
        self.spoll_issue(T5, 16)
        self.chain_softmax(104, 208)
        self.pump()
        self.stamp('q_done')
        p.I('s_barrier')
        toks = []
        for k in range(3):
            p.ds(f'ds_read_b64_tr_b16 v[{64 + 4 * k}:{65 + 4 * k}], v{35 + k}')
            p.ds(f'ds_read_b64_tr_b16 v[{66 + 4 * k}:{67 + 4 * k}], v{35 + k} offset:2048')
        for k in range(2):
            p.ds(f'ds_read_b64_tr_b16 v[{76 + 4 * k}:{77 + 4 * k}], v{38 + k}')
            p.ds(f'ds_read_b64_tr_b16 v[{78 + 4 * k}:{79 + 4 * k}], v{38 + k} offset:1024')
        p.I(f'v_mov_b32 v167, v50\nv_mov_b32 v168, v51')
        self.gemv_pub(92)
        p.I(f"""s_lshl_b32 s{T1}, s{sW}, 10
s_add_u32 s{T1}, s{T1}, s93
s_add_u32 s{T0}, s93, 4096
s_mul_i32 s{T8}, s{sC}, {16 * 5120}
s_add_u32 s{T8}, s{T8}, {KVP}""")
        self.wave0(T0, T0)
        self.rp_stores = [f'buffer_store_dwordx4 v[{64 + 4 * k}:{67 + 4 * k}], v{vL16}, {WS}, s91 offen offset:{1024 * k} sc1' for k in range(3)]
        self.rp_stores += [f'buffer_store_dwordx4 v[76:79], v{vL16}, {WS}, s{T1} offen sc1',
                           f'buffer_store_dwordx4 v[80:83], v{vL16}, {WS}, s{T0} offen sc1']
        for t in self.rp_stores:
            p.vm(t)
        self.stamp('rp_done')

    def repack_flags(self):
        p = self.p
        self.flag_ks(F_WIN, 20)
        self.flag(T0, 50, False)
        self.flag_ks(F_WOUT, 24)
        self.flag(T0, 50, False)

    def p1_o(self):
        p = self.p
        self.spoll_check(16)
        self.stamp('kv_in')
        toks = []
        for r in range(16):
            toks.append(p.vm(f'buffer_load_dwordx4 v[{84 + 4 * r}:{87 + 4 * r}], v31, {WS}, s{T8} offen sc1'))
            if r < 15:
                p.I(f's_add_u32 s{T8}, s{T8}, 5120')
        p.I('v_mov_b32 v50, 0x3f80\nv_mov_b32 v51, 1.0')
        for n in range(8):
            p.I(f'v_mov_b32 v{148 + n}, 0')
        for r in range(16):
            p.wait(vm=toks[r])
            for d in range(4):
                p.I(f'v_dot2c_f32_bf16 v{148 + 2 * d}, v{84 + 4 * r + d}, v50\nv_dot2c_f32_bf16 v{149 + 2 * d}, v{84 + 4 * r + d}, v51')
        for d in range(4):
            p.I(f'v_cvt_pk_bf16_f32 v{156 + d}, v{148 + 2 * d}, v{149 + 2 * d}')
        p.ds('ds_write_b128 v32, v[156:159]')
        self.stamp('kv_sum')
        p.I(f's_mov_b32 s{T8}, {M2}')
        for k in range(5):
            tm = p.vm(f'buffer_load_dwordx4 v[{164 + 4 * k}:{167 + 4 * k}], v47, {WS}, s{T8} offen offset:{384 * k} sc1')
        p.wait_lgkm_all()
        p.I('s_barrier')
        toks = []
        for ks in range(5):
            p.ds(f'ds_read_b128 v[{64 + 8 * ks}:{67 + 8 * ks}], v33 offset:{384 * ks}')
            toks.append(p.ds(f'ds_read_b128 v[{68 + 8 * ks}:{71 + 8 * ks}], v34 offset:{384 * ks}'))
        p.I(f"""s_lshl_b32 s{T4}, s{sR}, 8
s_add_u32 s{T4}, s{T4}, {F_O}
s_and_b32 s{T1}, s{sRB}, 1
s_lshl_b32 s{T1}, s{T1}, 1
s_lshr_b32 s{T2}, s{sW}, 1
s_add_u32 s{T1}, s{T1}, s{T2}
s_lshl_b32 s{T1}, s{T1}, 6
s_add_u32 s{T5}, s{T4}, s{T1}
s_lshl_b32 s{T1}, s{sW}, 6
s_add_u32 s{T4}, s{T4}, s{T1}
s_lshl_b32 s{T1}, s{sC}, 2
s_add_u32 s{T4}, s{T4}, s{T1}""")
        for ks in range(5):
            p.wait(ds=toks[ks])
            for tp in range(2):
                acc = vr(128 + 16 * tp, 16)
                r = 64 + 8 * ks + 4 * tp
                p.I(f'v_mfma_f32_32x32x16_bf16 {acc}, v[{r}:{r + 3}], v[{208 + 4 * ks}:{211 + 4 * ks}], {acc if ks else 0}')
        self.unpack(232, 54, 10)
        p.I(f'v_add_f32 v148, {hex(f2u(1e-6))}, v148\nv_rcp_f32 v148, v148')
        for k in range(10):
            p.I(f'v_pk_mul_f32 v[{128 + 2 * k}:{129 + 2 * k}], v[{128 + 2 * k}:{129 + 2 * k}], v[148:149] op_sel_hi:[1,0]')
        for k in range(10):
            p.I(f'v_cvt_pk_bf16_f32 v{152 + k}, v{128 + 2 * k}, v{129 + 2 * k}')
        t = self.lstores([f'buffer_store_dwordx4 v[152:155], v29, {WS}, s89 offen',
                          f'buffer_store_dwordx4 v[156:159], v29, {WS}, s89 offen offset:256',
                          f'buffer_store_dwordx2 v[160:161], v30, {WS}, s89 offen offset:1024'])
        self.t_wsf = self.wsp_frags()
        p.wait(vm=t)
        self.flag(T4, 50, True)
        self.stamp('o_pub')
        self.repack_flags()
        self.bg_dma(sB5, self.NWO1, 76, 40960 + self.NWO1 * 1024, 'wo')
        self.pump()
        loop, done = p.newlabel('m2'), p.newlabel('m2d')
        chk = 'v_xor_b32 v50, v167, v51\n' + '\n'.join(f'v_bitop3_b32 v50, v50, v{167 + 4 * k}, v51 bitop3:0xf6' for k in range(1, 5))
        chk += f'\nv_cmp_ne_u32 vcc, 0, v50\ns_cmp_eq_u64 vcc, 0\ns_cbranch_scc1 {done}'
        p.I(f'v_mov_b32 v51, s{sTAG}\n' + chk)
        p.L(loop)
        for k in range(5):
            p.vm(f'buffer_load_dwordx4 v[{164 + 4 * k}:{167 + 4 * k}], v47, {WS}, s{T8} offen offset:{384 * k} sc1', count=False)
        p.I('s_waitcnt vmcnt(0)\n' + chk)
        self.spin_tail(loop, done, 2)
        self.mod_finish(164, 1, 5, 49, 48)

    def wsp_frags(self):
        p = self.p
        p.I(f"""v_and_b32 v16, 31, v{vLANE}
v_lshrrev_b32 v17, 5, v{vLANE}
s_lshl_b32 s{T2}, s{sW}, 3
v_add_u32 v17, s{T2}, v17
v_xor_b32 v17, v17, v11
v_lshlrev_b32 v17, 4, v17
v_lshl_add_u32 v17, v16, 9, v17
v_add_u32 v17, {L_STG_WS}, v17""")
        for ks in range(4):
            if ks:
                p.I(f'v_xor_b32 v{17 + ks}, {32 * ks}, v17')
            for tt in range(2):
                r = 212 + 8 * ks + 4 * tt
                t = p.ds(f'ds_read_b128 a[{r}:{r + 3}], v{17 + ks} offset:{16384 * tt}')
        return t

    def bg_wsp(self, n):
        p = self.p

        def op(k):
            def f():
                if k == 0:
                    p.I(f"""s_and_b32 s3, s{sRB}, 1
s_lshl_b32 s{sT10}, s{sRB}, 1
s_lshr_b32 s93, s{sW}, 1
s_add_u32 s{sT10}, s{sT10}, s93
s_lshl_b32 s{sT10}, s{sT10}, 1
s_add_u32 s{sT10}, s{sT10}, s3
s_lshl_b32 s{sT10}, s{sT10}, 16
s_and_b32 s3, s{sW}, 1
s_lshl_b32 s3, s3, 8
s_add_u32 s{sT10}, s{sT10}, s3
s_xor_b32 s93, s{sT10}, 0x40000
s_add_u32 s{sT10}, s{sT10}, {WSF}
s_add_u32 s93, s93, {WSF}
v_lshrrev_b32 v62, 4, v{vLANE}
v_lshlrev_b32 v62, 9, v62
v_lshl_add_u32 v62, v11, 4, v62""")
                elif k % 4 == 0:
                    p.I(f's_add_u32 s{sT10}, s{sT10}, 4096\ns_add_u32 s93, s93, 4096')
                self.tok[('ws', k)] = p.vm(f'buffer_load_dwordx4 a[{4 * k}:{4 * k + 3}], v62, {WS}, s{93 if k & 1 else sT10} offen offset:{2048 * ((k >> 1) & 1)} sc1')
            return f
        n = min(n, 64 - self.nws)
        self.bg += [op(k) for k in range(self.nws, self.nws + n)]
        self.nws += n

    def lds_frag(self, r, addr):
        b = (vL16, 5, 6)[addr >> 16]
        return self.p.ds(f'ds_read_b128 v[{r}:{r + 3}], v{b} offset:{addr & 0xffff}')

    def gemm16(self, nks, nt, bsrc, breg, addr_of, abuf, acc, swap=False, hook=None, pre=None, bar=False, rate=1):
        p = self.p
        LB = 8
        buf = lambda ks, n: abuf + 4 * nt * (ks % 3) + 4 * n
        bt = []

        def issue_b():
            ks = len(bt)
            bt.append(p.vm(f'buffer_load_dwordx4 v[{breg + 4 * ks}:{breg + 3 + 4 * ks}], v{vL16}, {WS}, s{bsrc} offen offset:{1024 * (ks & 3)} sc1'))
            if ks & 3 == 3 and ks + 1 < nks:
                p.I(f's_add_u32 s{bsrc}, s{bsrc}, 4096')
        if bsrc is not None:
            for _ in range(LB):
                issue_b()
        if bar:
            p.wait_lgkm_all()
            p.I('s_barrier')
        rt = {}
        for ks in range(2):
            if pre:
                pre(ks)
            for n in range(nt):
                rt[ks] = self.lds_frag(buf(ks, n), addr_of(ks, n))
        for ks in range(nks):
            if pre and ks + 2 < nks:
                pre(ks + 2)
            if bsrc is not None and len(bt) < nks:
                issue_b()
                if len(bt) < nks and ks % 2 == 0:
                    issue_b()
            else:
                if hook:
                    hook(ks)
                self.pump(rate)
            p.wait(vm=bt[ks] if bt else None, ds=rt[ks])
            for n in range(nt):
                w = vr(buf(ks, n), 4)
                x = vr(breg + 4 * ks, 4)
                d = vr(acc + 4 * n, 4)
                a, b = (x, w) if swap else (w, x)
                p.I(f'v_mfma_f32_16x16x32_bf16 {d}, {a}, {b}, {d if ks else 0}')
                if ks + 2 < nks:
                    rt[ks + 2] = self.lds_frag(buf(ks + 2, n), addr_of(ks + 2, n))

    def load_vec(self, dst, vec):
        p = self.p
        p.ds(f'ds_read_b128 v[{dst}:{dst + 3}], v9 offset:{288 * vec}')
        p.ds(f'ds_read_b128 v[{dst + 4}:{dst + 7}], v9 offset:{288 * vec + 16}')
        return p.ds(f'ds_read_b64 v[{dst + 8}:{dst + 9}], v10 offset:{288 * vec}')

    def rstd(self, s, q, n):
        self.p.I(f"""s_mov_b32 s{T2}, {hex(f2u(1 / n))}
v_mul_f32 v{s}, s{T2}, v{s}
v_mul_f32 v4, v{s}, v{s}
v_fma_f32 v{q}, v{q}, s{T2}, -v4
v_max_f32 v{q}, 0, v{q}
v_add_f32 v{q}, {hex(f2u(1e-5))}, v{q}
v_rsq_f32 v{q}, v{q}
v_mul_f32 v{s}, -v{s}, v{q}""")

    def p2a(self):
        p = self.p
        X1, GA, A2, SBv, ACC = 232, 16, 76, 96, 204
        p.I(f"""s_mul_i32 s{sCA}, s{sJ}, 0x3c000
s_add_u32 s{sCA}, s{sCA}, {W2F}
s_lshl_b32 s{sB1}, s{sRB}, 18
s_lshl_b32 s{T1}, s{sJ}, 14
s_add_u32 s{sB1}, s{sB1}, s{T1}
s_lshl_b32 s{T1}, s{sW}, 12
s_add_u32 s{sB1}, s{sB1}, s{T1}
s_add_u32 s{sB1}, s{sB1}, {WSF}
s_add_u32 s{sB2}, s{sB1}, 0x20000""")
        p.wait_lgkm_all()
        p.I('s_barrier')
        self.bg_dma(sB5, 76, 100, 40960 + 76 * 1024, 'wo')
        self.pump()
        tg = self.load_vec(54, 0)
        p.wait(ds=tg)
        self.unpack(GA, 54, 10)
        self.stamp('p2a_prep')
        self.vpoll(53, 15, T5)
        self.stamp('o_in')
        self.nws = 0
        st = {}

        def hook(ks):
            if 'f' not in st:
                st['f'] = p.vm(f'buffer_load_dword v42, v52, {WS}, 0 offen sc1')
                st['at'] = ks + 3
                for n in range(8):
                    self.bg_vm(f'buffer_store_dwordx4 a[{212 + 4 * n}:{215 + 4 * n}], v{vL16}, {WS}, s{sB2 if n & 1 else sB1} offen offset:{1024 * (n >> 1)} sc1')
            elif ks == st['at']:
                self.check_flags(st['f'], 42, 52, '0')
                self.bg_dma(sCA, 0, 36, 0, 'w2a')
        self.gemm16(20, 5, T6, 64, lambda ks, n: 40960 + (ks * 5 + n) * 1024, 144, ACC, hook=hook, bar=True, rate=2)
        self.pump()
        self.load_vec(54, 2)
        tv = self.load_vec(64, 1)
        p.I('s_barrier')
        self.stamp('p2a_mm')
        self.bg_dma(sCA, 36, 36 + self.NW2B, 40960, 'w2b')
        self.pump()
        for k in range(10):
            p.I(f'v_pk_fma_f32 v[{X1 + 2 * k}:{X1 + 2 * k + 1}], v[{GA + 2 * k}:{GA + 2 * k + 1}], v[{ACC + 2 * k}:{ACC + 2 * k + 1}], v[{X1 + 2 * k}:{X1 + 2 * k + 1}]')
        p.I(f'v_pk_add_f32 v[36:37], v[{X1}:{X1 + 1}], v[{X1 + 2}:{X1 + 3}]\nv_pk_mul_f32 v[38:39], v[{X1}:{X1 + 1}], v[{X1}:{X1 + 1}]')
        for k in range(1, 10):
            x = f'v[{X1 + 2 * k}:{X1 + 2 * k + 1}]'
            if k > 1:
                p.I(f'v_pk_add_f32 v[36:37], v[36:37], {x}')
            p.I(f'v_pk_fma_f32 v[38:39], {x}, {x}, v[38:39]')
        p.I('v_add_f32 v36, v36, v37\nv_add_f32 v38, v38, v39')
        self.xreduce_sq(36, 38, 37)
        p.I(f'v_mov_b32 v38, s{sTAG}\nv_mov_b32 v39, 0\ns_mov_b64 exec, 0xffff')
        self.lstores([f'buffer_store_dwordx4 v[36:39], v45, {WS}, s88 offen'])
        p.I(f's_mov_b64 exec, -1\ns_add_u32 s{T1}, s{T7}, 4096')
        p.wait(ds=tv)
        self.unpack(A2, 54, 10)
        self.unpack(SBv, 64, 10)
        self.gather2(120, 46, T7, 0, T1, 0)
        self.stamp('st2_in')
        p.I('v_add_f32 v36, v120, v124\nv_add_f32 v40, v121, v125')
        self.xreduce_sq(36, 40, 38)
        self.rstd(36, 38, 640)
        for k in range(10):
            p.I(f'v_pk_fma_f32 v[{ACC + 2 * k}:{ACC + 2 * k + 1}], v[{X1 + 2 * k}:{X1 + 2 * k + 1}], v[38:39], v[36:37] op_sel_hi:[1,0,0]')
        for k in range(10):
            p.I(f'v_pk_fma_f32 v[{ACC + 2 * k}:{ACC + 2 * k + 1}], v[{ACC + 2 * k}:{ACC + 2 * k + 1}], v[{A2 + 2 * k}:{A2 + 2 * k + 1}], v[{SBv + 2 * k}:{SBv + 2 * k + 1}]')
        for k in range(10):
            p.I(f'v_cvt_pk_bf16_f32 v{64 + k}, v{ACC + 2 * k}, v{ACC + 2 * k + 1}')
        t = self.lstores([f'buffer_store_dwordx4 v[64:67], v43, {WS}, s87 offen',
                          f'buffer_store_dwordx4 v[68:71], v43, {WS}, s87 offen offset:256',
                          f'buffer_store_dwordx2 v[72:73], v44, {WS}, s87 offen offset:2048'])
        p.I(f"""s_lshl_b32 s{T6}, s{sRB}, 7
s_lshl_b32 s{T1}, s{sW}, 5
s_add_u32 s{T6}, s{T6}, s{T1}
s_add_u32 s{T6}, s{T6}, {F_H2}
s_lshl_b32 s{T1}, s{sJ}, 2
s_add_u32 s{T0}, s{T6}, s{T1}""")
        p.wait(vm=t)
        self.flag(T0, 60, True)
        self.stamp('h2_pub')

    def gather2(self, dst, vaddr, s0, o0, s1, o1):
        p = self.p
        loop, done = p.newlabel('st'), p.newlabel('std')
        p.L(loop)
        p.vm(f'buffer_load_dwordx4 v[{dst}:{dst + 3}], v{vaddr}, {WS}, s{s0} offen offset:{o0} sc1')
        p.vm(f'buffer_load_dwordx4 v[{dst + 4}:{dst + 7}], v{vaddr}, {WS}, s{s1} offen offset:{o1} sc1')
        p.wait_vm_all()
        p.I(f"""v_cmp_ne_u32 vcc, s{sTAG}, v{dst + 2}
v_cmp_ne_u32 s[{sM}:{sM + 1}], s{sTAG}, v{dst + 6}
s_or_b64 vcc, vcc, s[{sM}:{sM + 1}]
s_cmp_eq_u64 vcc, 0
s_cbranch_scc1 {done}""")
        self.spin_tail(loop, done)

    def gelu(self, x, n, t):
        p = self.p
        k0 = 0.7978845608028654
        A = -2 * LOG2E * k0
        B = A * 0.044715
        p.I(f's_mov_b32 s{sM}, {hex(f2u(B))}\ns_mov_b32 s{sM + 1}, s{sM}\nv_mov_b32 v56, {hex(f2u(A))}')
        pr = lambda b, k: f'v[{b + 2 * k}:{b + 2 * k + 1}]'
        for k in range(n // 2):
            p.I(f'v_pk_mul_f32 {pr(t, k)}, {pr(x, k)}, {pr(x, k)}')
            if k % 3 == 0:
                self.pump(1)
        for k in range(n // 2):
            p.I(f'v_pk_fma_f32 {pr(t, k)}, {pr(t, k)}, s[{sM}:{sM + 1}], v[56:57] op_sel_hi:[1,1,0]')
        for k in range(n // 2):
            p.I(f'v_pk_mul_f32 {pr(t, k)}, {pr(t, k)}, {pr(x, k)}')
        for k in range(n):
            p.I(f'v_exp_f32 v{t + k}, v{t + k}')
            if k % 3 == 0:
                self.pump(1)
        for k in range(n // 2):
            p.I(f'v_pk_add_f32 {pr(t, k)}, {pr(t, k)}, 1.0 op_sel_hi:[1,0]')
        for k in range(n):
            p.I(f'v_rcp_f32 v{t + k}, v{t + k}')
        for k in range(n // 2):
            p.I(f'v_pk_mul_f32 {pr(x, k)}, {pr(x, k)}, {pr(t, k)}')

    def p2b(self):
        p = self.p
        ACC, Z1, TMP = 16, 16, 144
        n1 = 36 + self.NW2B
        n2 = n1 + self.NW2C
        self.bg_dma(sCA, n1, n2, 40960 + (n1 - 36) * 1024, 'w2c')
        self.pump()
        p.I(f"""v_and_b32 v15, 7, v{vLANE}
v_lshlrev_b32 v4, 2, v15
s_lshl_b32 s{T5}, s{sRB}, 2
s_add_u32 s{T5}, s{T5}, s{sW}
s_mul_i32 s{T4}, s{T5}, 3072
s_mul_i32 s{T5}, s{T5}, 20480
s_add_u32 s{T5}, s{T5}, {H2F}
v_lshrrev_b32 v12, 4, v{vLANE}
v_lshlrev_b32 v12, 6, v12
v_and_b32 v13, 3, v{vLANE}
v_lshl_add_u32 v13, v13, 4, v12
v_bfe_u32 v14, v{vLANE}, 3, 1
v_lshl_add_u32 v14, v14, 4, v12
v_lshl_add_u32 v14, v15, 10, v14
s_add_u32 s{T3}, s{T7}, {ST3 - ST2}
s_add_u32 s{sCA + 1}, s{sCA}, 0x1e000
s_mul_i32 s87, s{sJ}, {128 * 3072}
s_add_u32 s87, s87, {Z2F}
s_add_u32 s{T4}, s{T4}, s87
s_lshl_b32 s88, s{sJ}, 7
s_add_u32 s88, s88, {F_Z2}
s_lshl_b32 s{T1}, s{sRB}, 2
s_add_u32 s89, s88, s{T1}
s_lshl_b32 s{T8}, s{sROLE}, 2
s_add_u32 s{T8}, s{T8}, {F_WS}
s_lshl_b32 s90, s{sR}, 6
s_and_b32 s{T1}, s{sRB}, 1
s_lshl_b32 s{T1}, s{T1}, 4
s_add_u32 s90, s90, s{T1}
s_add_u32 s90, s90, {F_WS}
v_bfe_u32 v59, v{vLANE}, 2, 1
v_and_b32 v58, 3, v{vLANE}
v_lshl_add_u32 v59, v59, 3, v58
v_lshlrev_b32 v59, 2, v59""")
        self.wave0(89, 89)
        self.wave0(T8, T8)
        self.vpoll(4, 63, T6)
        self.stamp('h2_in')
        z2addr = lambda n: n * 1024 if n < 36 else 40960 + (n - 36) * 1024
        self.bg_dma(sCA, n2, 120, 40960 + (n2 - 36) * 1024, 'w2d')
        self.bg_dma(sCA + 1, 0, 24, 40960 + 84 * 1024, 'z1a')

        def pre(ks):
            if ks == 0:
                self.flag(T8, 60, False)
            if ks == n2 // 6:
                while 'w2d' not in self.tok or len(self.bg) > 6:
                    self.pump(1)
                p.wait(vm=self.tok['w2d'])
                p.I('s_barrier')
        self.gemm16(20, 6, T5, 64, lambda ks, n: z2addr(ks * 6 + n), TMP, ACC, swap=True, pre=pre, bar=True, rate=2)
        self.pump()
        p.I('s_barrier')
        self.stamp('z2_mm')
        self.bg_dma(sCA + 1, 24, 64, 0, 'z1b')
        self.bg_vm(f'buffer_load_dword v58, v59, {WS}, s90 offen sc1', 'ws_flags')
        self.gelu(ACC, 24, TMP)
        self.pump()
        pr = lambda b: f'v[{b}:{b + 1}]'
        p.I(f'v_pk_add_f32 v[40:41], {pr(ACC)}, {pr(ACC + 4)}\nv_pk_add_f32 v[42:43], {pr(ACC + 2)}, {pr(ACC + 6)}')
        p.I(f'v_pk_mul_f32 v[44:45], {pr(ACC)}, {pr(ACC)}\nv_pk_mul_f32 v[46:47], {pr(ACC + 2)}, {pr(ACC + 2)}')
        for ft in range(1, 6):
            a, b = pr(ACC + 4 * ft), pr(ACC + 4 * ft + 2)
            if ft > 1:
                p.I(f'v_pk_add_f32 v[40:41], v[40:41], {a}\nv_pk_add_f32 v[42:43], v[42:43], {b}')
            p.I(f'v_pk_fma_f32 v[44:45], {a}, {a}, v[44:45]\nv_pk_fma_f32 v[46:47], {b}, {b}, v[46:47]')
        for c in ('row_ror:8', 'row_ror:4', 'row_ror:2', 'row_ror:1'):
            self.dpp_add(range(40, 48), c)
        p.I(f"""s_mov_b32 vcc_lo, 0xaaaaaaaa
s_mov_b32 vcc_hi, 0xaaaaaaaa
v_cndmask_b32 v40, v40, v41, vcc
v_cndmask_b32 v42, v42, v43, vcc
v_cndmask_b32 v44, v44, v45, vcc
v_cndmask_b32 v46, v46, v47, vcc
s_mov_b32 vcc_lo, 0xcccccccc
s_mov_b32 vcc_hi, 0xcccccccc
v_cndmask_b32 v48, v40, v42, vcc
v_cndmask_b32 v49, v44, v46, vcc
v_mov_b32 v50, s{sTAG}
v_mov_b32 v51, 0
s_mov_b32 exec_lo, 0x000f000f
s_mov_b32 exec_hi, 0x000f000f""")
        self.lstores([f'buffer_store_dwordx4 v[48:51], v13, {WS}, s{sB3} offen'])
        p.I('s_mov_b64 exec, -1')
        self.gather2(40, 14, T3, 0, T3, 32)
        self.stamp('st3_in')
        for c in ('quad_perm:[1,0,3,2]', 'quad_perm:[2,3,0,1]', 'row_half_mirror'):
            self.dpp_add((40, 41, 44, 45), c)
        self.rstd(40, 41, 768)
        self.rstd(44, 45, 768)
        for dst, src in ((48, 41), (50, 45), (52, 40), (54, 44)):
            p.I(f'v_mov_b32_dpp v{dst}, v{src} row_newbcast:0 row_mask:0xf bank_mask:0xf\n'
                f'v_mov_b32_dpp v{dst + 1}, v{src} row_newbcast:8 row_mask:0xf bank_mask:0xf')
        for ft in range(6):
            for h in range(2):
                x = pr(ACC + 4 * ft + 2 * h)
                p.I(f'v_pk_fma_f32 {x}, {x}, {pr(48 + 2 * h)}, {pr(52 + 2 * h)}')
        for k in range(12):
            p.I(f'v_cvt_pk_bf16_f32 v{TMP + k}, v{ACC + 2 * k}, v{ACC + 2 * k + 1}')
        for F in range(3):
            p.I(f'v_permlane16_swap_b32 v{TMP + 4 * F}, v{TMP + 4 * F + 2}\nv_permlane16_swap_b32 v{TMP + 4 * F + 1}, v{TMP + 4 * F + 3}')
        for F in range(3):
            tz = p.vm(f'buffer_store_dwordx4 v[{TMP + 4 * F}:{TMP + 4 * F + 3}], v{vL16}, {WS}, s{T4} offen offset:{1024 * F} sc1')
        self.check_flags(self.tok['ws_flags'], 58, 59, 's90')
        self.bg_dma(sCA + 1, 64, 120, 40960, 'z1c')
        self.bg_wsp(self.NWS1)
        self.pump(self.NZ0)
        p.wait(vm=tz)
        p.I('s_barrier')
        self.flag(89, 60, False)
        self.stamp('z2_pub')
        z1addr = lambda n: 40960 + (84 + n) * 1024 if n < 24 else (n - 24) * 1024 if n < 64 else 40960 + (n - 64) * 1024

        def pre1(ks):
            if ks == 10:
                assert len(self.bg) <= self.NWS1
                p.wait(vm=self.tok['z1c'])
                p.I('s_barrier')
        self.gemm16(20, 6, None, 64, lambda ks, n: z1addr(ks * 6 + n), TMP, Z1, pre=pre1, rate=2)
        bs = self.srd(SA, P_BSP, 4096)
        p.I(f"""s_lshl_b32 s{T0}, s{sRB}, 7
s_lshl_b32 s{T1}, s{sW}, 5
s_add_u32 s{T0}, s{T0}, s{T1}
s_and_b32 s{T1}, s{sRB}, 1
s_lshl_b32 s{T1}, s{T1}, 6
s_add_u32 s{T3}, s88, s{T1}
v_lshlrev_b32 v4, 1, v11""")
        self.t_b = p.vm(f'buffer_load_ushort v40, v4, {bs}, s{T0} offen')
        p.I('s_barrier')
        self.spoll_issue(T3, 16)
        p.I(f's_mov_b32 s{T0}, s{sM}\ns_mov_b32 s{T1}, s{sM + 1}')
        self.gelu(Z1, 24, TMP)
        p.I(f's_mov_b32 s{sM}, s{T0}\ns_mov_b32 s{sM + 1}, s{T1}')
        self.pump()
        self.stamp('z1_done')

    NZ0 = 8
    DBGSKIP = 0
    NCH = 5

    def p3a(self):
        p = self.p
        OWN, SND, AB, Z1, NCH = 136, 160, 64, 16, self.NCH
        p.I(f"""s_and_b32 s{T0}, s{sRB}, 1
s_mul_i32 s{T7}, s{T0}, {64 * 3072}
s_add_u32 s{T7}, s{T7}, s87
s_mul_i32 s{T5}, s{sW}, 3072
s_add_u32 s{T7}, s{T7}, s{T5}
v_lshrrev_b32 v4, 5, v{vLANE}
v_mul_u32_u24 v13, 3072, v4
v_bfe_u32 v4, v{vLANE}, 4, 1
v_lshl_add_u32 v13, v4, 9, v13
v_lshl_add_u32 v13, v11, 4, v13""")
        self.spoll_check(16)
        self.stamp('z2_in')
        ctok = []

        def chunk():
            n = len(ctok)
            need = min(64, 4 * n + 4)
            if need > self.nws:
                self.bg_wsp(need - self.nws)
                self.pump()
            p.I(f's_add_u32 s{T8}, s{T5}, {12288 * (n % NCH)}')
            ctok.append(self.dma(T7, T8, 3))
            p.I(f's_add_u32 s{T7}, s{T7}, 12288')
        for _ in range(NCH - 1):
            chunk()
        L = vLANE
        self.addfill(f"""v_lshrrev_b32 v4, 4, v{L}
v_mul_u32_u24 v12, 768, v4
v_lshl_add_u32 v12, v11, 4, v12
s_lshl_b32 s{T4}, s{sRB}, 2
s_add_u32 s{T4}, s{T4}, s{sW}
s_mul_i32 s89, s{T4}, 24576
s_mul_i32 s{T1}, s{sJ}, 3072
s_add_u32 s{T4}, s89, {UF}
s_add_u32 s{T3}, s{T4}, s{T1}
s_add_u32 s89, s89, s{T1}
s_add_u32 s89, s89, {XCH}
s_and_b32 s{T2}, s{sRB}, 1
s_mul_i32 s{T2}, s{T2}, {8 * 24576}
s_add_u32 s87, s89, {4 * 24576}
s_sub_u32 s87, s87, s{T2}
s_lshl_b32 s90, s{sROLE}, 4
s_lshl_b32 s{T2}, s{sW}, 2
s_add_u32 s90, s90, s{T2}
s_xor_b32 s88, s90, 128
s_add_u32 s90, s90, {F_X}
s_add_u32 s88, s88, {F_X}
s_lshl_b32 s{T6}, s{sRB}, 7
s_lshl_b32 s{T1}, s{sW}, 5
s_add_u32 s{T6}, s{T6}, s{T1}
s_add_u32 s{T6}, s{T6}, {F_U}
s_lshl_b32 s{T1}, s{sJ}, 2
s_add_u32 s91, s{T6}, s{T1}
s_mul_i32 s{sCA}, s{sJ}, 0x1e000
s_add_u32 s{sCA}, s{sCA}, {WOUTF}
v_lshlrev_b32 v42, 16, v40
v_and_b32 v4, 7, v{L}
v_lshlrev_b32 v4, 2, v4
v_mov_b32 v44, 0
v_mov_b32 v46, 0x3f80
v_mov_b32 v47, 1.0""")

        def rd(s, ft):
            off = 12288 * ((s >> 1) % NCH) + 6144 * (s & 1) + 1024 * (ft >> 1) + 256 * (ft & 1)
            r = AB + 24 * (s % 3) + 4 * ft
            return p.ds(f'ds_read_b128 v[{r}:{r + 3}], v13 offset:{off}')
        p.wait(vm=ctok[0])
        p.I('s_barrier')
        rt = {}
        for s in range(2):
            for ft in range(6):
                rt[s] = rd(s, ft)
        for s in range(32):
            if s in (4, 8, 16, 24) and 'fine' in self.o.exp:
                self.stamp(f's{s}')
            if s % 2 == 0 and s + 2 < 32:
                p.wait(vm=ctok[(s + 2) >> 1])
                p.I('s_barrier')
                if len(ctok) < 16:
                    chunk()
                if len(ctok) == 16 and 'wu1' not in self.tok and not self.bg:
                    if self.o.local:
                        for m in range(3):
                            self.bg_vm(f'buffer_load_dword v41, v{vL16}, {WS}, s89 offen offset:{1024 * m} sc1')
                            self.bg_vm(f'buffer_load_dword v41, v12, {WS}, s{T3} offen offset:{256 * m} sc1')
                        self.bg_vm(f'buffer_load_dword v41, v44, {WS}, s90 offen sc1')
                    self.bg_dma(sCA, 0, self.NWU1, 61440, 'wu1')
            p.wait(ds=rt[s])
            for ft in range(6):
                r = AB + 24 * (s % 3) + 4 * ft
                for tt in range(2):
                    acc = vr((OWN, SND)[tt] + 4 * ft, 4)
                    b = 8 * s + 4 * tt
                    p.I(f'v_mfma_f32_16x16x32_bf16 {acc}, v[{r}:{r + 3}], a[{b}:{b + 3}], {acc if s else 0}')
                    if tt == 0:
                        if s + 2 < 32:
                            rt[s + 2] = rd(s + 2, ft)
                    elif len(ctok) == 16 and ft % 2 == 0:
                        self.pump(1)
                    else:
                        self.pfill(1)
        self.pfill()
        self.stamp('p3a_mm')
        for k in range(12):
            p.I(f'v_cvt_pk_bf16_f32 v{64 + k}, v{SND + 2 * k}, v{SND + 2 * k + 1}')
        t = self.lstores([f'buffer_store_dwordx4 v[{64 + 4 * m}:{67 + 4 * m}], v{vL16}, {WS}, s87 offen offset:{1024 * m}' for m in range(3)])
        tg = self.load_vec(48, 3)
        pr = lambda b: f'v[{b}:{b + 1}]'
        for k in range(12):
            p.I(f'v_pk_add_f32 {pr(OWN + 2 * k)}, {pr(OWN + 2 * k)}, v[42:43] op_sel_hi:[1,0]')
        p.wait(vm=t)
        self.flag(88, 60, True)
        self.stamp('x_pub')
        self.pump()
        self.vpoll(44, 45, 90)
        self.stamp('x_in')
        tx = [p.vm(f'buffer_load_dwordx4 v[{88 + 4 * m}:{91 + 4 * m}], v{vL16}, {WS}, s89 offen offset:{1024 * m} sc1') for m in range(3)]
        for m in range(3):
            p.wait(vm=tx[m])
            for d in range(4):
                r = OWN + 8 * m + 2 * d
                p.I(f'v_dot2c_f32_bf16 v{r}, v{88 + 4 * m + d}, v46\nv_dot2c_f32_bf16 v{r + 1}, v{88 + 4 * m + d}, v47')
        for k in range(12):
            p.I(f'v_pk_mul_f32 {pr(OWN + 2 * k)}, {pr(OWN + 2 * k)}, {pr(Z1 + 2 * k)}')
        for k in range(12):
            p.I(f'v_cvt_pk_bf16_f32 v{100 + k}, v{OWN + 2 * k}, v{OWN + 2 * k + 1}')
        t = self.lstores([f'buffer_store_dwordx4 v[{100 + 4 * m}:{103 + 4 * m}], v12, {WS}, s{T3} offen offset:{256 * m}'
                          for m in range(3)])
        p.wait(ds=tg)
        self.unpack(16, 48, 10)
        p.wait(vm=t)
        self.flag(91, 60, True)
        self.stamp('u_pub')

    def p3b(self):
        p = self.p
        X1, ACC, GB = 232, 36, 16
        n1 = self.NWU1
        p.I('s_barrier')
        self.bg_dma(sCA, n1, 120, 0, 'wu2')
        self.pump()
        os_ = self.srd(SA, P_OUT, 2048 * 1280)
        self.vpoll(4, 63, T6)
        self.stamp('u_in')
        addr = lambda n: 61440 + n * 1024 if n < n1 else (n - n1) * 1024
        self.gemm16(24, 5, T4, 64, lambda ks, n: addr(ks * 5 + n), 160, ACC, bar=True)
        self.stamp('p3b_mm')
        for k in range(10):
            p.I(f'v_pk_fma_f32 v[{X1 + 2 * k}:{X1 + 2 * k + 1}], v[{GB + 2 * k}:{GB + 2 * k + 1}], v[{ACC + 2 * k}:{ACC + 2 * k + 1}], v[{X1 + 2 * k}:{X1 + 2 * k + 1}]')
        for k in range(10):
            p.I(f'v_cvt_pk_bf16_f32 v{64 + k}, v{X1 + 2 * k}, v{X1 + 2 * k + 1}')
        p.vm(f'buffer_store_dwordx4 v[64:67], v7, {os_}, s{sT9} offen')
        p.vm(f'buffer_store_dwordx4 v[68:71], v7, {os_}, s{sT9} offen offset:16')
        p.vm(f'buffer_store_dwordx2 v[72:73], v8, {os_}, s{sT9} offen')

    def build(self):
        p = self.p
        p.L(KNAME)
        stages = [('entry', self.entry), ('roles', self.roles), ('ln', self.ln_stats),
                  ('h', self.make_h), ('p1main', self.p1_main), ('kv', self.p1_kv), ('q', self.p1_q), ('o', self.p1_o), ('p2a', self.p2a), ('p2b', self.p2b),
                  ('p3a', self.p3a), ('p3b', self.p3b)]
        for name, fn in stages:
            p.C(f'======== {name}')
            fn()
            if self.o.stop == name:
                break
        p.L('L_fin')
        if self.o.stop is None:
            p.I(f's_or_b32 s{T0}, s{sROLE}, s{sW}\ns_cmp_eq_u32 s{T0}, 0\ns_cselect_b32 s{T0}, {WS_EPOCH}, {OOB}')
            self.flag(T0, 60, False)
        if self.o.stamps:
            self.stamp('end')
            p.I(f'''s_lshl_b32 s{T0}, s{sROLE}, 2
s_add_u32 s{T0}, s{T0}, s{sW}
s_lshl_b32 s{T0}, s{T0}, 8
s_add_u32 s{T0}, s{T0}, {STAMPS}
v_lshlrev_b32 v4, 2, v{vLANE}''')
            p.vm(f'buffer_store_dword v{vSTAMP}, v4, {WS}, s{T0} offen')
            p.I(f's_add_u32 s{T1}, s{T0}, {DBGX + 0x400000 - STAMPS}')
            p.vm(f'buffer_store_dword v231, v4, {WS}, s{T1} offen')
            if self.o.dbgrole is not None:
                d = self.srd(SA, P_DBG, 256)
                p.I(f'''v_readlane_b32 s{T1}, v{vSTAMP}, 0
v_subrev_u32 v5, s{T1}, v{vSTAMP}
v_subrev_u32 v4, {self.DBGSKIP}, v{vLANE}
v_lshlrev_b32 v4, 1, v4
s_lshl_b32 s{T0}, s{sROLE}, 2
s_add_u32 s{T0}, s{T0}, s{sW}
s_cmp_eq_u32 s{T0}, {4 * self.o.dbgrole}
s_cselect_b32 s{T0}, 0, {OOB}''')
                p.vm(f'buffer_store_short v5, v4, {d}, s{T0} offen')
        if self.o.pad:
            p.I(f'v_readlane_b32 s{T1}, v{vSTAMP}, 0')
            p.L('L_pad')
            p.sm(f's_memrealtime s[{sM}:{sM + 1}]')
            p.wait_lgkm_all()
            p.I(f's_sub_u32 s{T0}, s{sM}, s{T1}\ns_cmp_lt_u32 s{T0}, {self.o.pad}\ns_cbranch_scc1 L_pad')
        p.I('s_endpgm')
        for lg, lb, texts in self.ool:
            p.L(lg)
            for t in texts:
                p.vm(t, count=False)
            p.I(f's_branch {lb}')
        p.L('L_end')
        p.I('s_endpgm')
        head = open('adaLN_cond__linear_kernel_hedgehog__mixer_gmlp__prompt.s.ref').read().split('\n')
        hdr = [l for l in head if l.startswith(';') and '@launch' not in l and 'Override' not in l and 'grid=ceil' not in l]
        txt = '\n'.join(hdr) + f'\n; @launch grid=(256,1,1) block=(256,1,1) lds={LDS_BYTES}\n'
        txt += f'.amdgcn_target "amdgcn-amd-amdhsa--gfx950"\n.text\n.globl {KNAME}\n.p2align 8\n.type {KNAME},@function\n'
        txt += p.render()
        txt += f'''.section .rodata,"a"
.p2align 6
.amdhsa_kernel {KNAME}
  .amdhsa_next_free_vgpr 512
  .amdhsa_next_free_sgpr 102
  .amdhsa_accum_offset 256
  .amdhsa_group_segment_fixed_size 0
  .amdhsa_kernarg_size 112
  .amdhsa_user_sgpr_count 2
  .amdhsa_user_sgpr_kernarg_segment_ptr 1
  .amdhsa_system_sgpr_workgroup_id_x 1
  .amdhsa_float_denorm_mode_32 3
.end_amdhsa_kernel
'''
        return txt


if __name__ == '__main__':
    import argparse
    ap = argparse.ArgumentParser()
    ap.add_argument('-o', default='mk.s')
    ap.add_argument('--stamps', action='store_true')
    ap.add_argument('--nolocal', action='store_true')
    ap.add_argument('--stop')
    ap.add_argument('--set', action='append', default=[])
    ap.add_argument('--wsbase', type=lambda x: int(x, 0), default=0)
    ap.add_argument('--exp', default='')
    ap.add_argument('--pad', type=int, default=0)
    ap.add_argument('--dbgrole', type=int)
    ap.add_argument('--nont', action='store_true')
    a = ap.parse_args()
    o = Opt()
    o.stamps, o.local, o.stop = a.stamps, not a.nolocal, a.stop
    o.nt = '' if a.nont else ' nt'
    o.dbgrole = a.dbgrole
    o.pad = a.pad
    o.exp = a.exp.split(',')
    o.wsbase = a.wsbase
    for kv in a.set:
        k_, v_ = kv.split('=')
        setattr(Gen, k_, int(v_))
    g = Gen(o)
    s = g.build()
    open(a.o, 'w').write(s)
    open(a.o + '.stamps', 'w').write('\n'.join(g.stamp_names))
    for w in g.p.warn: print('WARN', w)
    print('instructions', sum(1 for k, _ in g.p.items if k == 'i'), 'nops', g.p.nnop)
```
